```python
import torch

def _softmax(x, axis=-1):
    return torch.softmax(x, dim=axis)

def _gelu(x):
    return torch.nn.functional.gelu(x, approximate='tanh')

def _silu(x):
    return torch.nn.functional.silu(x)

def _sigmoid(x):
    return torch.sigmoid(x)

def _layernorm(x, axis=-1, eps=1e-05):
    m = x.mean(dim=axis, keepdim=True)
    v = x.var(dim=axis, keepdim=True, unbiased=False)
    return (x - m) / torch.sqrt(v + eps)

def _scatter_add(tgt, idx, src, axis=0):
    return tgt.clone().index_add_(axis, idx, src)

def _segment_sum(src, seg, n):
    out = torch.zeros((n,) + src.shape[1:], dtype=src.dtype)
    return out.index_add_(0, seg, src)

def _pad(x, pw):
    flat = tuple((v for pair in reversed(pw) for v in pair))
    return torch.nn.functional.pad(x, flat)
kernel_name = 'standalone__tensor_product_equiv_equiformer__graph'

def setup_inputs():

    _w = lambda a: (lambda t: t.to(torch.bfloat16) if t.is_floating_point() else t)(torch.as_tensor(a))
    N, deg, C, De = (25000, 32, 64, max(0, 1))
    E = N * deg
    src = (lambda lo, hi, *s: torch.randint(lo, hi, s))(0, N, E).to(torch.int64)
    dst = (lambda lo, hi, *s: torch.randint(lo, hi, s))(0, N, E).to(torch.int64)
    rvec = (lambda *s: torch.randn(*s, dtype=torch.bfloat16) * 0.05)(E, 3).to(float)
    rn = (torch.linalg.norm(rvec, dim=-1, keepdim=True) + 1e-06).to(float)
    rhat = (rvec / rn).to(float)
    eps = torch.zeros((3, 3, 3), dtype=float)
    eps[0, 1, 2] = eps[1, 2, 0] = eps[2, 0, 1] = 1.0
    eps[0, 2, 1] = eps[2, 1, 0] = eps[1, 0, 2] = -1.0
    return {'x': _w((lambda *s: torch.randn(*s, dtype=torch.bfloat16) * 0.4)(N, 4 * C).to(float)), 'rhat': _w(rhat), 'e_attr': _w((lambda *s: torch.randn(*s, dtype=torch.bfloat16) * 0.4)(E, De).to(float)), 'src': _w(src), 'dst': _w(dst), 'w_rad': _w((lambda *s: torch.randn(*s, dtype=torch.bfloat16) * 0.4)(De, 5 * C).to(float)), 'w_si0': _w((lambda *s: torch.randn(*s, dtype=torch.bfloat16) * 0.4)(2 * C, C).to(float)), 'w_si1': _w((lambda *s: torch.randn(*s, dtype=torch.bfloat16) * 0.05)(3 * C, C).to(float)), 'cg_eps': _w(eps)}

def reference(x, rhat, e_attr, src, dst, w_rad, w_si0, w_si1, cg_eps):
    N = x.shape[0]
    C = w_si0.shape[1]
    E = rhat.shape[0]
    x0 = x[:, :C].clone()
    x1 = x[:, C:].reshape(N, 3, C)
    R = (e_attr @ w_rad).reshape(E, 5, C)
    f0 = x0[src]
    f1 = x1[src]
    Y1 = rhat
    p00_0 = f0 * R[:, 0, :]
    p11_0 = torch.einsum('ejc,ej->ec', f1, Y1) * R[:, 1, :]
    p01_1 = torch.einsum('ec,ej->ejc', f0, Y1) * R[:, 2, :][:, None, :]
    p10_1 = f1 * R[:, 3, :][:, None, :]
    p11_1 = torch.einsum('ijk,ekc,ej->eic', cg_eps, f1, Y1) * R[:, 4, :][:, None, :]
    m0 = torch.concatenate([p00_0, p11_0], axis=-1) @ w_si0
    m1 = torch.einsum('ejp,pc->ejc', torch.concatenate([p01_1, p10_1, p11_1], axis=-1), w_si1)
    agg0 = _segment_sum(m0, dst, N)
    agg1 = _segment_sum(m1.reshape(E, 3 * C), dst, N).reshape(N, 3, C)
    gate = _sigmoid(agg0)
    out1 = agg1 * gate[:, None, :]
    return torch.concatenate([agg0, out1.reshape(N, 3 * C)], axis=-1)
```

```python
import sys

NAME = "standalone__tensor_product_equiv_equiformer__graph"
N = 25000
E = 800000
NPB = 98
NB = 256
NC = 250
CH = 3200
P = 8
PH = (N + P - 1) // P
NSLOT = 13
D = 8

REC_OFF = 0
REC_BYTES = NC * CH * 16
DESC_OFF = 0x1000000
DESC_BYTES = NB * 256 * 4
WIMG_OFF = 0x1100000
WIMG_BYTES = 5 * 8192
SCL_OFF = WIMG_OFF + WIMG_BYTES
SCL_BYTES = 4096
PART_OFF = 0x2000000
PART_BYTES = NB * 8 * 64 * 64 * 4

L_FLAG = 0
L_HIST = 256
L_W = L_HIST + 4096
L_REG = L_W + WIMG_BYTES
REGB = 10240
L_TOTAL = L_REG + 8 * REGB
CAPP = REGB // 32 - (D + 2)
STG = 528
OOB = 0x7FFFF000


def magic(div, maxv):
    for k in range(31, 15, -1):
        m = -(-(1 << k) // div)
        if m < (1 << 24) and m * maxv < (1 << 32):
            e = m * div - (1 << k)
            if e * maxv < (1 << k):
                assert all((v * m) >> k == v // div for v in range(maxv + 1))
                return m, k
    raise ValueError


class Asm:
    def __init__(self):
        self.lines = []

    def __call__(self, s):
        for ln in s.strip("\n").split("\n"):
            ln = ln.strip()
            if ln:
                self.lines.append(("" if ln.endswith(":") else "    ") + ln)

    def label(self, l):
        self.lines.append(l + ":")

    def text(self):
        return "\n".join(self.lines) + "\n"


def srd(a, d, base, nbytes, add=0):
    if add:
        a(f"s_add_u32 s{d}, s{base}, {add}")
        a(f"s_addc_u32 s{d+1}, s{base+1}, 0")
        a(f"s_and_b32 s{d+1}, s{d+1}, 0xffff")
    else:
        a(f"s_mov_b32 s{d}, s{base}")
        a(f"s_and_b32 s{d+1}, s{base+1}, 0xffff")
    a(f"s_mov_b32 s{d+2}, {nbytes}")
    a(f"s_mov_b32 s{d+3}, 0x20000")


def wave_scan(a, v):
    for sh in (1, 2, 4, 8):
        a("s_nop 1")
        a(f"v_add_u32_dpp v{v}, v{v}, v{v} row_shr:{sh} row_mask:0xf bank_mask:0xf bound_ctrl:0")
    a("s_nop 1")
    a(f"v_add_u32_dpp v{v}, v{v}, v{v} row_bcast:15 row_mask:0xa bank_mask:0xf")
    a("s_nop 1")
    a(f"v_add_u32_dpp v{v}, v{v}, v{v} row_bcast:31 row_mask:0xc bank_mask:0xf")
    a("s_nop 1")


def gen_part(a):
    mB, kB = magic(NPB, 32767)
    mP, kP = magic(PH, 32767)
    a(f"""
.p2align 8
.globl part_kernel
.type part_kernel,@function
part_kernel:
    s_cmp_ge_u32 s2, {NC + 6}
    s_cbranch_scc1 P_done
    s_load_dwordx4 s[4:7], s[0:1], 8
    s_load_dwordx4 s[8:11], s[0:1], 24
    s_load_dwordx4 s[12:15], s[0:1], 40
    s_load_dwordx2 s[16:17], s[0:1], 56
    s_load_dwordx2 s[18:19], s[0:1], 88
    s_cmp_ge_u32 s2, {NC}
    s_cbranch_scc1 P_prep
    v_lshlrev_b32 v1, 2, v0
    v_mov_b32 v2, 0
    v_cmp_gt_u32 vcc, 256, v0
    s_and_saveexec_b64 s[20:21], vcc
    ds_write_b32 v1, v2
    s_mov_b64 exec, s[20:21]
    s_mul_i32 s3, s2, {CH}
    v_lshl_add_u32 v3, v0, 2, s3
    v_lshlrev_b32 v4, 2, v3
    v_lshlrev_b32 v5, 1, v3
    v_mul_u32_u24 v6, 6, v3
    v_cmp_gt_u32 vcc, {CH // 4}, v0
    s_and_saveexec_b64 s[20:21], vcc
    s_waitcnt lgkmcnt(0)
    global_load_dwordx4 v[8:11], v4, s[10:11]
    global_load_dwordx4 v[12:15], v4, s[8:9]
    global_load_dwordx2 v[16:17], v5, s[6:7]
    global_load_dwordx4 v[20:23], v6, s[4:5]
    global_load_dwordx2 v[24:25], v6, s[4:5] offset:16
    s_mov_b64 exec, s[20:21]
    s_barrier
    s_mov_b64 exec, vcc
    v_mov_b32 v2, 1
    s_waitcnt vmcnt(4)
""")
    for i in range(4):
        a(f"""
    v_mul_u32_u24 v{28+i}, {mB}, v{8+i}
    v_lshrrev_b32 v{28+i}, {kB}, v{28+i}
    v_min_u32 v{28+i}, 255, v{28+i}
    v_lshlrev_b32 v{36+i}, 2, v{28+i}
    ds_add_rtn_u32 v{32+i}, v{36+i}, v2
""")
    a(f"s_movk_i32 s22, {NPB}")
    a("s_waitcnt vmcnt(3)")
    for i in range(4):
        r = 40 + 4 * i
        a(f"""
    v_mul_u32_u24 v1, s22, v{28+i}
    v_sub_u32 v1, v{8+i}, v1
    v_and_b32 v3, 7, v1
    v_lshrrev_b32 v1, 3, v1
    v_and_b32 v1, 15, v1
    v_mul_u32_u24 v4, {mP}, v{12+i}
    v_lshrrev_b32 v4, {kP}, v4
    v_min_u32 v4, {P-1}, v4
    v_lshl_add_u32 v3, v3, 3, v4
    v_lshl_add_u32 v3, v3, 4, v1
    v_lshlrev_b32 v3, 2, v3
    v_add_u32 v{r+3}, {L_HIST}, v3
    v_lshlrev_b32 v{r+2}, 9, v{12+i}
""")
    a("s_mov_b32 s23, 0xffff0000")
    a("s_waitcnt vmcnt(0)")
    for i in range(4):
        src = 16 + i // 2
        if i % 2 == 0:
            a(f"v_lshlrev_b32 v{56+i}, 16, v{src}")
        else:
            a(f"v_and_b32 v{56+i}, s23, v{src}")
    for k in range(12):
        src = 20 + k // 2
        if k % 2 == 0:
            a(f"v_lshlrev_b32 v{60+k}, 16, v{src}")
        else:
            a(f"v_and_b32 v{60+k}, s23, v{src}")
    for i in range(4):
        r = 40 + 4 * i
        for j in range(3):
            a(f"v_mul_f32 v{60+3*i+j}, v{56+i}, v{60+3*i+j}")
        a(f"v_cvt_pk_bf16_f32 v{r}, v{56+i}, v{60+3*i}")
        a(f"v_cvt_pk_bf16_f32 v{r+1}, v{61+3*i}, v{62+3*i}")
    a(f"""
    s_mov_b64 exec, -1
    s_waitcnt lgkmcnt(0)
    s_barrier
    v_cmp_gt_u32 vcc, 64, v0
    s_cbranch_vccz P_skipscan
    v_lshlrev_b32 v1, 4, v0
    ds_read_b128 v[72:75], v1
    s_waitcnt lgkmcnt(0)
    v_add_u32 v76, v72, v73
    v_add_u32 v77, v76, v74
    v_add_u32 v78, v77, v75
    v_mov_b32 v79, v78
""")
    wave_scan(a, 79)
    a(f"""
    v_sub_u32 v80, v79, v78
    v_add_u32 v81, v80, v72
    v_add_u32 v82, v80, v76
    v_add_u32 v83, v80, v77
    ds_write_b128 v1, v[80:83]
    v_lshl_or_b32 v72, v72, 16, v80
    v_lshl_or_b32 v73, v73, 16, v81
    v_lshl_or_b32 v74, v74, 16, v82
    v_lshl_or_b32 v75, v75, 16, v83
    s_lshl_b32 s3, s2, 2
    s_add_u32 s3, s3, {DESC_OFF}
    v_lshlrev_b32 v1, 12, v0
    v_add_u32 v1, s3, v1
    global_store_dword v1, v72, s[18:19]
    global_store_dword v1, v73, s[18:19] offset:1024
    global_store_dword v1, v74, s[18:19] offset:2048
    global_store_dword v1, v75, s[18:19] offset:3072
    s_waitcnt lgkmcnt(0)
P_skipscan:
    s_barrier
    v_cmp_gt_u32 vcc, {CH // 4}, v0
    s_and_saveexec_b64 s[20:21], vcc
    s_cbranch_execz P_done
""")
    for i in range(4):
        a(f"ds_read_b32 v{28+i}, v{36+i}")
    a(f"s_mul_i32 s3, s2, {CH * 16}")
    for i in range(4):
        r = 40 + 4 * i
        a(f"""
    s_waitcnt lgkmcnt({3-i})
    v_add_u32 v{28+i}, v{28+i}, v{32+i}
    v_lshl_add_u32 v{28+i}, v{28+i}, 4, s3
    global_store_dwordx4 v{28+i}, v[{r}:{r+3}], s[18:19]
""")
    a("s_branch P_done")
    a(f"""
P_prep:
    s_waitcnt lgkmcnt(0)
    s_lshl_b32 s3, s2, 2
    s_add_u32 s3, s3, {DESC_OFF}
    v_lshlrev_b32 v1, 10, v0
    v_add_u32 v1, s3, v1
    v_mov_b32 v2, 0
    v_cmp_gt_u32 vcc, 256, v0
    s_and_saveexec_b64 s[20:21], vcc
    s_cbranch_execz P_prep1
    global_store_dword v1, v2, s[18:19]
P_prep1:
    s_mov_b64 exec, s[20:21]
    s_sub_u32 s3, s2, {NC}
    s_cmp_eq_u32 s3, 5
    s_cbranch_scc1 P_scale
    v_cmp_gt_u32 vcc, 512, v0
    s_and_saveexec_b64 s[20:21], vcc
    s_cbranch_execz P_done
    s_cmp_lt_u32 s3, 2
    s_cselect_b32 s24, s14, s16
    s_cselect_b32 s25, s15, s17
    s_sub_u32 s22, s3, 2
    s_cselect_b32 s22, s3, s22
    s_lshl_b32 s22, s22, 13
    v_lshrrev_b32 v1, 8, v0
    v_bfe_u32 v2, v0, 4, 2
    v_lshl_add_u32 v1, v1, 2, v2
    v_lshlrev_b32 v1, 10, v1
    v_bfe_u32 v2, v0, 7, 1
    v_bfe_u32 v3, v0, 2, 2
    v_lshl_add_u32 v2, v2, 2, v3
    v_bfe_u32 v3, v0, 6, 1
    v_lshl_add_u32 v2, v2, 1, v3
    v_and_b32 v3, 3, v0
    v_lshl_add_u32 v2, v2, 2, v3
    v_lshl_add_u32 v1, v2, 1, v1
    v_add_u32 v1, s22, v1
""")
    for e in range(8):
        a(f"global_load_ushort v{8+e}, v1, s[24:25] offset:{128*e}")
    a(f"""
    s_lshl_b32 s3, s3, 13
    s_add_u32 s3, s3, {WIMG_OFF}
    v_lshl_add_u32 v1, v0, 4, s3
    s_waitcnt vmcnt(0)
    v_lshl_or_b32 v4, v9, 16, v8
    v_lshl_or_b32 v5, v11, 16, v10
    v_lshl_or_b32 v6, v13, 16, v12
    v_lshl_or_b32 v7, v15, 16, v14
    global_store_dwordx4 v1, v[4:7], s[18:19]
    s_branch P_done
P_scale:
    v_cmp_gt_u32 vcc, 256, v0
    s_and_saveexec_b64 s[20:21], vcc
    s_cbranch_execz P_done
    v_bfe_u32 v1, v0, 3, 2
    v_lshrrev_b32 v2, 6, v0
    v_lshl_add_u32 v1, v2, 2, v1
    v_lshlrev_b32 v1, 2, v1
""")
    tab = []
    for kc in range(4):
        for comp in range(4):
            if kc == 0:
                t, s = (0, 0) if comp == 0 else (3, 0)
            else:
                j = kc - 1
                if comp == 0:
                    t, s = 2, 0
                elif comp - 1 == j:
                    t, s = 1, 0
                else:
                    k = comp - 1
                    t, s = 4, (0 if k == (j + 1) % 3 else 1)
            tab.append(t | (s << 3))
    lo = sum(tab[i] << (4 * i) for i in range(8))
    hi = sum(tab[8 + i] << (4 * i) for i in range(8))
    a(f"""
    v_mov_b32 v2, {lo:#x}
    v_mov_b32 v3, {hi:#x}
    v_lshrrev_b64 v[2:3], v1, v[2:3]
    v_and_b32 v4, 7, v2
    v_bfe_u32 v5, v2, 3, 1
    v_lshlrev_b32 v5, 31, v5
    v_and_b32 v6, 7, v0
    v_bfe_u32 v7, v0, 5, 1
    v_lshl_add_u32 v6, v6, 1, v7
    v_lshlrev_b32 v6, 3, v6
    v_lshl_add_u32 v6, v4, 7, v6
    global_load_dwordx2 v[8:9], v6, s[12:13]
    s_mov_b32 s23, 0xffff0000
    v_lshlrev_b32 v1, 4, v0
    v_add_u32 v1, {SCL_OFF}, v1
    s_waitcnt vmcnt(0)
    v_lshlrev_b32 v12, 16, v8
    v_and_b32 v13, s23, v8
    v_lshlrev_b32 v14, 16, v9
    v_and_b32 v15, s23, v9
    v_xor_b32 v12, v12, v5
    v_xor_b32 v13, v13, v5
    v_xor_b32 v14, v14, v5
    v_xor_b32 v15, v15, v5
    global_store_dwordx4 v1, v[12:15], s[18:19]
P_done:
    s_endpgm
""")


ACC = 48
RING = 16
S_X = 4
S_REC = 8
S_OUT = 12
S_WS = 16
S_WAVE = 18
S_C0 = 19
S_TAKE = 20
S_MORE = 21
S_REGION = 22
S_PH = 23
S_T = 24
S_CNT = 28
S_MASK = 44
S_PART = 92
NSUB = 3


def gen_main(a):
    a(f"""
.p2align 8
.globl main_kernel
.type main_kernel,@function
main_kernel:
    s_cmp_ge_u32 s2, {NB}
    s_cbranch_scc1 M_done
    s_load_dwordx2 s[24:25], s[0:1], 0
    s_load_dwordx2 s[26:27], s[0:1], 72
    s_load_dwordx2 s[16:17], s[0:1], 88
    v_lshrrev_b32 v1, 6, v0
    s_nop 0
    v_readfirstlane_b32 s{S_WAVE}, v1
    v_and_b32 v15, 63, v0
    s_mov_b32 s{S_C0}, 0
    s_movk_i32 s{S_TAKE}, {16*NSUB}
    s_mul_i32 s{S_REGION}, s{S_WAVE}, {REGB}
    s_add_u32 s{S_REGION}, s{S_REGION}, {L_REG}
    s_waitcnt lgkmcnt(0)
""")
    srd(a, S_X, 24, N * 512)
    srd(a, S_OUT, 26, N * 512)
    srd(a, S_REC, 16, REC_BYTES, REC_OFF)
    srd(a, S_PART, 16, PART_BYTES, PART_OFF)
    a(f"""
    v_lshrrev_b32 v1, 4, v0
    v_lshlrev_b32 v1, 5, v1
    s_lshl_b32 s24, s2, 10
    s_add_u32 s24, s24, {DESC_OFF}
    v_add_u32 v1, s24, v1
    global_load_dwordx4 v[100:103], v1, s[16:17]
    global_load_dwordx4 v[104:107], v1, s[16:17] offset:16
    v_lshlrev_b32 v2, 4, v0
    v_add_u32 v3, {WIMG_OFF}, v2
""")
    for i in range(5):
        a(f"global_load_dwordx4 v[{108+4*i}:{111+4*i}], v3, s[16:17]")
        if i < 4:
            a(f"v_add_u32 v3, 0x2000, v3")
    a(f"""
    v_add_u32 v2, {L_W}, v2
    s_waitcnt vmcnt(0)
""")
    for i in range(5):
        a(f"ds_write_b128 v2, v[{108+4*i}:{111+4*i}] offset:{8192*i}")
    a("s_branch M_round1")
    a(f"""
M_round:
    v_lshrrev_b32 v1, 4, v15
    s_lshl_b32 s24, s{S_WAVE}, 2
    v_add_u32 v1, s24, v1
    v_lshlrev_b32 v1, 5, v1
    s_lshl_b32 s24, s2, 10
    s_add_u32 s24, s24, {DESC_OFF}
    v_add_u32 v1, s24, v1
    global_load_dwordx4 v[100:103], v1, s[16:17]
    global_load_dwordx4 v[104:107], v1, s[16:17] offset:16
    s_waitcnt vmcnt(0)
M_round1:
    s_lshl_b32 s24, s{S_WAVE}, 9
    s_add_u32 s24, s24, {L_HIST}
    v_lshl_add_u32 v1, v15, 3, s24
    v_mov_b32 v4, 0
    v_mov_b32 v5, 0
    v_mov_b32 v6, {OOB:#x}
    v_mov_b32 v7, 0
    ds_write_b64 v1, v[4:5]
    v_mov_b32 v2, {L_FLAG}
    ds_write_b64 v2, v[4:5]
    v_lshl_add_u32 v2, v15, 4, s{S_REGION}
""")
    for i in range(REGB // 1024):
        a(f"ds_write_b128 v2, v[4:7] offset:{1024*i}")
    a(f"""
    v_lshrrev_b32 v1, 4, v15
    s_lshl_b32 s24, s{S_WAVE}, 2
    v_add_u32 v1, s24, v1
    s_mov_b32 s24, {8*CH*16}
    v_mul_lo_u32 v1, v1, s24
    v_and_b32 v2, 15, v15
    v_add_u32 v2, s{S_C0}, v2
    v_lshl_add_u32 v1, v2, 4, v1
    s_add_u32 s25, s{S_C0}, s{S_TAKE}
    v_mov_b32 v9, 0
""")
    for k in range(8):
        d = 100 + k
        a(f"""
    v_lshrrev_b32 v3, 16, v{d}
    v_max_u32 v9, v9, v3
    v_min_u32 v3, s25, v3
    v_sub_u32 v3, v3, v2
    v_and_b32 v{d}, 0xffff, v{d}
    v_lshl_add_u32 v{d}, v{d}, 4, v1
""")
        for u in range(NSUB):
            m = S_MASK + 2 * (k * NSUB + u)
            a(f"v_cmp_lt_i32 s[{m}:{m+1}], {16*u}, v3")
        if k < 7:
            a(f"v_add_u32 v1, {CH*16}, v1")
    RB = 160
    for u in range(NSUB):
        for k in range(8):
            m = S_MASK + 2 * (k * NSUB + u)
            r = RB + 4 * (k * NSUB + u)
            a(f"s_mov_b64 exec, s[{m}:{m+1}]")
            a(f"buffer_load_dwordx4 v[{r}:{r+3}], v{100+k}, s[{S_REC}:{S_REC+3}], 0 offen offset:{256*u}")
    a(f"""
    s_mov_b64 exec, -1
    s_waitcnt lgkmcnt(0)
    s_barrier
    v_cmp_lt_u32 vcc, s25, v9
    s_and_saveexec_b64 s[26:27], vcc
    v_mov_b32 v1, {L_FLAG+4}
    v_mov_b32 v2, 1
    ds_write_b32 v1, v2
    s_mov_b64 exec, -1
    v_mov_b32 v2, 1
    s_waitcnt vmcnt(0)
""")
    RK = 132
    for u in range(NSUB):
        for k in range(8):
            i = k * NSUB + u
            m = S_MASK + 2 * i
            a(f"s_mov_b64 exec, s[{m}:{m+1}]")
            a(f"ds_add_rtn_u32 v{RK+i}, v{RB+4*i+3}, v2")
    a(f"""
    s_mov_b64 exec, -1
    s_waitcnt lgkmcnt(0)
    s_barrier
    s_lshl_b32 s24, s{S_WAVE}, 9
    s_add_u32 s24, s24, {L_HIST}
    v_lshl_add_u32 v1, v15, 3, s24
    ds_read_b64 v[2:3], v1
    s_waitcnt lgkmcnt(0)
    v_add_u32 v2, 1, v2
    v_add_u32 v3, 1, v3
    v_lshrrev_b32 v0, 1, v2
    v_lshrrev_b32 v13, 1, v3
    v_add_u32 v4, v0, v13
    v_mov_b32 v5, v4
""")
    wave_scan(a, 5)
    a(f"""
    v_readlane_b32 s24, v5, 63
    v_sub_u32 v4, v5, v4
    v_lshl_add_u32 v6, v4, 5, s{S_REGION}
    v_lshl_add_u32 v7, v0, 5, v6
    ds_write_b64 v1, v[6:7]
    s_cmp_le_u32 s24, {CAPP}
    s_cbranch_scc1 M_noovf
    v_mov_b32 v1, {L_FLAG}
    v_mov_b32 v2, 1
    ds_write_b32 v1, v2
M_noovf:
    s_waitcnt lgkmcnt(0)
    s_barrier
    v_mov_b32 v1, {L_FLAG}
    ds_read_b64 v[2:3], v1
""")
    for u in range(NSUB):
        for k in range(8):
            i = k * NSUB + u
            m = S_MASK + 2 * i
            a(f"s_mov_b64 exec, s[{m}:{m+1}]")
            a(f"ds_read_b32 v{RB+4*i+3}, v{RB+4*i+3}")
    a(f"""
    s_mov_b64 exec, -1
    s_waitcnt lgkmcnt(0)
    v_readfirstlane_b32 s24, v2
    v_readfirstlane_b32 s{S_MORE}, v3
    s_cmp_eq_u32 s24, 0
    s_cbranch_scc1 M_go
    s_lshr_b32 s{S_TAKE}, s{S_TAKE}, 1
    s_max_u32 s{S_TAKE}, s{S_TAKE}, 1
    s_barrier
    s_branch M_round
M_go:
""")
    for u in range(NSUB):
        for k in range(8):
            i = k * NSUB + u
            m = S_MASK + 2 * i
            r = RB + 4 * i
            a(f"s_mov_b64 exec, s[{m}:{m+1}]")
            a(f"v_lshl_add_u32 v{r+3}, v{RK+i}, 4, v{r+3}")
            a(f"ds_write_b96 v{r+3}, v[{r}:{r+2}]")
    a(f"""
    s_mov_b64 exec, -1
    v_and_b32 v1, 31, v15
    v_lshrrev_b32 v2, 5, v15
    v_lshl_add_u32 v14, v2, 4, s{S_REGION}
    v_lshrrev_b32 v2, 3, v1
    v_lshlrev_b32 v2, 1, v2
    v_add_u32 v3, 1, v2
    v_lshl_or_b32 v2, v3, 8, v2
    v_and_b32 v3, 1, v1
    v_lshlrev_b32 v3, 4, v3
    v_mov_b32 v4, 0xffff
    v_lshlrev_b32 v4, v3, v4
    v_lshlrev_b32 v2, v3, v2
    v_mov_b32 v5, 0x0c0c0c0c
    v_bfi_b32 v2, v4, v2, v5
    v_bfe_u32 v3, v1, 1, 2
""")
    for j in range(4):
        a(f"v_cmp_eq_u32 vcc, {j}, v3")
        a("s_nop 1")
        a(f"v_cndmask_b32 v{8+j}, v5, v2, vcc")
    a("v_lshlrev_b32 v1, 4, v1")
    a("s_waitcnt lgkmcnt(0)")
    a("s_barrier")
    for r in range(D):
        a(f"ds_read_b32 v{RING+4*r}, v14 offset:{32*r+8}")
    a(f"ds_read_b64 v[2:3], v14")
    a(f"ds_read_b32 v12, v14 offset:{32*D+8}")
    for r in range(D):
        a(f"s_waitcnt lgkmcnt({D+1-r})")
        a(f"v_add_u32 v{RING+4*r}, v{RING+4*r}, v1")
        a(f"buffer_load_dwordx4 v[{RING+4*r}:{RING+4*r+3}], v{RING+4*r}, s[{S_X}:{S_X+3}], 0 offen")
    for i in range(NSLOT * 16):
        a(f"v_mov_b32 v{ACC+i}, 0")
    a(f"s_mov_b32 s{S_PH}, 0")
    a("s_branch M_PE0")
    for j in range(NSLOT):
        ac = ACC + 16 * j
        for r in range(D):
            nxt = f"M_B{j+1}_{r}" if j + 1 < NSLOT else f"M_PE{r}"
            rg = RING + 4 * r
            a(f"""
M_B{j}_{r}:
    s_sub_u32 s{S_CNT+j}, s{S_CNT+j}, 1
    s_cbranch_scc1 {nxt}
    s_waitcnt vmcnt({D-1}) lgkmcnt(0)
    v_perm_b32 v4, v3, v2, v8
    v_perm_b32 v5, v3, v2, v9
    v_perm_b32 v6, v3, v2, v10
    v_perm_b32 v7, v3, v2, v11
    v_add_u32 v12, v12, v1
    ds_read_b64 v[2:3], v14 offset:{32*(r+1)}
    v_mfma_f32_32x32x16_bf16 v[{ac}:{ac+15}], v[4:7], v[{rg}:{rg+3}], v[{ac}:{ac+15}]
    buffer_load_dwordx4 v[{rg}:{rg+3}], v12, s[{S_X}:{S_X+3}], 0 offen
    ds_read_b32 v12, v14 offset:{32*(r+D+1)+8}
""")
            if r == D - 1:
                a(f"v_add_u32 v14, {32*D}, v14")
                a(f"s_branch M_B{j}_0")
    for r in range(D):
        a(f"""
M_PE{r}:
    s_cmp_ge_u32 s{S_PH}, {8*P}
    s_cbranch_scc1 M_epi
""")
        for j in range(NSLOT):
            if j % 2 == 0:
                a(f"s_add_u32 s24, s{S_PH}, {j//2}")
            a(f"v_readlane_b32 s{S_CNT+j}, v{0 if j % 2 == 0 else 13}, s24")
        a(f"s_add_u32 s{S_PH}, s{S_PH}, 8")
        a(f"s_branch M_B0_{r}")
    a(f"""
M_epi:
    s_waitcnt vmcnt(0) lgkmcnt(0)
    v_lshlrev_b32 v2, 4, v15
    v_add_u32 v3, {SCL_OFF}, v2
    global_load_dwordx4 v[16:19], v3, s[16:17]
    global_load_dwordx4 v[20:23], v3, s[16:17] offset:1024
    global_load_dwordx4 v[24:27], v3, s[16:17] offset:2048
    global_load_dwordx4 v[28:31], v3, s[16:17] offset:3072
    v_lshrrev_b32 v0, 5, v15
    v_lshl_add_u32 v0, v0, 3, v1
    v_add_u32 v0, s{S_REGION}, v0
    v_and_b32 v4, 15, v15
    v_lshrrev_b32 v5, 4, v15
    v_mul_u32_u24 v1, {STG}, v4
    v_lshl_add_u32 v1, v5, 4, v1
    v_add_u32 v1, s{S_REGION}, v1
    v_add_u32 v2, {L_W}, v2
    ; node = 98 b + w + 8 j
    v_lshlrev_b32 v4, 3, v4
    v_add_u32 v4, s{S_WAVE}, v4
    v_cmp_gt_u32 vcc, {NPB}, v4
    s_mul_i32 s24, s2, {NPB}
    v_add_u32 v4, s24, v4
    v_lshlrev_b32 v3, 9, v4
    v_lshl_add_u32 v3, v5, 4, v3
    v_mov_b32 v4, {OOB:#x}
    v_cndmask_b32 v3, v4, v3, vcc
    s_waitcnt vmcnt(0)
""")
    for j in range(NSLOT):
        ac = ACC + 16 * j
        for kc in range(4):
            q = ac + 4 * kc
            s = 16 + 4 * kc
            a(f"v_pk_mul_f32 v[{q}:{q+1}], v[{q}:{q+1}], v[{s}:{s+1}]")
            a(f"v_pk_mul_f32 v[{q+2}:{q+3}], v[{q+2}:{q+3}], v[{s+2}:{s+3}]")
        for kc in range(4):
            q = ac + 4 * kc
            a(f"v_cvt_pk_bf16_f32 v{ac+2*kc}, v{q}, v{q+1}")
            a(f"v_cvt_pk_bf16_f32 v{ac+2*kc+1}, v{q+2}, v{q+3}")
    free = []
    for j in range(NSLOT):
        free += [ACC + 16 * j + 8, ACC + 16 * j + 12]
    OUT = {(o, t): free[o * 4 + t] for o in range(4) for t in range(4)}
    BF = {(c, ks): free[16 + c * 2 + ks] for c in range(4) for ks in range(2)}
    AF = [4, 8, 16, 20, 24, 28, 32, 36, 40, 44, free[24], free[25]]
    a(f"""
    s_lshl_b32 s24, s2, 3
    s_add_u32 s24, s24, s{S_WAVE}
    s_lshl_b32 s24, s24, 14
    v_lshl_add_u32 v12, v15, 4, s24
    v_add_u32 v13, 0x1000, v12
    v_add_u32 v14, 0x2000, v12
    s_cmp_eq_u32 s{S_C0}, 0
    s_cbranch_scc0 M_ldpart
""")
    for o in range(4):
        for t in range(4):
            for i in range(4):
                a(f"v_mov_b32 v{OUT[o,t]+i}, 0")
    a("s_branch M_gemm")
    a("M_ldpart:")
    a("v_add_u32 v4, 0x3000, v12")
    for o in range(4):
        for t in range(4):
            q = OUT[o, t]
            base = [12, 13, 14, 4][o]
            a(f"buffer_load_dwordx4 v[{q}:{q+3}], v{base}, s[{S_PART}:{S_PART+3}], 0 offen offset:{1024*t}")
    a("s_waitcnt vmcnt(0)")
    a("M_gemm:")
    for kc in range(4):
        for j in range(NSLOT):
            ac = ACC + 16 * j
            a(f"ds_write_b64 v0, v[{ac+2*kc}:{ac+2*kc+1}] offset:{STG*j}")
        for c in range(4):
            for ks in range(2):
                q = BF[c, ks]
                a(f"ds_read_b128 v[{q}:{q+3}], v1 offset:{c*128+ks*64}")
        use = {}
        for c in range(4):
            if kc == 0:
                m, o = (0, 0) if c == 0 else (3, c)
            else:
                jj = kc - 1
                if c == 0:
                    m, o = 2, kc
                elif c - 1 == jj:
                    m, o = 1, 0
                else:
                    m, o = 4, 1 + (3 - jj - (c - 1))
            use.setdefault(m, []).append((c, o))
        for m, lst in use.items():
            fr = [(ks, t) for ks in range(2) for t in range(4)]
            for n, (ks, t) in enumerate(fr):
                q = AF[n]
                a(f"ds_read_b128 v[{q}:{q+3}], v2 offset:{((m*2+ks)*4+t)*1024}")
            for n, (ks, t) in enumerate(fr):
                q = AF[n]
                a(f"s_waitcnt lgkmcnt({7-n})")
                for (c, o) in lst:
                    b = BF[c, ks]
                    d = OUT[o, t]
                    a(f"v_mfma_f32_16x16x32_bf16 v[{d}:{d+3}], v[{q}:{q+3}], v[{b}:{b+3}], v[{d}:{d+3}]")
    a(f"""
    s_nop 7
    s_cmp_eq_u32 s{S_MORE}, 0
    s_cbranch_scc1 M_final
    v_add_u32 v4, 0x3000, v12
""")
    for o in range(4):
        for t in range(4):
            q = OUT[o, t]
            base = [12, 13, 14, 4][o]
            a(f"buffer_store_dwordx4 v[{q}:{q+3}], v{base}, s[{S_PART}:{S_PART+3}], 0 offen offset:{1024*t}")
    a(f"""
    s_add_u32 s{S_C0}, s{S_C0}, s{S_TAKE}
    s_waitcnt vmcnt(0) lgkmcnt(0)
    s_barrier
    s_branch M_round
M_final:
    s_mov_b32 s24, 0xbfb8aa3b
""")
    for t in range(4):
        for i in range(4):
            a(f"v_mul_f32 v{16+4*t+i}, s24, v{OUT[0,t]+i}")
    for n in range(16):
        a(f"v_exp_f32 v{16+n}, v{16+n}")
    for n in range(16):
        a(f"v_add_f32 v{16+n}, 1.0, v{16+n}")
    for n in range(16):
        a(f"v_rcp_f32 v{16+n}, v{16+n}")
    PK = [32, 36, 40, 44, 4, 8, free[24], free[25]]
    n = 0
    for o in range(4):
        if o > 0:
            for t in range(4):
                d = OUT[o, t]
                a(f"v_pk_mul_f32 v[{d}:{d+1}], v[{d}:{d+1}], v[{16+4*t}:{17+4*t}]")
                a(f"v_pk_mul_f32 v[{d+2}:{d+3}], v[{d+2}:{d+3}], v[{18+4*t}:{19+4*t}]")
        for k in range(2):
            p = PK[n]
            n += 1
            d0, d1 = OUT[o, 2 * k], OUT[o, 2 * k + 1]
            a(f"v_cvt_pk_bf16_f32 v{p}, v{d0}, v{d0+1}")
            a(f"v_cvt_pk_bf16_f32 v{p+1}, v{d0+2}, v{d0+3}")
            a(f"v_cvt_pk_bf16_f32 v{p+2}, v{d1}, v{d1+1}")
            a(f"v_cvt_pk_bf16_f32 v{p+3}, v{d1+2}, v{d1+3}")
            a(f"buffer_store_dwordx4 v[{p}:{p+3}], v3, s[{S_OUT}:{S_OUT+3}], 0 offen offset:{o*128+k*64}")
    a("""
M_done:
    s_endpgm
""")


def descriptor(name, vgpr, sgpr):
    acc = (vgpr + 3) // 4 * 4
    return f"""
.p2align 6
.amdhsa_kernel {name}
  .amdhsa_next_free_vgpr {vgpr}
  .amdhsa_next_free_sgpr {sgpr}
  .amdhsa_accum_offset {acc}
  .amdhsa_group_segment_fixed_size 0
  .amdhsa_kernarg_size 96
  .amdhsa_user_sgpr_count 2
  .amdhsa_user_sgpr_kernarg_segment_ptr 1
  .amdhsa_system_sgpr_workgroup_id_x 1
  .amdhsa_float_denorm_mode_32 3
.end_amdhsa_kernel
"""


def main():
    ref = open(f"cdna_kernels/{NAME}.s.ref").read().split("\n")
    head = [l for l in ref if l.startswith(";") and "@launch" not in l and "Override launch" not in l
            and "grid=ceil" not in l]
    a = Asm()
    gen_part(a)
    gen_main(a)
    out = "\n".join(head) + "\n"
    out += f"; @launch kernel=part_kernel grid=({NC+6},1,1) block=(832,1,1) lds=1024\n"
    out += f"; @launch kernel=main_kernel grid=({NB},1,1) block=(512,1,1) lds={L_TOTAL}\n"
    out += '.amdgcn_target "amdgcn-amd-amdhsa--gfx950"\n.text\n'
    out += a.text()
    out += '.section .rodata,"a"\n'
    out += descriptor("part_kernel", 84, 32)
    out += descriptor("main_kernel", 256, 100)
    path = sys.argv[1] if len(sys.argv) > 1 else f"cdna_kernels/{NAME}.s"
    open(path, "w").write(out)
    print("wrote", path, len(out), "bytes; LDS", L_TOTAL, "CAPP", CAPP)


if __name__ == "__main__":
    main()
```

```python
import sys

NAME = "standalone__tensor_product_equiv_equiformer__graph"
N = 25000
E = 800000
NPB = 98
NB = 256
NC = 250
CH = 3200
P = 8
PH = (N + P - 1) // P
NSLOT = 13
D = 6
LS = 3
RECB = 12

OPT = {"st": 0, "warm": 1, "stage": 1, "ld": 1}

REC_OFF = 0
REC_BYTES = NC * CH * RECB
DESC_OFF = 0x1000000
WIMG_OFF = 0x1100000
WIMG_BYTES = 5 * 8192
PART_OFF = 0x2000000
PART_BYTES = NB * NPB * 1024

L_FLAG = 0
L_DUMMY = 256
L_HIST = 512
L_TAB = L_HIST + 4096
L_RANK = L_TAB + 8192
L_MAP = L_RANK + 512
L_W = L_MAP + 512
L_REG = L_W + WIMG_BYTES
REGB = 10240
L_TOTAL = L_REG + 8 * REGB
CAPP = REGB // 32 - (D + LS + 2)
STG = 528
OOB = 0x7FFFF000
PADIDX = 0x7FFF

STAMP = False
STAMP_OFF = 0x8000000


def magic(div, maxv):
    for k in range(31, 15, -1):
        m = -(-(1 << k) // div)
        if m < (1 << 24) and m * maxv < (1 << 32):
            e = m * div - (1 << k)
            if e * maxv < (1 << k):
                assert all((v * m) >> k == v // div for v in range(maxv + 1))
                return m, k
    raise ValueError


class Asm:
    def __init__(self):
        self.lines = []

    def __call__(self, s):
        for ln in s.strip("\n").split("\n"):
            ln = ln.strip()
            if ln:
                self.lines.append(("" if ln.endswith(":") else "    ") + ln)

    def text(self):
        return "\n".join(self.lines) + "\n"


def srd(a, d, base, nrec, add=0, stride=0):
    if add:
        a(f"s_add_u32 s{d}, s{base}, {add}")
        a(f"s_addc_u32 s{d+1}, s{base+1}, 0")
        a(f"s_and_b32 s{d+1}, s{d+1}, 0xffff")
    else:
        a(f"s_mov_b32 s{d}, s{base}")
        a(f"s_and_b32 s{d+1}, s{base+1}, 0xffff")
    if stride:
        a(f"s_or_b32 s{d+1}, s{d+1}, {stride << 16:#x}")
    a(f"s_mov_b32 s{d+2}, {nrec}")
    a(f"s_mov_b32 s{d+3}, 0x20000")


def stamp(a, k):
    if STAMP:
        a("s_memrealtime s[42:43]")
        a("s_waitcnt lgkmcnt(0)")
        a(f"s_mov_b32 s{96+k}, s42")


def cstamp(a, k):
    if STAMP and OPT.get("clk"):
        a("s_memtime s[42:43]")
        a("s_waitcnt lgkmcnt(0)")
        a(f"s_mov_b32 s{96+k}, s42")


def stamp_flush(a, wsreg, kern, vt, swave):
    if STAMP:
        a("s_mov_b64 exec, 1")
        a(f"s_lshl_b32 s42, s2, 4")
        a(f"s_add_u32 s42, s42, s{swave}")
        a(f"s_lshl_b32 s42, s42, 5")
        a(f"s_add_u32 s42, s42, {STAMP_OFF + kern * 0x100000}")
        a(f"v_mov_b32 v{vt}, s42")
        for k in range(6):
            a(f"v_mov_b32 v{vt+1}, s{96+k}")
            a(f"global_store_dword v{vt}, v{vt+1}, s[{wsreg}:{wsreg+1}] offset:{4*k}")
            a("s_nop 1")


def wave_scan(a, v):
    for sh in (1, 2, 4, 8):
        a("s_nop 1")
        a(f"v_add_u32_dpp v{v}, v{v}, v{v} row_shr:{sh} row_mask:0xf bank_mask:0xf bound_ctrl:0")
    a("s_nop 1")
    a(f"v_add_u32_dpp v{v}, v{v}, v{v} row_bcast:15 row_mask:0xa bank_mask:0xf")
    a("s_nop 1")
    a(f"v_add_u32_dpp v{v}, v{v}, v{v} row_bcast:31 row_mask:0xc bank_mask:0xf")
    a("s_nop 1")


class Sched:
    def __init__(self, a):
        self.a = a
        self.lds = []
        self.slot = 0
        self.vw = {}
        self.tw = {}
        self.mw = {}
        self.mc = {}
        self.sw = {}

    def _emit(self, t):
        self.a(t)
        self.slot += 1

    def _nop(self, need):
        while need > 0:
            k = min(need, 8)
            self.a(f"s_nop {k-1}")
            self.slot += k
            need -= k

    def op(self, kind, text, reads=(), writes=(), srcc=()):
        reads, writes, srcc = set(reads), set(writes), set(srcc)
        touched = reads | writes | srcc
        last = -1
        for i, d in enumerate(self.lds):
            if d & touched:
                last = i
        if last >= 0:
            n = len(self.lds) - 1 - last
            self._emit(f"s_waitcnt lgkmcnt({min(n, 15)})")
            self.lds = self.lds[len(self.lds) - min(n, 15):] if n else []
        need = 0
        if kind == "mfma":
            for r in reads | srcc:
                if r in self.vw:
                    need = max(need, 2 - (self.slot - self.vw[r] - 1))
            for r in reads:
                if r in self.mw:
                    need = max(need, 8 - (self.slot - self.mw[r] - 1))
        else:
            for r in reads | writes:
                if r in self.mw:
                    need = max(need, 8 - (self.slot - self.mw[r] - 1))
            for r in writes:
                if r in self.mc:
                    need = max(need, 3 - (self.slot - self.mc[r] - 1))
                if r in self.sw:
                    need = max(need, 2 - (self.slot - self.sw[r] - 1))
            if kind in ("valu", "store", "dsw"):
                for r in reads:
                    if r in self.tw:
                        need = max(need, 1 - (self.slot - self.tw[r] - 1))
        self._nop(need)
        me = self.slot
        self._emit(text)
        if kind in ("valu", "trans"):
            for r in writes:
                self.vw[r] = me
                if kind == "trans":
                    self.tw[r] = me
        elif kind == "mfma":
            for r in writes:
                self.mw[r] = me
            for r in srcc:
                self.mc[r] = me
        elif kind == "dsr":
            self.lds.append(writes)
        elif kind == "dsw":
            self.lds.append(set())
        elif kind == "store":
            for r in reads:
                self.sw[r] = me


def R(b, n=4):
    return list(range(b, b + n))


def stflags():
    return ["", " sc1", " sc0 sc1", " nt"][OPT["st"]]


K1_STG = 1024
K1_LDS = K1_STG + 832 * 48


def gen_part(a):
    mB, kB = magic(NPB, 32767)
    mP, kP = magic(PH, 32767)
    sf = stflags()
    lf = ["", " nt", " sc1", " sc0 sc1 nt"][OPT.get("ld", 0)]
    a(f"""
.p2align 8
.globl part_kernel
.type part_kernel,@function
part_kernel:
    s_cmp_ge_u32 s2, {NC + 6}
    s_cbranch_scc1 P_done
    s_load_dwordx4 s[4:7], s[0:1], 8
    s_load_dwordx4 s[8:11], s[0:1], 24
    s_load_dwordx4 s[12:15], s[0:1], 40
    s_load_dwordx2 s[16:17], s[0:1], 56
    s_load_dwordx2 s[18:19], s[0:1], 88
    s_cmp_ge_u32 s2, {NC}
    s_cbranch_scc1 P_prep
""")
    if STAMP:
        a("v_lshrrev_b32 v1, 6, v0")
        a("s_nop 0")
        a("v_readfirstlane_b32 s41, v1")
    stamp(a, 0)
    a(f"""
    v_lshlrev_b32 v1, 2, v0
    v_mov_b32 v2, 0
    v_cmp_gt_u32 vcc, 256, v0
    s_and_saveexec_b64 s[20:21], vcc
    ds_write_b32 v1, v2
    s_mov_b64 exec, s[20:21]
    s_mul_i32 s3, s2, {CH}
    v_lshl_add_u32 v3, v0, 2, s3
    v_lshlrev_b32 v4, 2, v3
    v_lshlrev_b32 v5, 1, v3
    v_mul_u32_u24 v6, 6, v3
    v_cmp_gt_u32 vcc, {CH // 4}, v0
    s_and_saveexec_b64 s[20:21], vcc
    s_waitcnt lgkmcnt(0)
    global_load_dwordx4 v[8:11], v4, s[10:11]{lf}
    s_barrier
    global_load_dwordx4 v[12:15], v4, s[8:9]{lf}
    global_load_dwordx2 v[16:17], v5, s[6:7]{lf}
    global_load_dwordx4 v[20:23], v6, s[4:5]{lf}
    global_load_dwordx2 v[24:25], v6, s[4:5] offset:16{lf}
    v_mov_b32 v2, 1
    s_waitcnt vmcnt(4)
""")
    stamp(a, 1)
    for i in range(4):
        a(f"""
    v_mul_u32_u24 v{28+i}, {mB}, v{8+i}
    v_lshrrev_b32 v{28+i}, {kB}, v{28+i}
    v_min_u32 v{28+i}, 255, v{28+i}
    v_lshlrev_b32 v{36+i}, 2, v{28+i}
    ds_add_rtn_u32 v{32+i}, v{36+i}, v2
""")
    a(f"""
    s_mov_b64 exec, -1
    s_waitcnt lgkmcnt(0)
    s_barrier
    v_cmp_gt_u32 vcc, 64, v0
    s_cbranch_vccz P_skipscan
    v_lshlrev_b32 v1, 4, v0
    ds_read_b128 v[72:75], v1
    s_waitcnt lgkmcnt(0)
    v_add_u32 v76, v72, v73
    v_add_u32 v77, v76, v74
    v_add_u32 v78, v77, v75
    v_mov_b32 v79, v78
""")
    wave_scan(a, 79)
    a(f"""
    v_sub_u32 v80, v79, v78
    v_add_u32 v81, v80, v72
    v_add_u32 v82, v80, v76
    v_add_u32 v83, v80, v77
    ds_write_b128 v1, v[80:83]
    v_lshl_or_b32 v72, v72, 16, v80
    v_lshl_or_b32 v73, v73, 16, v81
    v_lshl_or_b32 v74, v74, 16, v82
    v_lshl_or_b32 v75, v75, 16, v83
    s_lshl_b32 s3, s2, 2
    s_add_u32 s3, s3, {DESC_OFF}
    v_lshlrev_b32 v1, 12, v0
    v_add_u32 v1, s3, v1
    global_store_dword v1, v72, s[18:19]
    global_store_dword v1, v73, s[18:19] offset:1024
    global_store_dword v1, v74, s[18:19] offset:2048
    global_store_dword v1, v75, s[18:19] offset:3072
    s_waitcnt lgkmcnt(0)
P_skipscan:
    v_cmp_gt_u32 vcc, {CH // 4}, v0
    s_and_saveexec_b64 s[20:21], vcc
    s_movk_i32 s22, {NPB}
    s_mov_b32 s23, 0xffff0000
""")
    for i in range(4):
        a(f"""
    v_mul_u32_u24 v1, s22, v{28+i}
    v_sub_u32 v1, v{8+i}, v1
    v_and_b32 v1, 127, v1
    v_lshlrev_b32 v{8+i}, 21, v1
""")
    a("s_barrier")
    stamp(a, 2)
    for i in range(4):
        a(f"ds_read_b32 v{28+i}, v{36+i}")
    a("s_waitcnt vmcnt(0)")
    stamp(a, 3)
    for i in range(4):
        r = 40 + 4 * i
        a(f"""
    v_mul_u32_u24 v4, {mP}, v{12+i}
    v_lshrrev_b32 v4, {kP}, v4
    v_min_u32 v4, {P-1}, v4
""")
        a(f"""
    v_lshl_or_b32 v4, v4, 18, v{8+i}
    v_and_b32 v3, 0x7fff, v{12+i}
    v_or_b32 v{r+2}, v3, v4
""")
    for i in range(4):
        src = 16 + i // 2
        if i % 2 == 0:
            a(f"v_lshlrev_b32 v{56+i}, 16, v{src}")
        else:
            a(f"v_and_b32 v{56+i}, s23, v{src}")
    for k in range(12):
        src = 20 + k // 2
        if k % 2 == 0:
            a(f"v_lshlrev_b32 v{60+k}, 16, v{src}")
        else:
            a(f"v_and_b32 v{60+k}, s23, v{src}")
    for i in range(4):
        r = 40 + 4 * i
        for j in range(3):
            a(f"v_mul_f32 v{60+3*i+j}, v{56+i}, v{60+3*i+j}")
        a(f"v_cvt_pk_bf16_f32 v{r}, v{56+i}, v{60+3*i}")
        a(f"v_cvt_pk_bf16_f32 v{r+1}, v{61+3*i}, v{62+3*i}")
    a("s_waitcnt lgkmcnt(0)")
    a(f"s_mul_i32 s3, s2, {CH * RECB}")
    if OPT["stage"]:
        for i in range(4):
            r = 40 + 4 * i
            a(f"""
    v_add_u32 v{28+i}, v{28+i}, v{32+i}
    v_mul_u32_u24 v{28+i}, {RECB}, v{28+i}
    v_add_u32 v{28+i}, {K1_STG}, v{28+i}
    ds_write2_b32 v{28+i}, v{r}, v{r+1} offset0:0 offset1:1
    ds_write_b32 v{28+i}, v{r+2} offset:8
""")
        nq = CH * RECB // 16
        a(f"""
    s_mov_b64 exec, -1
    v_lshlrev_b32 v1, 4, v0
    v_add_u32 v2, s3, v1
    s_waitcnt lgkmcnt(0)
    s_barrier
""")
        for i in range(3):
            a(f"ds_read_b128 v[{8+4*i}:{11+4*i}], v1 offset:{K1_STG + 832*16*i}")
        a(f"v_add_u32 v3, {832*16}, v2")
        a(f"v_add_u32 v4, {2*832*16}, v2")
        a(f"v_cmp_gt_u32 vcc, {nq - 2*832}, v0")
        a("s_waitcnt lgkmcnt(2)")
        a(f"global_store_dwordx4 v2, v[8:11], s[18:19]{sf}")
        a("s_waitcnt lgkmcnt(1)")
        a(f"global_store_dwordx4 v3, v[12:15], s[18:19]{sf}")
        a("s_and_saveexec_b64 s[20:21], vcc")
        a("s_cbranch_execz P_fin")
        a("s_waitcnt lgkmcnt(0)")
        a(f"global_store_dwordx4 v4, v[16:19], s[18:19]{sf}")
        a("P_fin:")
    else:
        a(f"s_movk_i32 s22, {RECB}")
        for i in range(4):
            r = 40 + 4 * i
            a(f"""
    v_add_u32 v{28+i}, v{28+i}, v{32+i}
    v_mul_u32_u24 v{28+i}, {RECB}, v{28+i}
    v_add_u32 v{28+i}, s3, v{28+i}
    global_store_dwordx3 v{28+i}, v[{r}:{r+2}], s[18:19]{sf}
""")
    stamp(a, 4)
    if STAMP:
        a("s_waitcnt vmcnt(0)")
    stamp(a, 5)
    stamp_flush(a, 18, 0, 1, 41)
    a("s_branch P_done")
    a(f"""
P_prep:
    s_waitcnt lgkmcnt(0)
    s_lshl_b32 s3, s2, 2
    s_add_u32 s3, s3, {DESC_OFF}
    v_lshlrev_b32 v1, 10, v0
    v_add_u32 v1, s3, v1
    v_mov_b32 v2, 0
    v_cmp_gt_u32 vcc, 256, v0
    s_and_saveexec_b64 s[20:21], vcc
    s_cbranch_execz P_prep1
    global_store_dword v1, v2, s[18:19]
P_prep1:
    s_mov_b64 exec, s[20:21]
    s_sub_u32 s3, s2, {NC}
    s_cmp_eq_u32 s3, 5
    s_cbranch_scc1 P_done
    v_cmp_gt_u32 vcc, 512, v0
    s_and_saveexec_b64 s[20:21], vcc
    s_cbranch_execz P_done
    s_cmp_lt_u32 s3, 2
    s_cselect_b32 s24, s14, s16
    s_cselect_b32 s25, s15, s17
    s_sub_u32 s22, s3, 2
    s_cselect_b32 s22, s3, s22
    s_lshl_b32 s22, s22, 13
    v_lshrrev_b32 v1, 8, v0
    v_bfe_u32 v2, v0, 4, 2
    v_lshl_add_u32 v1, v1, 2, v2
    s_lshl_b32 s23, s3, 7
    v_lshl_add_u32 v4, v1, 4, s23
    global_load_dwordx4 v[16:19], v4, s[12:13]
    v_lshlrev_b32 v1, 10, v1
    v_bfe_u32 v2, v0, 7, 1
    v_bfe_u32 v3, v0, 2, 2
    v_lshl_add_u32 v2, v2, 2, v3
    v_bfe_u32 v3, v0, 6, 1
    v_lshl_add_u32 v2, v2, 1, v3
    v_and_b32 v3, 3, v0
    v_lshl_add_u32 v2, v2, 2, v3
    v_lshl_add_u32 v1, v2, 1, v1
    v_add_u32 v1, s22, v1
""")
    for e in range(8):
        a(f"global_load_ushort v{8+e}, v1, s[24:25] offset:{128*e}")
    a(f"""
    s_lshl_b32 s3, s3, 13
    s_add_u32 s3, s3, {WIMG_OFF}
    v_lshl_add_u32 v1, v0, 4, s3
    s_mov_b32 s23, 0xffff0000
    s_waitcnt vmcnt(0)
""")
    for e in range(8):
        a(f"v_lshlrev_b32 v{8+e}, 16, v{8+e}")
        if e % 2 == 0:
            a(f"v_lshlrev_b32 v2, 16, v{16+e//2}")
        else:
            a(f"v_and_b32 v2, s23, v{16+e//2}")
        a(f"v_mul_f32 v{8+e}, v{8+e}, v2")
    for e in range(4):
        a(f"v_cvt_pk_bf16_f32 v{4+e}, v{8+2*e}, v{9+2*e}")
    a(f"""
    global_store_dwordx4 v1, v[4:7], s[18:19]
P_done:
    s_endpgm
""")


ACC = 48
RING = 24
STAGE = 12
V_PTR = 2
V_LANE = 3
S_X = 4
S_REC = 8
S_OUT = 12
S_WS = 16
S_WAVE = 18
S_C0 = 19
S_TAKE = 20
S_MORE = 21
S_REGION = 22
S_PH = 23
S_T = 24
S_CNT = 28
S_LEV = 41
S_MASK = 44
S_PART = 92
NSUB = 3


def gen_main(a):
    L = V_LANE
    NU = 6
    RB = 160
    RK = 132
    DS = 128
    BAL = OPT.get("bal", 1)
    a(f"""
.p2align 8
.globl main_kernel
.type main_kernel,@function
main_kernel:
    s_cmp_ge_u32 s2, {NB}
    s_cbranch_scc1 M_done
    s_load_dwordx2 s[16:17], s[0:1], 88
    s_load_dwordx2 s[24:25], s[0:1], 0
    s_load_dwordx2 s[26:27], s[0:1], 72
    v_lshrrev_b32 v1, 6, v0
    v_and_b32 v{L}, 63, v0
    v_readfirstlane_b32 s{S_WAVE}, v1
    s_mov_b32 s{S_C0}, 0
    s_movk_i32 s{S_TAKE}, 48
    s_mul_i32 s{S_REGION}, s{S_WAVE}, {REGB}
    s_add_u32 s{S_REGION}, s{S_REGION}, {L_REG}
""")
    if OPT.get("bperm", 1):
        a("""
    s_and_b32 s3, s2, 7
    s_lshl_b32 s3, s3, 5
    s_lshr_b32 s2, s2, 3
    s_or_b32 s2, s2, s3
""")
    a("s_waitcnt lgkmcnt(0)")
    stamp(a, 0)
    srd(a, S_X, 24, N, stride=512)
    srd(a, S_OUT, 26, N * 512)
    srd(a, S_REC, 16, WIMG_OFF + WIMG_BYTES)
    srd(a, S_PART, 16, PART_BYTES, PART_OFF)

    def any_level(u):
        m = S_MASK + 2 * (u * 4)
        a(f"s_or_b64 s[26:27], s[{m}:{m+1}], s[{m+2}:{m+3}]")
        a(f"s_or_b64 s[26:27], s[26:27], s[{m+4}:{m+5}]")
        a(f"s_or_b64 s[26:27], s[26:27], s[{m+6}:{m+7}]")

    def masked(fn, tag, pre=None):
        for u in range(2, NU):
            a(f"s_cmp_eq_u32 s{S_LEV}, {u}")
            a(f"s_cbranch_scc1 M_{tag}_{u-1}")
        for u in range(NU - 1, -1, -1):
            a(f"M_{tag}_{u}:")
            for k in range(4):
                i = u * 4 + k
                m = S_MASK + 2 * i
                if pre:
                    pre(i, u, k)
                a(f"s_mov_b64 exec, s[{m}:{m+1}]")
                fn(i, u, k)
        a("s_mov_b64 exec, -1")

    a(f"""
M_round:
    v_lshrrev_b32 v1, 3, v{L}
    s_lshl_b32 s24, s{S_WAVE}, 3
    v_add_u32 v1, s24, v1
    s_lshl_b32 s24, s2, 10
    s_add_u32 s24, s24, {DESC_OFF}
    v_lshl_add_u32 v4, v1, 4, s24
    global_load_dwordx4 v[{DS}:{DS+3}], v4, s[16:17]
    s_lshl_b32 s24, s{S_WAVE}, 9
    v_lshl_add_u32 v0, v{L}, 3, s24
    v_mov_b32 v4, 0
    v_mov_b32 v5, 0
    v_mov_b32 v6, {PADIDX:#x}
    v_mov_b32 v7, 0
    ds_write_b64 v0, v[4:5] offset:{L_HIST}
    ds_write_b64 v4, v[4:5] offset:{L_FLAG}
    v_lshlrev_b32 v2, 3, v{L}
    ds_write_b64 v2, v[4:5] offset:{L_RANK}
    v_lshl_add_u32 v2, v{L}, 4, s{S_REGION}
""")
    for i in range(REGB // 1024):
        a(f"ds_write_b128 v2, v[4:7] offset:{1024*i}")
    a(f"""
    s_mov_b32 s24, {4*CH*RECB}
    v_mul_lo_u32 v1, v1, s24
    v_and_b32 v0, 7, v{L}
    v_add_u32 v0, s{S_C0}, v0
    s_movk_i32 s24, {RECB}
    v_mad_u32_u24 v1, v0, s24, v1
    s_add_u32 s25, s{S_C0}, s{S_TAKE}
    v_mov_b32 v24, 0
    v_mov_b32 v25, {OOB:#x}
    s_waitcnt vmcnt(0)
""")
    stamp(a, 1)
    for k in range(4):
        d = DS + k
        a(f"""
    v_lshrrev_b32 v26, 16, v{d}
    v_max_u32 v24, v24, v26
    v_min_u32 v26, s25, v26
    v_sub_u32 v26, v26, v0
    v_and_b32 v{d}, 0xffff, v{d}
    v_mad_u32_u24 v{d}, v{d}, s24, v1
""")
        for u in range(NU):
            m = S_MASK + 2 * (u * 4 + k)
            a(f"v_cmp_lt_i32 s[{m}:{m+1}], {8*u}, v26")
        if k < 3:
            a(f"v_add_u32 v1, {CH*RECB}, v1")
    a(f"s_mov_b32 s{S_LEV}, 2")
    for u in range(2, NU):
        any_level(u)
        a(f"s_cselect_b32 s{S_LEV}, {u+1}, s{S_LEV}")
    for u in range(2, NU):
        a(f"s_cmp_eq_u32 s{S_LEV}, {u}")
        a(f"s_cbranch_scc1 M_ld_{u-1}")
    for u in range(NU - 1, -1, -1):
        a(f"M_ld_{u}:")
        for k in range(4):
            i = u * 4 + k
            m = S_MASK + 2 * i
            r = RB + 4 * i
            a(f"v_cndmask_b32 v{r+3}, v25, v{DS+k}, s[{m}:{m+1}]")
            a(f"buffer_load_dwordx3 v[{r}:{r+2}], v{r+3}, s[{S_REC}:{S_REC+3}], 0 offen offset:{8*RECB*u}")
    a(f"""
    s_mul_i32 s24, s{S_WAVE}, 5120
    s_add_u32 s26, s24, {L_W}
    s_mov_b32 m0, s26
    s_add_u32 s24, s24, {WIMG_OFF}
    v_lshl_add_u32 v26, v{L}, 4, s24
""")
    for i in range(4):
        a(f"buffer_load_dwordx4 v26, s[{S_REC}:{S_REC+3}], 0 offen offset:{1024*i} lds")
    a(f"""
    s_add_u32 s26, s26, 4096
    s_mov_b32 m0, s26
    v_add_u32 v26, 4096, v26
    buffer_load_dwordx4 v26, s[{S_REC}:{S_REC+3}], 0 offen lds
    s_waitcnt lgkmcnt(0)
    s_barrier
    v_cmp_lt_u32 vcc, s25, v24
    s_and_saveexec_b64 s[26:27], vcc
    v_mov_b32 v1, 1
    ds_write_b32 v4, v1 offset:{L_FLAG+4}
    s_mov_b64 exec, -1
    v_mov_b32 v6, 0
    v_and_b32 v12, 31, v{L}
    v_lshrrev_b32 v24, 5, v{L}
    v_lshl_add_u32 v{V_PTR}, v24, 4, s{S_REGION}
""")
    for j in range(5):
        a(f"v_mfma_f32_32x32x16_bf16 v[{ACC+16*j}:{ACC+16*j+15}], v[4:7], v[4:7], 0")
    a(f"""
    v_lshrrev_b32 v24, 3, v12
    v_lshlrev_b32 v24, 1, v24
    v_add_u32 v25, 1, v24
    v_lshl_or_b32 v24, v25, 8, v24
    v_and_b32 v25, 1, v12
    v_lshlrev_b32 v25, 4, v25
    v_mov_b32 v26, 0xffff
    v_lshlrev_b32 v26, v25, v26
    v_lshlrev_b32 v24, v25, v24
    v_mov_b32 v27, 0x0c0c0c0c
    v_bfi_b32 v24, v26, v24, v27
    v_bfe_u32 v25, v12, 1, 2
""")
    for j in range(4):
        a(f"v_cmp_eq_u32 vcc, {j}, v25")
        a("s_nop 1")
        a(f"v_cndmask_b32 v{8+j}, v27, v24, vcc")
    for st in range(LS):
        a(f"v_lshlrev_b32 v{STAGE+4*st+3}, 4, v12")
    if OPT["warm"]:
        a(f"""
    s_lshl_b32 s24, s2, 3
    s_add_u32 s24, s24, s{S_WAVE}
    s_mul_i32 s24, s24, 13
    v_lshrrev_b32 v156, 2, v{L}
    v_add_u32 v156, s24, v156
    v_and_b32 v157, 3, v{L}
    v_lshlrev_b32 v157, 7, v157
    v_cmp_gt_u32 vcc, 52, v{L}
    v_mov_b32 v24, {PADIDX:#x}
    s_mov_b32 m0, {L_DUMMY}
    v_cndmask_b32 v156, v24, v156, vcc
""")
    a(f"""
    v_and_b32 v12, 7, v{L}
    s_lshl_b32 s24, s{S_WAVE}, 6
    v_lshl_add_u32 v13, v12, 3, s24
    v_lshrrev_b32 v14, 3, v{L}
    v_lshlrev_b32 v14, 2, v14
    v_lshlrev_b32 v16, 5, v{L}
    v_mov_b32 v1, 2
""")
    if not BAL:
        a(f"""
    v_lshlrev_b32 v20, 4, v12
    v_add_u32 v20, s{S_WAVE}, v20
    v_add_u32 v21, 8, v20
    ds_write_b64 v13, v[20:21] offset:{L_MAP}
""")
    a("v_lshlrev_b32 v12, 2, v12")
    a("s_waitcnt vmcnt(13)")
    stamp(a, 2)

    def pre_atomic(i, u, k):
        if u < 2:
            a(f"s_waitcnt vmcnt({5 + u * 4 + 3 - k})")

    def f_atomic(i, u, k):
        r = RB + 4 * i
        a(f"v_lshrrev_b32 v{r+3}, 16, v{r+2}")
        a(f"ds_add_rtn_u32 v{RK+i}, v{r+3}, v1 offset:{L_HIST}")
    masked(f_atomic, "at", pre_atomic)
    if OPT["warm"]:
        a(f"buffer_load_dword v[156:157], s[{S_X}:{S_X+3}], 0 idxen offen lds")
    a("s_waitcnt lgkmcnt(0)")
    a("s_barrier")

    def f_taddr(i, u, k):
        r = RB + 4 * i
        a(f"v_min_u32 v0, 2, v{RK+i}")
        a(f"v_add_lshl_u32 v{r+3}, v{r+3}, v0, 1")
        a(f"v_and_b32 v{r+2}, 0xffff, v{r+2}")

    if BAL:
        a(f"""
    ds_read_b128 v[24:27], v16 offset:{L_HIST}
    ds_read_b128 v[28:31], v16 offset:{L_HIST+16}
    ds_read_b128 v[32:35], v16 offset:{L_HIST+2048}
    ds_read_b128 v[36:39], v16 offset:{L_HIST+2064}
    v_sub_u32 v40, {2*128 + 127}, v{L}
    v_sub_u32 v41, {2*128 + 63}, v{L}
    v_mov_b32 v42, 0
    v_mov_b32 v43, 0
    s_lshl_b32 s24, s{S_WAVE}, 3
    s_waitcnt lgkmcnt(2)
    v_add3_u32 v24, v24, v25, v26
    v_add3_u32 v28, v28, v29, v30
    v_add3_u32 v24, v24, v27, v31
    s_waitcnt lgkmcnt(0)
    v_add3_u32 v32, v32, v33, v34
    v_add3_u32 v36, v36, v37, v38
    v_add3_u32 v32, v32, v35, v39
    v_add_u32 v24, v24, v28
    v_add_u32 v32, v32, v36
    v_lshl_add_u32 v40, v24, 7, v40
    v_lshl_add_u32 v41, v32, 7, v41
    v_and_b32 v40, 0xfffffe7f, v40
    v_and_b32 v41, 0xfffffe7f, v41
""")
        sel = [(40, i) for i in range(8)] + [(41, None)] * 5
        for n in range(13):
            if n < 8:
                a(f"s_add_u32 s25, s24, {n}")
                a(f"v_readlane_b32 s{28+n}, v40, s25")
            else:
                a(f"s_add_u32 s25, s{S_WAVE}, {8*(n-8)}")
                a(f"v_readlane_b32 s{28+n}, v41, s25")
        for n in range(13):
            p0, p1 = ("vcc", "s[26:27]") if n % 2 == 0 else ("s[24:25]", "s[42:43]")
            a(f"v_cmp_gt_u32 {p0}, s{28+n}, v40")
            a(f"v_cmp_gt_u32 {p1}, s{28+n}, v41")
            if n:
                q0, q1 = ("vcc", "s[26:27]") if n % 2 == 1 else ("s[24:25]", "s[42:43]")
                a(f"v_addc_co_u32 v42, {q0}, 0, v42, {q0}")
                a(f"v_addc_co_u32 v43, {q1}, 0, v43, {q1}")
        a(f"""
    v_lshlrev_b32 v44, 2, v{L}
    v_mov_b32 v20, 127
    v_addc_co_u32 v42, vcc, 0, v42, vcc
    v_addc_co_u32 v43, s[26:27], 0, v43, s[26:27]
    v_mov_b32 v21, 127
    ds_add_u32 v44, v42 offset:{L_RANK}
    ds_add_u32 v44, v43 offset:{L_RANK+256}
    ds_write_b64 v13, v[20:21] offset:{L_MAP}
""")
        masked(f_taddr, "ta")
        a(f"""
    s_waitcnt lgkmcnt(0)
    s_barrier
    ds_read_b32 v42, v44 offset:{L_RANK}
    ds_read_b32 v43, v44 offset:{L_RANK+256}
    v_add_u32 v41, 64, v{L}
    s_lshl_b32 s24, s{S_WAVE}, 6
    s_waitcnt lgkmcnt(0)
    v_bfe_i32 v45, v42, 3, 1
    v_bfe_i32 v46, v43, 3, 1
    v_xor_b32 v45, v45, v42
    v_xor_b32 v46, v46, v43
    v_and_b32 v45, 7, v45
    v_and_b32 v46, 7, v46
    v_cmp_eq_u32 vcc, s{S_WAVE}, v45
    v_cmp_eq_u32 s[26:27], s{S_WAVE}, v46
    v_lshrrev_b32 v42, 3, v42
    v_lshrrev_b32 v43, 3, v43
    v_lshl_add_u32 v42, v42, 2, s24
    v_lshl_add_u32 v43, v43, 2, s24
    s_mov_b64 exec, vcc
    ds_write_b32 v42, v{L} offset:{L_MAP}
    s_mov_b64 exec, s[26:27]
    ds_write_b32 v43, v41 offset:{L_MAP}
    s_mov_b64 exec, -1
    ds_read_b64 v[20:21], v13 offset:{L_MAP}
    s_waitcnt lgkmcnt(0)
""")
    a(f"""
    v_lshlrev_b32 v20, 5, v20
    v_lshlrev_b32 v21, 5, v21
    ds_read_b128 v[24:27], v20 offset:{L_HIST}
    ds_read_b128 v[28:31], v20 offset:{L_HIST+16}
    ds_read_b128 v[32:35], v21 offset:{L_HIST}
    ds_read_b128 v[36:39], v21 offset:{L_HIST+16}
    v_add_u32 v20, v14, v20
    v_add_u32 v21, v14, v21
    ds_read_b32 v40, v20 offset:{L_HIST}
    ds_read_b32 v41, v21 offset:{L_HIST}
""")
    if not BAL:
        masked(f_taddr, "ta")
    a(f"""
    v_mov_b32 v42, 0
    v_mov_b32 v43, 0
    v_mov_b32 v44, v12
    v_mov_b32 v45, v12
    v_lshlrev_b32 v20, 1, v20
    v_lshlrev_b32 v21, 1, v21
    s_waitcnt lgkmcnt(0)
""")
    for q in range(1, 8):
        lo = (0xFFFFFFFFFFFFFFFF << (8 * q)) & 0xFFFFFFFF
        hi = ((0xFFFFFFFFFFFFFFFF << (8 * q)) >> 32) & 0xFFFFFFFF
        if q <= 4:
            a(f"s_mov_b32 exec_lo, {lo:#x}")
        else:
            a(f"s_mov_b32 exec_hi, {hi:#x}")
        a(f"v_cmp_ne_u32 vcc, 0, v{24+q-1}")
        a(f"v_cmp_ne_u32 s[26:27], 0, v{32+q-1}")
        a(f"v_add_u32 v42, v42, v{24+q-1}")
        a(f"v_add_u32 v43, v43, v{32+q-1}")
        a(f"v_cndmask_b32 v44, v44, v12, vcc")
        a(f"v_cndmask_b32 v45, v45, v12, s[26:27]")
        a(f"v_add_u32 v12, 32, v12")
    a(f"""
    s_mov_b64 exec, -1
    v_add_u32 v46, 2, v42
    v_add_u32 v47, 2, v43
    v_add_u32 v0, v46, v40
    v_add_u32 v1, v47, v41
    v_lshrrev_b32 v46, 2, v46
    v_lshrrev_b32 v47, 2, v47
    v_lshrrev_b32 v0, 2, v0
    v_lshrrev_b32 v1, 2, v1
    v_sub_u32 v0, v0, v46
    v_sub_u32 v1, v1, v47
    v_add_u32 v24, v0, v1
    v_mov_b32 v25, v24
""")
    wave_scan(a, 25)
    a(f"""
    v_readlane_b32 s24, v25, 63
    v_sub_u32 v24, v25, v24
    v_lshl_add_u32 v27, v24, 5, s{S_REGION}
    v_lshl_add_u32 v29, v0, 5, v27
    v_and_b32 v42, 2, v42
    v_and_b32 v43, 2, v43
    v_lshlrev_b32 v46, 3, v42
    v_lshlrev_b32 v47, 3, v43
    v_sub_u32 v27, v27, v46
    v_sub_u32 v29, v29, v47
    v_lshl_add_u32 v46, v40, 3, v27
    v_lshl_add_u32 v47, v41, 3, v29
    ds_bpermute_b32 v26, v44, v46
    ds_bpermute_b32 v28, v45, v47
    v_cmp_eq_u32 vcc, 0, v42
    v_cmp_eq_u32 s[26:27], 0, v43
    s_cmp_le_u32 s24, {CAPP}
    s_cbranch_scc1 M_noovf
    v_mov_b32 v30, 1
    ds_write_b32 v4, v30 offset:{L_FLAG}
M_noovf:
    s_waitcnt lgkmcnt(0)
    v_cndmask_b32 v26, v26, v27, vcc
    v_cndmask_b32 v28, v28, v29, s[26:27]
    ds_write_b64 v20, v[26:27] offset:{L_TAB}
    ds_write_b64 v21, v[28:29] offset:{L_TAB}
    s_waitcnt lgkmcnt(0)
    s_barrier
    ds_read_b64 v[20:21], v4 offset:{L_FLAG}
""")
    masked(lambda i, u, k: a(f"ds_read_b32 v{RB+4*i+3}, v{RB+4*i+3} offset:{L_TAB}"), "lk")
    for r in range(D):
        a(f"v_mov_b32 v{RING+4*r+1}, v{STAGE+3}")
    a(f"""
    s_waitcnt lgkmcnt(0)
    v_readfirstlane_b32 s24, v20
    v_readfirstlane_b32 s{S_MORE}, v21
    s_cmp_eq_u32 s24, 0
    s_cbranch_scc1 M_go
    s_lshr_b32 s{S_TAKE}, s{S_TAKE}, 1
    s_max_u32 s{S_TAKE}, s{S_TAKE}, 1
    s_waitcnt vmcnt(0)
    s_barrier
    s_branch M_round
M_go:
""")

    def f_scatter(i, u, k):
        r = RB + 4 * i
        a(f"v_lshl_add_u32 v{r+3}, v{RK+i}, 3, v{r+3}")
        a(f"ds_write_b32 v{r+3}, v{r+2} offset:8")
        a(f"ds_write_b64 v{r+3}, v[{r}:{r+1}] offset:{32*(D-1)}")
    masked(f_scatter, "sc")
    a(f"s_waitcnt vmcnt({1 if OPT['warm'] else 0}) lgkmcnt(0)")
    a("s_barrier")
    stamp(a, 3)
    cstamp(a, 1)
    for r in range(D):
        a(f"ds_read_b32 v{RING+4*r}, v{V_PTR} offset:{32*r+8}")
    a(f"ds_read_b64 v[{RING+2}:{RING+3}], v{V_PTR} offset:{32*(D-1)}")
    for st in range(LS):
        a(f"ds_read_b96 v[{STAGE+4*st}:{STAGE+4*st+2}], v{V_PTR} offset:{32*(D+st)}")
    for j in range(5, NSLOT):
        a(f"v_mfma_f32_32x32x16_bf16 v[{ACC+16*j}:{ACC+16*j+15}], v[4:7], v[4:7], 0")
    a(f"s_waitcnt lgkmcnt({LS})")
    for j in range(4):
        a(f"v_perm_b32 v{4+j}, v{RING+3}, v{RING+2}, v{8+j}")
    for r in range(D):
        a(f"buffer_load_dwordx4 v[{RING+4*r}:{RING+4*r+3}], v[{RING+4*r}:{RING+4*r+1}], s[{S_X}:{S_X+3}], 0 idxen offen")
    a(f"s_mov_b32 s{S_PH}, 0")
    if OPT.get("prio") == 2:
        a(f"s_cmp_lt_u32 s{S_WAVE}, 4")
        a("s_cbranch_scc1 M_PE0")
        a("s_setprio 1")
    a("s_branch M_PE0")
    assert D % LS == 0
    for j in range(NSLOT):
        ac = ACC + 16 * j
        for r in range(D):
            nxt = f"M_B{j+1}_{r}" if j + 1 < NSLOT else f"M_PE{r}"
            rg = RING + 4 * r
            st = STAGE + 4 * (r % LS)
            a(f"""
M_B{j}_{r}:
    s_sub_u32 s{S_CNT+j}, s{S_CNT+j}, 1
    s_cbranch_scc1 {nxt}
    s_waitcnt vmcnt({D-1}) lgkmcnt({LS-1})
    v_mfma_f32_32x32x16_bf16 v[{ac}:{ac+15}], v[4:7], v[{rg}:{rg+3}], v[{ac}:{ac+15}]
    buffer_load_dwordx4 v[{rg}:{rg+3}], v[{st+2}:{st+3}], s[{S_X}:{S_X+3}], 0 idxen offen
    v_perm_b32 v4, v{st+1}, v{st}, v8
    v_perm_b32 v5, v{st+1}, v{st}, v9
    v_perm_b32 v6, v{st+1}, v{st}, v10
    v_perm_b32 v7, v{st+1}, v{st}, v11
    ds_read_b96 v[{st}:{st+2}], v{V_PTR} offset:{32*(r+D+LS)}
""")
            if r == D - 1:
                a(f"v_add_u32 v{V_PTR}, {32*D}, v{V_PTR}")
                a(f"s_branch M_B{j}_0")
    for r in range(D):
        a(f"""
M_PE{r}:
    s_cmp_ge_u32 s{S_PH}, {8*P}
    s_cbranch_scc1 M_epi
""")
        for j in range(NSLOT):
            if j % 2 == 0:
                a(f"s_add_u32 s24, s{S_PH}, {j//2}")
            a(f"v_readlane_b32 s{S_CNT+j}, v{j % 2}, s24")
        a(f"s_add_u32 s{S_PH}, s{S_PH}, 8")
        if OPT.get("phbar"):
            a("s_barrier")
        if OPT.get("prio") == 1:
            a(f"s_lshr_b32 s24, s{S_PH}, 1")
            a(f"s_xor_b32 s24, s24, s{S_WAVE}")
            a(f"s_bitcmp1_b32 s24, 2")
            a(f"s_setprio 0")
            a(f"s_cbranch_scc0 M_B0_{r}")
            a(f"s_setprio 1")
        a(f"s_branch M_B0_{r}")
    a("M_epi:")
    if STAMP:
        a("s_waitcnt vmcnt(0) lgkmcnt(0)")
    stamp(a, 4)
    cstamp(a, 2)
    a(f"""
    v_lshrrev_b32 v0, 5, v{L}
    v_lshl_add_u32 v0, v0, 3, v{STAGE+3}
    v_add_u32 v0, s{S_REGION}, v0
    v_and_b32 v4, 15, v{L}
    v_lshrrev_b32 v5, 4, v{L}
    v_mul_u32_u24 v1, {STG}, v4
    v_lshl_add_u32 v1, v5, 4, v1
    v_add_u32 v1, s{S_REGION}, v1
    v_lshlrev_b32 v2, 4, v{L}
    v_add_u32 v2, {L_W}, v2
    s_lshl_b32 s24, s{S_WAVE}, 6
    v_lshl_add_u32 v4, v4, 2, s24
    ds_read_b32 v4, v4 offset:{L_MAP}
    s_mov_b32 s26, 0x80008000
""")

    of = ["", " nt", " sc1", " sc0 sc1"][OPT.get("ost", 1)]
    Q = [[ACC + 16 * j + 4 * kc for j in range(NSLOT)] for kc in range(4)]
    BFS = [[8, 12, 16, 20, 24, 28, 32, 36], Q[0][0:8], Q[2][3:11], Q[3][0:8]]
    BF = {(kc, c, ks): BFS[kc][c * 2 + ks] for kc in range(4) for c in range(4) for ks in range(2)}
    outq = Q[1][0:13] + Q[2][0:3]
    order = [(0, 0), (0, 1), (0, 2), (0, 3)] + [(o, t) for t in range(4) for o in (1, 2, 3)]
    OUT = {ot: outq[i] for i, ot in enumerate(order)}
    AF = Q[0][8:13] + [40, 44]
    GATE = Q[3][8:12]
    NA = len(AF)
    S = Sched(a)

    def f_cvt(kc):
        ops = []
        for j in range(NSLOT):
            q = Q[kc][j]
            ops.append(("valu", f"v_cvt_pk_bf16_f32 v{q}, v{q}, v{q+1}", [q, q + 1], [q]))
            ops.append(("valu", f"v_cvt_pk_bf16_f32 v{q+1}, v{q+2}, v{q+3}", [q + 2, q + 3], [q + 1]))
        return ops

    def f_w(kc):
        return [("dsw", f"ds_write_b64 v0, v[{Q[kc][j]}:{Q[kc][j]+1}] offset:{STG*j}", [Q[kc][j], Q[kc][j] + 1], [])
                for j in range(NSLOT)]

    def f_rb(kc):
        return [("dsr", f"ds_read_b128 v[{BF[kc,c,ks]}:{BF[kc,c,ks]+3}], v1 offset:{c*128+ks*64}", [], R(BF[kc, c, ks]))
                for c in range(4) for ks in range(2)]

    use = {m: [] for m in range(5)}
    negs = []
    for kc in range(4):
        for c in range(4):
            if kc == 0:
                m, o = (0, 0) if c == 0 else (3, c)
            else:
                jj = kc - 1
                if c == 0:
                    m, o = 2, kc
                elif c - 1 == jj:
                    m, o = 1, 0
                else:
                    m, o = 4, 1 + (3 - jj - (c - 1))
                    if c - 1 != (jj + 1) % 3:
                        negs.append((kc, c))
            use[m].append((kc, c, o))
    frs = [(0, ks, t) for t in range(4) for ks in range(2)] + [(3, ks, t) for t in range(4) for ks in range(2)] \
        + [(1, ks, t) for t in range(4) for ks in range(2)] \
        + [(m, ks, t) for t in range(4) for m in (2, 4) for ks in range(2)]

    def f_af(n):
        m, ks, t = frs[n]
        q = AF[n % NA]
        return ("dsr", f"ds_read_b128 v[{q}:{q+3}], v2 offset:{((m*2+ks)*4+t)*1024}", [], R(q))

    def emit(o):
        S.op(o[0], o[1], o[2], o[3])

    for o in f_cvt(0):
        emit(o)
    a("s_waitcnt vmcnt(0) lgkmcnt(0)")
    for o in f_w(0) + f_rb(0):
        emit(o)
    for n in range(NA):
        emit(f_af(n))
    for o in f_cvt(1) + f_w(1):
        emit(o)
    neg_ops = [("valu", f"v_xor_b32 v{BF[kc,c,kk]+i}, s26, v{BF[kc,c,kk]+i}", [BF[kc, c, kk] + i], [BF[kc, c, kk] + i])
               for (kc, c) in negs for kk in range(2) for i in range(4)]
    addr_ops = [
        ("valu", f"v_cmp_gt_u32 vcc, {NPB}, v4", [4], []),
        ("other", f"s_mul_i32 s24, s2, {NPB}", [], []),
        ("valu", "v_add_u32 v4, s24, v4", [4], [4]),
        ("valu", "v_lshlrev_b32 v4, 9, v4", [4], [4]),
        ("valu", "v_lshl_add_u32 v4, v5, 4, v4", [4, 5], [4]),
        ("valu", f"v_mov_b32 v5, {OOB:#x}", [], [5]),
        ("valu", "v_cndmask_b32 v4, v5, v4, vcc", [4, 5], [4]),
        ("other", "s_mov_b32 s24, 0xbfb8aa3b", [], []),
    ]
    fill = f_rb(1) + f_cvt(2) + f_w(2) + f_rb(2) + f_cvt(3) + f_w(3) + f_rb(3) + addr_ops + neg_ops
    gate_ops = []
    for t in range(4):
        for i in range(4):
            gate_ops.append(("valu", f"v_mul_f32 v{GATE[t]+i}, s24, v{OUT[0,t]+i}", [OUT[0, t] + i], [GATE[t] + i]))
    G = [GATE[t] + i for t in range(4) for i in range(4)]
    gate_ops += [("trans", f"v_exp_f32 v{g}, v{g}", [g], [g]) for g in G]
    gate_ops += [("valu", f"v_add_f32 v{g}, 1.0, v{g}", [g], [g]) for g in G]
    gate_ops += [("trans", f"v_rcp_f32 v{g}, v{g}", [g], [g]) for g in G]
    PK = [8, 12, 16, 20, 24, 28, 32, 36]

    def f_store(o, k):
        ops = []
        p = PK[o * 2 + k]
        d0, d1 = OUT[o, 2 * k], OUT[o, 2 * k + 1]
        if o:
            for t in (2 * k, 2 * k + 1):
                d = OUT[o, t]
                g = GATE[t]
                ops.append(("valu", f"v_pk_mul_f32 v[{d}:{d+1}], v[{d}:{d+1}], v[{g}:{g+1}]", [d, d + 1, g, g + 1], [d, d + 1]))
                ops.append(("valu", f"v_pk_mul_f32 v[{d+2}:{d+3}], v[{d+2}:{d+3}], v[{g+2}:{g+3}]", [d + 2, d + 3, g + 2, g + 3], [d + 2, d + 3]))
        for i, dd in enumerate((d0, d0 + 2, d1, d1 + 2)):
            ops.append(("valu", f"v_cvt_pk_bf16_f32 v{p+i}, v{dd}, v{dd+1}", [dd, dd + 1], [p + i]))
        ops.append(("store", f"buffer_store_dwordx4 v[{p}:{p+3}], v4, s[{S_OUT}:{S_OUT+3}], 0 offen offset:{o*128+k*64}{of}",
                    R(p) + [4], []))
        return ops

    def gemm(S, fill, late):
        fill = list(fill)
        touched = set()
        for n, (m, ks, t) in enumerate(frs):
            if n in (14, 16, 24):
                lim = {14: len(f_rb(1) + f_cvt(2) + f_w(2)), 16: 3 * 8 + 2 * 39, 24: 10 ** 6}[n]
                while fill and done[0] < lim:
                    emit(fill.pop(0))
                    done[0] += 1
            fill += late.get(n, [])
            q = AF[n % NA]
            for (kc, c, o) in use[m]:
                b = BF[kc, c, ks]
                d = OUT[o, t]
                first = (o, t) not in touched
                touched.add((o, t))
                cin = "0" if first else f"v[{d}:{d+3}]"
                S.op("mfma", f"v_mfma_f32_16x16x32_bf16 v[{d}:{d+3}], v[{q}:{q+3}], v[{b}:{b+3}], {cin}",
                     R(q) + R(b), R(d), [] if first else R(d))
                for _ in range(FPM):
                    if fill:
                        emit(fill.pop(0))
                        done[0] += 1
            if n + NA < len(frs):
                emit(f_af(n + NA))
        return fill

    FPM = OPT.get("fpm", 3)
    done = [0]
    a(f"s_or_b32 s27, s{S_C0}, s{S_MORE}")
    a("s_cmp_eq_u32 s27, 0")
    a("s_cbranch_scc0 M_multi")
    import copy
    S2 = copy.deepcopy(S)
    S2.a = a
    late = {25: gate_ops + f_store(0, 0) + f_store(0, 1),
            33: f_store(1, 0) + f_store(2, 0) + f_store(3, 0)}
    rest = gemm(S, fill, late)
    for o in rest + f_store(1, 1) + f_store(2, 1) + f_store(3, 1):
        emit(o)
    a("s_branch M_end")
    a("M_multi:")
    S = S2
    done = [0]
    rest = gemm(S, fill, {})
    for o in rest:
        emit(o)
    a(f"""
    s_nop 7
    v_lshlrev_b32 v0, 1, v4
    v_cndmask_b32 v0, v5, v0, vcc
    s_cmp_eq_u32 s{S_C0}, 0
    s_cbranch_scc1 M_noload
""")

    def poff(o, t):
        return o * 256 + (t >> 1) * 128 + (t & 1) * 16
    for o in range(4):
        for t in range(4):
            a(f"buffer_load_dwordx4 v[{8+4*t}:{11+4*t}], v0, s[{S_PART}:{S_PART+3}], 0 offen offset:{poff(o,t)} sc1")
        a("s_waitcnt vmcnt(0)")
        for t in range(4):
            for i in range(4):
                a(f"v_add_f32 v{OUT[o,t]+i}, v{OUT[o,t]+i}, v{8+4*t+i}")
    a(f"""
M_noload:
    s_cmp_eq_u32 s{S_MORE}, 0
    s_cbranch_scc1 M_final
""")
    for o in range(4):
        for t in range(4):
            q = OUT[o, t]
            a(f"buffer_store_dwordx4 v[{q}:{q+3}], v0, s[{S_PART}:{S_PART+3}], 0 offen offset:{poff(o,t)} sc1")
    a(f"""
    s_add_u32 s{S_C0}, s{S_C0}, s{S_TAKE}
    s_waitcnt vmcnt(0) lgkmcnt(0)
    s_barrier
    s_branch M_round
M_final:
""")
    S = Sched(a)
    for o in gate_ops:
        emit(o)
    for o in range(4):
        for k in range(2):
            for op in f_store(o, k):
                emit(op)
    a("M_end:")
    if OPT.get("es"):
        stamp(a, 3)
    if STAMP:
        a("s_waitcnt vmcnt(0)")
    stamp(a, 5)
    stamp_flush(a, 16, 1, 0, S_WAVE)
    a("""
M_done:
    s_endpgm
""")


def descriptor(name, vgpr, sgpr):
    acc = (vgpr + 3) // 4 * 4
    return f"""
.p2align 6
.amdhsa_kernel {name}
  .amdhsa_next_free_vgpr {vgpr}
  .amdhsa_next_free_sgpr {sgpr}
  .amdhsa_accum_offset {acc}
  .amdhsa_group_segment_fixed_size 0
  .amdhsa_kernarg_size 96
  .amdhsa_user_sgpr_count 2
  .amdhsa_user_sgpr_kernarg_segment_ptr 1
  .amdhsa_system_sgpr_workgroup_id_x 1
  .amdhsa_float_denorm_mode_32 3
.end_amdhsa_kernel
"""


def main():
    global STAMP
    for arg in list(sys.argv):
        if "=" in arg:
            k, v = arg.split("=")
            OPT[k] = int(v)
            sys.argv.remove(arg)
    if "--stamp" in sys.argv:
        STAMP = True
        sys.argv.remove("--stamp")
    ref = open(f"cdna_kernels/{NAME}.s.ref").read().split("\n")
    head = [l for l in ref if l.startswith(";") and "@launch" not in l and "Override launch" not in l
            and "grid=ceil" not in l]
    a = Asm()
    gen_part(a)
    gen_main(a)
    out = "\n".join(head) + "\n"
    out += f"; @launch kernel=part_kernel grid=({NC+6},1,1) block=(832,1,1) lds={K1_LDS}\n"
    out += f"; @launch kernel=main_kernel grid=({NB},1,1) block=(512,1,1) lds={L_TOTAL}\n"
    out += '.amdgcn_target "amdgcn-amd-amdhsa--gfx950"\n.text\n'
    out += a.text()
    out += '.section .rodata,"a"\n'
    out += descriptor("part_kernel", 84, 102 if STAMP else 32)
    out += descriptor("main_kernel", 256, 102)
    path = sys.argv[1] if len(sys.argv) > 1 else f"cdna_kernels/{NAME}.s"
    open(path, "w").write(out)
    print("wrote", path, len(out), "bytes; LDS", L_TOTAL, "CAPP", CAPP)


if __name__ == "__main__":
    main()
```

```python
import sys

NAME = "standalone__tensor_product_equiv_equiformer__graph"
N = 25000
E = 800000
NPB = 98
NB = 256
NC = 250
CH = 3200
P = 8
PH = (N + P - 1) // P
NSLOT = 13
import os
D = int(os.environ.get("DD", "6"))
LS = 3
RECB = 12

OPT = {"st": 0, "warm": 1, "stage": 1, "ld": 1}

REC_OFF = 0
REC_BYTES = NC * CH * RECB
DESC_OFF = 0x1000000
WIMG_OFF = 0x1100000
WIMG_BYTES = 5 * 8192
PART_OFF = 0x2000000
PART_BYTES = NB * NPB * 1024

L_FLAG = 0
L_DUMMY = 256
L_HIST = 512
L_TAB = L_HIST + 4096
L_RANK = L_TAB + 8192
L_MAP = L_RANK + 512
L_W = L_MAP + 512
L_REG = L_W + WIMG_BYTES
REGB = 10240
L_TOTAL = L_REG + 8 * REGB
CAPP = REGB // 32 - (D + LS + 2)
STG = 528
OOB = 0x7FFFF000
PADIDX = 0x7FFF

STAMP = False
STAMP_OFF = 0x8000000


def magic(div, maxv):
    for k in range(31, 15, -1):
        m = -(-(1 << k) // div)
        if m < (1 << 24) and m * maxv < (1 << 32):
            e = m * div - (1 << k)
            if e * maxv < (1 << k):
                assert all((v * m) >> k == v // div for v in range(maxv + 1))
                return m, k
    raise ValueError


class Asm:
    def __init__(self):
        self.lines = []

    def __call__(self, s):
        for ln in s.strip("\n").split("\n"):
            ln = ln.strip()
            if ln:
                self.lines.append(("" if ln.endswith(":") else "    ") + ln)

    def text(self):
        return "\n".join(self.lines) + "\n"


def srd(a, d, base, nrec, add=0, stride=0):
    if add:
        a(f"s_add_u32 s{d}, s{base}, {add}")
        a(f"s_addc_u32 s{d+1}, s{base+1}, 0")
        a(f"s_and_b32 s{d+1}, s{d+1}, 0xffff")
    else:
        a(f"s_mov_b32 s{d}, s{base}")
        a(f"s_and_b32 s{d+1}, s{base+1}, 0xffff")
    if stride:
        a(f"s_or_b32 s{d+1}, s{d+1}, {stride << 16:#x}")
    a(f"s_mov_b32 s{d+2}, {nrec}")
    a(f"s_mov_b32 s{d+3}, 0x20000")


def pstamp(a, k):
    if STAMP and OPT.get("ps"):
        a("s_memrealtime s[42:43]")
        a("s_waitcnt lgkmcnt(0)")
        a(f"s_mov_b32 s{96+k}, s42")


MAINK = [False]


def stamp(a, k):
    if OPT.get("ps") and MAINK[0] and k not in (0, 3):
        return
    if STAMP:
        a("s_memrealtime s[42:43]")
        a("s_waitcnt lgkmcnt(0)")
        a(f"s_mov_b32 s{96+k}, s42")


def cstamp(a, k):
    if STAMP and OPT.get("clk"):
        a("s_memtime s[42:43]")
        a("s_waitcnt lgkmcnt(0)")
        a(f"s_mov_b32 s{96+k}, s42")


def stamp_flush(a, wsreg, kern, vt, swave):
    if STAMP:
        a("s_mov_b64 exec, 1")
        a(f"s_lshl_b32 s42, s2, 4")
        a(f"s_add_u32 s42, s42, s{swave}")
        a(f"s_lshl_b32 s42, s42, 5")
        a(f"s_add_u32 s42, s42, {STAMP_OFF + kern * 0x100000}")
        a(f"v_mov_b32 v{vt}, s42")
        for k in range(6):
            a(f"v_mov_b32 v{vt+1}, s{96+k}")
            a(f"global_store_dword v{vt}, v{vt+1}, s[{wsreg}:{wsreg+1}] offset:{4*k}")
            a("s_nop 1")


def wave_scan(a, v):
    for sh in (1, 2, 4, 8):
        a("s_nop 1")
        a(f"v_add_u32_dpp v{v}, v{v}, v{v} row_shr:{sh} row_mask:0xf bank_mask:0xf bound_ctrl:0")
    a("s_nop 1")
    a(f"v_add_u32_dpp v{v}, v{v}, v{v} row_bcast:15 row_mask:0xa bank_mask:0xf")
    a("s_nop 1")
    a(f"v_add_u32_dpp v{v}, v{v}, v{v} row_bcast:31 row_mask:0xc bank_mask:0xf")
    a("s_nop 1")


class Sched:
    def __init__(self, a):
        self.a = a
        self.lds = []
        self.slot = 0
        self.vw = {}
        self.tw = {}
        self.mw = {}
        self.mc = {}
        self.sw = {}

    def _emit(self, t):
        self.a(t)
        self.slot += 1

    def _nop(self, need):
        while need > 0:
            k = min(need, 8)
            self.a(f"s_nop {k-1}")
            self.slot += k
            need -= k

    def op(self, kind, text, reads=(), writes=(), srcc=()):
        reads, writes, srcc = set(reads), set(writes), set(srcc)
        touched = reads | writes | srcc
        last = -1
        for i, d in enumerate(self.lds):
            if d & touched:
                last = i
        if last >= 0:
            n = len(self.lds) - 1 - last
            self._emit(f"s_waitcnt lgkmcnt({min(n, 15)})")
            self.lds = self.lds[len(self.lds) - min(n, 15):] if n else []
        need = 0
        if kind == "mfma":
            for r in reads | srcc:
                if r in self.vw:
                    need = max(need, 2 - (self.slot - self.vw[r] - 1))
            for r in reads:
                if r in self.mw:
                    need = max(need, 8 - (self.slot - self.mw[r] - 1))
        else:
            for r in reads | writes:
                if r in self.mw:
                    need = max(need, 8 - (self.slot - self.mw[r] - 1))
            for r in writes:
                if r in self.mc:
                    need = max(need, 3 - (self.slot - self.mc[r] - 1))
                if r in self.sw:
                    need = max(need, 2 - (self.slot - self.sw[r] - 1))
            if kind in ("valu", "store", "dsw"):
                for r in reads:
                    if r in self.tw:
                        need = max(need, 1 - (self.slot - self.tw[r] - 1))
        self._nop(need)
        me = self.slot
        self._emit(text)
        if kind in ("valu", "trans"):
            for r in writes:
                self.vw[r] = me
                if kind == "trans":
                    self.tw[r] = me
        elif kind == "mfma":
            for r in writes:
                self.mw[r] = me
            for r in srcc:
                self.mc[r] = me
        elif kind == "dsr":
            self.lds.append(writes)
        elif kind == "dsw":
            self.lds.append(set())
        elif kind == "store":
            for r in reads:
                self.sw[r] = me


def R(b, n=4):
    return list(range(b, b + n))


def stflags():
    return ["", " sc1", " sc0 sc1", " nt"][OPT["st"]]


K1_STG = 1024
K1_LDS = K1_STG + 832 * 48


def gen_part(a):
    mB, kB = magic(NPB, 32767)
    mP, kP = magic(PH, 32767)
    sf = stflags()
    lf = ["", " nt", " sc1", " sc0 sc1 nt"][OPT.get("ld", 0)]
    a(f"""
.p2align 8
.globl part_kernel
.type part_kernel,@function
part_kernel:
    s_cmp_ge_u32 s2, {NC + 6}
    s_cbranch_scc1 P_done
    s_load_dwordx4 s[4:7], s[0:1], 8
    s_load_dwordx4 s[8:11], s[0:1], 24
    s_load_dwordx4 s[12:15], s[0:1], 40
    s_load_dwordx2 s[16:17], s[0:1], 56
    s_load_dwordx2 s[18:19], s[0:1], 88
    s_cmp_ge_u32 s2, {NC}
    s_cbranch_scc1 P_prep
""")
    if STAMP:
        a("v_lshrrev_b32 v1, 6, v0")
        a("s_nop 0")
        a("v_readfirstlane_b32 s41, v1")
    stamp(a, 0)
    a(f"""
    v_lshlrev_b32 v1, 2, v0
    v_mov_b32 v2, 0
    v_cmp_gt_u32 vcc, 256, v0
    s_and_saveexec_b64 s[20:21], vcc
    ds_write_b32 v1, v2
    s_mov_b64 exec, s[20:21]
    s_mul_i32 s3, s2, {CH}
    v_lshl_add_u32 v3, v0, 2, s3
    v_lshlrev_b32 v4, 2, v3
    v_lshlrev_b32 v5, 1, v3
    v_mul_u32_u24 v6, 6, v3
    v_cmp_gt_u32 vcc, {CH // 4}, v0
    s_and_saveexec_b64 s[20:21], vcc
    s_waitcnt lgkmcnt(0)
    global_load_dwordx4 v[8:11], v4, s[10:11]{lf}
    s_barrier
    global_load_dwordx4 v[12:15], v4, s[8:9]{lf}
    global_load_dwordx2 v[16:17], v5, s[6:7]{lf}
    global_load_dwordx4 v[20:23], v6, s[4:5]{lf}
    global_load_dwordx2 v[24:25], v6, s[4:5] offset:16{lf}
""")
    a(f"""
    v_mov_b32 v2, 1
    s_waitcnt vmcnt(4)
""")
    stamp(a, 1)
    for i in range(4):
        a(f"""
    v_mul_u32_u24 v{28+i}, {mB}, v{8+i}
    v_lshrrev_b32 v{28+i}, {kB}, v{28+i}
    v_min_u32 v{28+i}, 255, v{28+i}
    v_lshlrev_b32 v{36+i}, 2, v{28+i}
    ds_add_rtn_u32 v{32+i}, v{36+i}, v2
""")
    if OPT.get("cpf", 1):
        a(f"""
    s_getpc_b64 s[24:25]
P_pc:
    s_add_u32 s24, s24, main_kernel-P_pc
    s_addc_u32 s25, s25, 0
    s_lshr_b32 s3, s2, 3
    s_lshl_b32 s3, s3, 10
    v_subrev_u32 v26, {CH//4 - 16}, v0
    v_lshl_add_u32 v26, v26, 6, s3
    v_min_u32 v26, M_multi-main_kernel, v26
    s_movk_i32 s3, {CH//4 - 16}
    v_cmp_le_u32 s[26:27], s3, v0
    s_and_b64 exec, exec, s[26:27]
    s_cbranch_execz P_nopf
    global_load_dword v27, v26, s[24:25]
P_nopf:
    """)
    a(f"""
    s_mov_b64 exec, -1
    s_waitcnt lgkmcnt(0)
    s_barrier
    v_cmp_gt_u32 vcc, 64, v0
    s_cbranch_vccz P_skipscan
    v_lshlrev_b32 v1, 4, v0
    ds_read_b128 v[72:75], v1
    s_waitcnt lgkmcnt(0)
    v_add_u32 v76, v72, v73
    v_add_u32 v77, v76, v74
    v_add_u32 v78, v77, v75
    v_mov_b32 v79, v78
""")
    wave_scan(a, 79)
    a(f"""
    v_sub_u32 v80, v79, v78
    v_add_u32 v81, v80, v72
    v_add_u32 v82, v80, v76
    v_add_u32 v83, v80, v77
    ds_write_b128 v1, v[80:83]
    v_lshl_or_b32 v72, v72, 16, v80
    v_lshl_or_b32 v73, v73, 16, v81
    v_lshl_or_b32 v74, v74, 16, v82
    v_lshl_or_b32 v75, v75, 16, v83
    s_lshl_b32 s3, s2, 2
    s_add_u32 s3, s3, {DESC_OFF}
    v_lshlrev_b32 v1, 12, v0
    v_add_u32 v1, s3, v1
    global_store_dword v1, v72, s[18:19]
    global_store_dword v1, v73, s[18:19] offset:1024
    global_store_dword v1, v74, s[18:19] offset:2048
    global_store_dword v1, v75, s[18:19] offset:3072
    s_waitcnt lgkmcnt(0)
P_skipscan:
    v_cmp_gt_u32 vcc, {CH // 4}, v0
    s_and_saveexec_b64 s[20:21], vcc
    s_movk_i32 s22, {NPB}
    s_mov_b32 s23, 0xffff0000
""")
    for i in range(4):
        a(f"""
    v_mul_u32_u24 v1, s22, v{28+i}
    v_sub_u32 v1, v{8+i}, v1
    v_and_b32 v1, 127, v1
    v_lshlrev_b32 v{8+i}, 21, v1
""")
    a("s_barrier")
    stamp(a, 2)
    for i in range(4):
        a(f"ds_read_b32 v{28+i}, v{36+i}")
    a("s_waitcnt vmcnt(0)")
    stamp(a, 3)
    for i in range(4):
        r = 40 + 4 * i
        a(f"""
    v_mul_u32_u24 v4, {mP}, v{12+i}
    v_lshrrev_b32 v4, {kP}, v4
    v_min_u32 v4, {P-1}, v4
""")
        a(f"""
    v_lshl_or_b32 v4, v4, 18, v{8+i}
    v_and_b32 v3, 0x7fff, v{12+i}
    v_or_b32 v{r+2}, v3, v4
""")
    for i in range(4):
        src = 16 + i // 2
        if i % 2 == 0:
            a(f"v_lshlrev_b32 v{56+i}, 16, v{src}")
        else:
            a(f"v_and_b32 v{56+i}, s23, v{src}")
    for k in range(12):
        src = 20 + k // 2
        if k % 2 == 0:
            a(f"v_lshlrev_b32 v{60+k}, 16, v{src}")
        else:
            a(f"v_and_b32 v{60+k}, s23, v{src}")
    for i in range(4):
        r = 40 + 4 * i
        for j in range(3):
            a(f"v_mul_f32 v{60+3*i+j}, v{56+i}, v{60+3*i+j}")
        a(f"v_cvt_pk_bf16_f32 v{r}, v{56+i}, v{60+3*i}")
        a(f"v_cvt_pk_bf16_f32 v{r+1}, v{61+3*i}, v{62+3*i}")
    a("s_waitcnt lgkmcnt(0)")
    a(f"s_mul_i32 s3, s2, {CH * RECB}")
    if OPT["stage"]:
        for i in range(4):
            r = 40 + 4 * i
            a(f"""
    v_add_u32 v{28+i}, v{28+i}, v{32+i}
    v_mul_u32_u24 v{28+i}, {RECB}, v{28+i}
    v_add_u32 v{28+i}, {K1_STG}, v{28+i}
    ds_write2_b32 v{28+i}, v{r}, v{r+1} offset0:0 offset1:1
    ds_write_b32 v{28+i}, v{r+2} offset:8
""")
        nq = CH * RECB // 16
        a(f"""
    s_mov_b64 exec, -1
    v_lshlrev_b32 v1, 4, v0
    v_add_u32 v2, s3, v1
    s_waitcnt lgkmcnt(0)
    s_barrier
""")
        for i in range(3):
            a(f"ds_read_b128 v[{8+4*i}:{11+4*i}], v1 offset:{K1_STG + 832*16*i}")
        a(f"v_add_u32 v3, {832*16}, v2")
        a(f"v_add_u32 v4, {2*832*16}, v2")
        a(f"v_cmp_gt_u32 vcc, {nq - 2*832}, v0")
        a("s_waitcnt lgkmcnt(2)")
        a(f"global_store_dwordx4 v2, v[8:11], s[18:19]{sf}")
        a("s_waitcnt lgkmcnt(1)")
        a(f"global_store_dwordx4 v3, v[12:15], s[18:19]{sf}")
        a("s_and_saveexec_b64 s[20:21], vcc")
        a("s_cbranch_execz P_fin")
        a("s_waitcnt lgkmcnt(0)")
        a(f"global_store_dwordx4 v4, v[16:19], s[18:19]{sf}")
        a("P_fin:")
    else:
        a(f"s_movk_i32 s22, {RECB}")
        for i in range(4):
            r = 40 + 4 * i
            a(f"""
    v_add_u32 v{28+i}, v{28+i}, v{32+i}
    v_mul_u32_u24 v{28+i}, {RECB}, v{28+i}
    v_add_u32 v{28+i}, s3, v{28+i}
    global_store_dwordx3 v{28+i}, v[{r}:{r+2}], s[18:19]{sf}
""")
    stamp(a, 4)
    if STAMP:
        a("s_waitcnt vmcnt(0)")
    stamp(a, 5)
    stamp_flush(a, 18, 0, 1, 41)
    a("s_branch P_done")
    a(f"""
P_prep:
    s_waitcnt lgkmcnt(0)
    s_lshl_b32 s3, s2, 2
    s_add_u32 s3, s3, {DESC_OFF}
    v_lshlrev_b32 v1, 10, v0
    v_add_u32 v1, s3, v1
    v_mov_b32 v2, 0
    v_cmp_gt_u32 vcc, 256, v0
    s_and_saveexec_b64 s[20:21], vcc
    s_cbranch_execz P_prep1
    global_store_dword v1, v2, s[18:19]
P_prep1:
    s_mov_b64 exec, s[20:21]
    s_sub_u32 s3, s2, {NC}
    s_cmp_eq_u32 s3, 5
    s_cbranch_scc1 P_done
    v_cmp_gt_u32 vcc, 512, v0
    s_and_saveexec_b64 s[20:21], vcc
    s_cbranch_execz P_done
    s_cmp_lt_u32 s3, 2
    s_cselect_b32 s24, s14, s16
    s_cselect_b32 s25, s15, s17
    s_sub_u32 s22, s3, 2
    s_cselect_b32 s22, s3, s22
    s_lshl_b32 s22, s22, 13
    v_lshrrev_b32 v1, 8, v0
    v_bfe_u32 v2, v0, 4, 2
    v_lshl_add_u32 v1, v1, 2, v2
    s_lshl_b32 s23, s3, 7
    v_lshl_add_u32 v4, v1, 4, s23
    global_load_dwordx4 v[16:19], v4, s[12:13]
    v_lshlrev_b32 v1, 10, v1
    v_bfe_u32 v2, v0, 7, 1
    v_bfe_u32 v3, v0, 2, 2
    v_lshl_add_u32 v2, v2, 2, v3
    v_bfe_u32 v3, v0, 6, 1
    v_lshl_add_u32 v2, v2, 1, v3
    v_and_b32 v3, 3, v0
    v_lshl_add_u32 v2, v2, 2, v3
    v_lshl_add_u32 v1, v2, 1, v1
    v_add_u32 v1, s22, v1
""")
    for e in range(8):
        a(f"global_load_ushort v{8+e}, v1, s[24:25] offset:{128*e}")
    a(f"""
    s_lshl_b32 s3, s3, 13
    s_add_u32 s3, s3, {WIMG_OFF}
    v_lshl_add_u32 v1, v0, 4, s3
    s_mov_b32 s23, 0xffff0000
    s_waitcnt vmcnt(0)
""")
    for e in range(8):
        a(f"v_lshlrev_b32 v{8+e}, 16, v{8+e}")
        if e % 2 == 0:
            a(f"v_lshlrev_b32 v2, 16, v{16+e//2}")
        else:
            a(f"v_and_b32 v2, s23, v{16+e//2}")
        a(f"v_mul_f32 v{8+e}, v{8+e}, v2")
    for e in range(4):
        a(f"v_cvt_pk_bf16_f32 v{4+e}, v{8+2*e}, v{9+2*e}")
    a(f"""
    global_store_dwordx4 v1, v[4:7], s[18:19]
P_done:
    s_endpgm
""")


ACC = 48
RING = 24
STAGE = 12
V_PTR = 2
V_LANE = 3
S_X = 4
S_REC = 8
S_OUT = 12
S_WS = 16
S_WAVE = 18
S_C0 = 19
S_TAKE = 20
S_MORE = 21
S_REGION = 22
S_PH = 23
S_T = 24
S_CNT = 28
S_LEV = 41
S_MASK = 44
S_PART = 92
NSUB = 3


def gen_main(a):
    MAINK[0] = True
    L = V_LANE
    NU = 6
    RB = 160
    RK = 132
    DS = 128
    BAL = OPT.get("bal", 1)
    a(f"""
.p2align 8
.globl main_kernel
.type main_kernel,@function
main_kernel:
    s_cmp_ge_u32 s2, {NB}
    s_cbranch_scc1 M_done
    s_load_dwordx2 s[16:17], s[0:1], 88
    s_load_dwordx2 s[24:25], s[0:1], 0
    s_load_dwordx2 s[26:27], s[0:1], 72
    v_lshrrev_b32 v1, 6, v0
    v_and_b32 v{L}, 63, v0
    v_readfirstlane_b32 s{S_WAVE}, v1
    s_mov_b32 s{S_C0}, 0
    s_movk_i32 s{S_TAKE}, 48
    s_mul_i32 s{S_REGION}, s{S_WAVE}, {REGB}
    s_add_u32 s{S_REGION}, s{S_REGION}, {L_REG}
""")
    if OPT.get("bperm", 1):
        a("""
    s_and_b32 s3, s2, 7
    s_lshl_b32 s3, s3, 5
    s_lshr_b32 s2, s2, 3
    s_or_b32 s2, s2, s3
""")
    a("s_waitcnt lgkmcnt(0)")
    stamp(a, 0)
    srd(a, S_X, 24, N, stride=512)
    srd(a, S_OUT, 26, N * 512)
    srd(a, S_REC, 16, WIMG_OFF + WIMG_BYTES)
    srd(a, S_PART, 16, PART_BYTES, PART_OFF)

    def any_level(u):
        m = S_MASK + 2 * (u * 4)
        a(f"s_or_b64 s[26:27], s[{m}:{m+1}], s[{m+2}:{m+3}]")
        a(f"s_or_b64 s[26:27], s[26:27], s[{m+4}:{m+5}]")
        a(f"s_or_b64 s[26:27], s[26:27], s[{m+6}:{m+7}]")

    def masked(fn, tag, pre=None):
        for u in range(2, NU):
            a(f"s_cmp_eq_u32 s{S_LEV}, {u}")
            a(f"s_cbranch_scc1 M_{tag}_{u-1}")
        for u in range(NU - 1, -1, -1):
            a(f"M_{tag}_{u}:")
            for k in range(4):
                i = u * 4 + k
                m = S_MASK + 2 * i
                if pre:
                    pre(i, u, k)
                a(f"s_mov_b64 exec, s[{m}:{m+1}]")
                fn(i, u, k)
        a("s_mov_b64 exec, -1")

    a(f"""
M_round:
    v_lshrrev_b32 v1, 3, v{L}
    s_lshl_b32 s24, s{S_WAVE}, 3
    v_add_u32 v1, s24, v1
    s_lshl_b32 s24, s2, 10
    s_add_u32 s24, s24, {DESC_OFF}
    v_lshl_add_u32 v4, v1, 4, s24
    global_load_dwordx4 v[{DS}:{DS+3}], v4, s[16:17]
    s_lshl_b32 s24, s{S_WAVE}, 9
    v_lshl_add_u32 v0, v{L}, 3, s24
    v_mov_b32 v4, 0
    v_mov_b32 v5, 0
    v_mov_b32 v6, {PADIDX:#x}
    v_mov_b32 v7, 0
    ds_write_b64 v0, v[4:5] offset:{L_HIST}
    ds_write_b64 v4, v[4:5] offset:{L_FLAG}
    v_lshlrev_b32 v2, 3, v{L}
    ds_write_b64 v2, v[4:5] offset:{L_RANK}
    v_lshl_add_u32 v2, v{L}, 4, s{S_REGION}
""")
    for i in range(REGB // 1024):
        a(f"ds_write_b128 v2, v[4:7] offset:{1024*i}")
    a(f"""
    s_mov_b32 s24, {4*CH*RECB}
    v_mul_lo_u32 v1, v1, s24
    v_and_b32 v0, 7, v{L}
    v_add_u32 v0, s{S_C0}, v0
    s_movk_i32 s24, {RECB}
    v_mad_u32_u24 v1, v0, s24, v1
    s_add_u32 s25, s{S_C0}, s{S_TAKE}
    v_mov_b32 v24, 0
    v_mov_b32 v25, {OOB:#x}
    s_waitcnt vmcnt(0)
""")
    stamp(a, 1)
    for k in range(4):
        d = DS + k
        a(f"""
    v_lshrrev_b32 v26, 16, v{d}
    v_max_u32 v24, v24, v26
    v_min_u32 v26, s25, v26
    v_sub_u32 v26, v26, v0
    v_and_b32 v{d}, 0xffff, v{d}
    v_mad_u32_u24 v{d}, v{d}, s24, v1
""")
        for u in range(NU):
            m = S_MASK + 2 * (u * 4 + k)
            a(f"v_cmp_lt_i32 s[{m}:{m+1}], {8*u}, v26")
        if k < 3:
            a(f"v_add_u32 v1, {CH*RECB}, v1")
    a(f"s_mov_b32 s{S_LEV}, 2")
    for u in range(2, NU):
        any_level(u)
        a(f"s_cselect_b32 s{S_LEV}, {u+1}, s{S_LEV}")
    for u in range(2, NU):
        a(f"s_cmp_eq_u32 s{S_LEV}, {u}")
        a(f"s_cbranch_scc1 M_ld_{u-1}")
    for u in range(NU - 1, -1, -1):
        a(f"M_ld_{u}:")
        for k in range(4):
            i = u * 4 + k
            m = S_MASK + 2 * i
            r = RB + 4 * i
            a(f"v_cndmask_b32 v{r+3}, v25, v{DS+k}, s[{m}:{m+1}]")
            a(f"buffer_load_dwordx3 v[{r}:{r+2}], v{r+3}, s[{S_REC}:{S_REC+3}], 0 offen offset:{8*RECB*u}")
    a(f"""
    s_waitcnt lgkmcnt(0)
    s_barrier
    v_cmp_lt_u32 vcc, s25, v24
    s_and_saveexec_b64 s[26:27], vcc
    v_mov_b32 v1, 1
    ds_write_b32 v4, v1 offset:{L_FLAG+4}
    s_mov_b64 exec, -1
    v_mov_b32 v6, 0
    v_and_b32 v12, 31, v{L}
    v_lshrrev_b32 v24, 5, v{L}
    v_lshl_add_u32 v{V_PTR}, v24, 4, s{S_REGION}
""")
    for j in range(5):
        a(f"v_mfma_f32_32x32x16_bf16 v[{ACC+16*j}:{ACC+16*j+15}], v[4:7], v[4:7], 0")
    a(f"""
    v_lshrrev_b32 v24, 3, v12
    v_lshlrev_b32 v24, 1, v24
    v_add_u32 v25, 1, v24
    v_lshl_or_b32 v24, v25, 8, v24
    v_and_b32 v25, 1, v12
    v_lshlrev_b32 v25, 4, v25
    v_mov_b32 v26, 0xffff
    v_lshlrev_b32 v26, v25, v26
    v_lshlrev_b32 v24, v25, v24
    v_mov_b32 v27, 0x0c0c0c0c
    v_bfi_b32 v24, v26, v24, v27
    v_bfe_u32 v25, v12, 1, 2
""")
    for j in range(4):
        a(f"v_cmp_eq_u32 vcc, {j}, v25")
        a("s_nop 1")
        a(f"v_cndmask_b32 v{8+j}, v27, v24, vcc")
    for st in range(LS):
        a(f"v_lshlrev_b32 v{STAGE+4*st+3}, 4, v12")
    if OPT["warm"]:
        a(f"""
    s_lshl_b32 s24, s2, 3
    s_add_u32 s24, s24, s{S_WAVE}
    s_mul_i32 s24, s24, 13
    v_lshrrev_b32 v156, 2, v{L}
    v_add_u32 v156, s24, v156
    v_and_b32 v157, 3, v{L}
    v_lshlrev_b32 v157, 7, v157
    v_cmp_gt_u32 vcc, 52, v{L}
    v_mov_b32 v24, {PADIDX:#x}
    s_mov_b32 m0, {L_DUMMY}
    v_cndmask_b32 v156, v24, v156, vcc
""")
    a(f"""
    v_and_b32 v12, 7, v{L}
    s_lshl_b32 s24, s{S_WAVE}, 6
    v_lshl_add_u32 v13, v12, 3, s24
    v_lshrrev_b32 v14, 3, v{L}
    v_lshlrev_b32 v14, 2, v14
    v_lshlrev_b32 v16, 5, v{L}
    v_mov_b32 v1, 2
""")
    if not BAL:
        a(f"""
    v_lshlrev_b32 v20, 4, v12
    v_add_u32 v20, s{S_WAVE}, v20
    v_add_u32 v21, 8, v20
    ds_write_b64 v13, v[20:21] offset:{L_MAP}
""")
    a("v_lshlrev_b32 v12, 2, v12")
    a("s_waitcnt vmcnt(8)")
    stamp(a, 2)

    def pre_atomic(i, u, k):
        if u < 2:
            a(f"s_waitcnt vmcnt({u * 4 + 3 - k})")

    def f_atomic(i, u, k):
        r = RB + 4 * i
        a(f"v_lshrrev_b32 v{r+3}, 16, v{r+2}")
        a(f"ds_add_rtn_u32 v{RK+i}, v{r+3}, v1 offset:{L_HIST}")
    masked(f_atomic, "at", pre_atomic)
    a(f"""
    s_mul_i32 s24, s{S_WAVE}, 5120
    s_add_u32 s26, s24, {L_W}
    s_mov_b32 m0, s26
    s_add_u32 s24, s24, {WIMG_OFF}
    v_lshl_add_u32 v158, v{L}, 4, s24
""")
    for i in range(4):
        a(f"buffer_load_dwordx4 v158, s[{S_REC}:{S_REC+3}], 0 offen offset:{1024*i} lds")
    a(f"""
    s_add_u32 s26, s26, 4096
    s_mov_b32 m0, s26
    v_add_u32 v158, 4096, v158
    buffer_load_dwordx4 v158, s[{S_REC}:{S_REC+3}], 0 offen lds
""")
    a(f"s_mov_b32 m0, {L_DUMMY}")
    a("s_nop 0")
    a("s_waitcnt lgkmcnt(0)")
    pstamp(a, 1)
    a("s_barrier")
    pstamp(a, 2)
    if OPT["warm"]:
        a(f"buffer_load_dword v[156:157], s[{S_X}:{S_X+3}], 0 idxen offen lds")

    def f_taddr(i, u, k):
        r = RB + 4 * i
        a(f"v_min_u32 v0, 2, v{RK+i}")
        a(f"v_add_lshl_u32 v{r+3}, v{r+3}, v0, 1")

    if BAL:
        a(f"""
    ds_read_b128 v[24:27], v16 offset:{L_HIST}
    ds_read_b128 v[28:31], v16 offset:{L_HIST+16}
    ds_read_b128 v[32:35], v16 offset:{L_HIST+2048}
    ds_read_b128 v[36:39], v16 offset:{L_HIST+2064}
    v_sub_u32 v40, {2*128 + 127}, v{L}
    v_sub_u32 v41, {2*128 + 63}, v{L}
    v_mov_b32 v42, 0
    v_mov_b32 v43, 0
    s_lshl_b32 s24, s{S_WAVE}, 3
    s_waitcnt lgkmcnt(2)
    v_add3_u32 v24, v24, v25, v26
    v_add3_u32 v28, v28, v29, v30
    v_add3_u32 v24, v24, v27, v31
    s_waitcnt lgkmcnt(0)
    v_add3_u32 v32, v32, v33, v34
    v_add3_u32 v36, v36, v37, v38
    v_add3_u32 v32, v32, v35, v39
    v_add_u32 v24, v24, v28
    v_add_u32 v32, v32, v36
    v_lshl_add_u32 v40, v24, 7, v40
    v_lshl_add_u32 v41, v32, 7, v41
    v_and_b32 v40, 0xfffffe7f, v40
    v_and_b32 v41, 0xfffffe7f, v41
""")
        sel = [(40, i) for i in range(8)] + [(41, None)] * 5
        for n in range(13):
            if n < 8:
                a(f"s_add_u32 s25, s24, {n}")
                a(f"v_readlane_b32 s{28+n}, v40, s25")
            else:
                a(f"s_add_u32 s25, s{S_WAVE}, {8*(n-8)}")
                a(f"v_readlane_b32 s{28+n}, v41, s25")
        for n in range(13):
            p0, p1 = ("vcc", "s[26:27]") if n % 2 == 0 else ("s[24:25]", "s[42:43]")
            a(f"v_cmp_gt_u32 {p0}, s{28+n}, v40")
            a(f"v_cmp_gt_u32 {p1}, s{28+n}, v41")
            if n:
                q0, q1 = ("vcc", "s[26:27]") if n % 2 == 1 else ("s[24:25]", "s[42:43]")
                a(f"v_addc_co_u32 v42, {q0}, 0, v42, {q0}")
                a(f"v_addc_co_u32 v43, {q1}, 0, v43, {q1}")
        a(f"""
    v_lshlrev_b32 v44, 2, v{L}
    v_mov_b32 v20, 127
    v_addc_co_u32 v42, vcc, 0, v42, vcc
    v_addc_co_u32 v43, s[26:27], 0, v43, s[26:27]
    v_mov_b32 v21, 127
    ds_add_u32 v44, v42 offset:{L_RANK}
    ds_add_u32 v44, v43 offset:{L_RANK+256}
    ds_write_b64 v13, v[20:21] offset:{L_MAP}
""")
        if OPT.get("carry", 1):
            masked(f_taddr, "ta")
        a(f"""
    s_waitcnt lgkmcnt(0)
    s_barrier
    ds_read_b32 v42, v44 offset:{L_RANK}
    ds_read_b32 v43, v44 offset:{L_RANK+256}
    v_add_u32 v41, 64, v{L}
    s_lshl_b32 s24, s{S_WAVE}, 6
    s_waitcnt lgkmcnt(0)
    v_bfe_i32 v45, v42, 3, 1
    v_bfe_i32 v46, v43, 3, 1
    v_xor_b32 v45, v45, v42
    v_xor_b32 v46, v46, v43
    v_and_b32 v45, 7, v45
    v_and_b32 v46, 7, v46
    v_cmp_eq_u32 vcc, s{S_WAVE}, v45
    v_cmp_eq_u32 s[26:27], s{S_WAVE}, v46
    v_lshrrev_b32 v42, 3, v42
    v_lshrrev_b32 v43, 3, v43
    v_lshl_add_u32 v42, v42, 2, s24
    v_lshl_add_u32 v43, v43, 2, s24
    s_mov_b64 exec, vcc
    ds_write_b32 v42, v{L} offset:{L_MAP}
    s_mov_b64 exec, s[26:27]
    ds_write_b32 v43, v41 offset:{L_MAP}
    s_mov_b64 exec, -1
    ds_read_b64 v[20:21], v13 offset:{L_MAP}
    s_waitcnt lgkmcnt(0)
""")
    def prefix_carry():
        a(f"""
    v_lshlrev_b32 v20, 5, v20
    v_lshlrev_b32 v21, 5, v21
    ds_read_b128 v[24:27], v20 offset:{L_HIST}
    ds_read_b128 v[28:31], v20 offset:{L_HIST+16}
    ds_read_b128 v[32:35], v21 offset:{L_HIST}
    ds_read_b128 v[36:39], v21 offset:{L_HIST+16}
    v_add_u32 v20, v14, v20
    v_add_u32 v21, v14, v21
    ds_read_b32 v40, v20 offset:{L_HIST}
    ds_read_b32 v41, v21 offset:{L_HIST}
""")
        if not BAL:
            masked(f_taddr, "ta")
        a(f"""
    v_mov_b32 v42, 0
    v_mov_b32 v43, 0
    v_mov_b32 v44, v12
    v_mov_b32 v45, v12
    v_lshlrev_b32 v20, 1, v20
    v_lshlrev_b32 v21, 1, v21
    s_waitcnt lgkmcnt(0)
""")
        for q in range(1, 8):
            lo = (0xFFFFFFFFFFFFFFFF << (8 * q)) & 0xFFFFFFFF
            hi = ((0xFFFFFFFFFFFFFFFF << (8 * q)) >> 32) & 0xFFFFFFFF
            if q <= 4:
                a(f"s_mov_b32 exec_lo, {lo:#x}")
            else:
                a(f"s_mov_b32 exec_hi, {hi:#x}")
            a(f"v_cmp_ne_u32 vcc, 0, v{24+q-1}")
            a(f"v_cmp_ne_u32 s[26:27], 0, v{32+q-1}")
            a(f"v_add_u32 v42, v42, v{24+q-1}")
            a(f"v_add_u32 v43, v43, v{32+q-1}")
            a(f"v_cndmask_b32 v44, v44, v12, vcc")
            a(f"v_cndmask_b32 v45, v45, v12, s[26:27]")
            a(f"v_add_u32 v12, 32, v12")
        a(f"""
    s_mov_b64 exec, -1
    v_add_u32 v46, 2, v42
    v_add_u32 v47, 2, v43
    v_add_u32 v0, v46, v40
    v_add_u32 v1, v47, v41
    v_lshrrev_b32 v46, 2, v46
    v_lshrrev_b32 v47, 2, v47
    v_lshrrev_b32 v0, 2, v0
    v_lshrrev_b32 v1, 2, v1
    v_sub_u32 v0, v0, v46
    v_sub_u32 v1, v1, v47
    v_add_u32 v24, v0, v1
    v_mov_b32 v25, v24
""")
        wave_scan(a, 25)
        a(f"""
    v_readlane_b32 s24, v25, 63
    v_sub_u32 v24, v25, v24
    v_lshl_add_u32 v27, v24, 5, s{S_REGION}
    v_lshl_add_u32 v29, v0, 5, v27
    v_and_b32 v42, 2, v42
    v_and_b32 v43, 2, v43
    v_lshlrev_b32 v46, 3, v42
    v_lshlrev_b32 v47, 3, v43
    v_sub_u32 v27, v27, v46
    v_sub_u32 v29, v29, v47
    v_lshl_add_u32 v46, v40, 3, v27
    v_lshl_add_u32 v47, v41, 3, v29
    ds_bpermute_b32 v26, v44, v46
    ds_bpermute_b32 v28, v45, v47
    v_cmp_eq_u32 vcc, 0, v42
    v_cmp_eq_u32 s[26:27], 0, v43
    s_cmp_le_u32 s24, {CAPP}
    s_cbranch_scc1 M_noovf
    v_mov_b32 v30, 1
    ds_write_b32 v4, v30 offset:{L_FLAG}
M_noovf:
    s_waitcnt lgkmcnt(0)
    v_cndmask_b32 v26, v26, v27, vcc
    v_cndmask_b32 v28, v28, v29, s[26:27]
    ds_write_b64 v20, v[26:27] offset:{L_TAB}
    ds_write_b64 v21, v[28:29] offset:{L_TAB}
    s_waitcnt lgkmcnt(0)
""")

    CARRY = OPT.get("carry", 1)
    if CARRY:
        prefix_carry()
    else:
        a(f"""
    v_lshl_add_u32 v20, v20, 5, v14
    v_lshl_add_u32 v21, v21, 5, v14
    ds_read_b32 v0, v20 offset:{L_HIST}
    ds_read_b32 v1, v21 offset:{L_HIST}
    s_waitcnt lgkmcnt(0)
    v_add_u32 v0, 2, v0
    v_add_u32 v1, 2, v1
    v_lshrrev_b32 v0, 2, v0
    v_lshrrev_b32 v1, 2, v1
    v_add_u32 v24, v0, v1
    v_mov_b32 v25, v24
""")
        wave_scan(a, 25)
        a(f"""
    v_readlane_b32 s24, v25, 63
    v_sub_u32 v24, v25, v24
    v_lshl_add_u32 v27, v24, 5, s{S_REGION}
    v_lshl_add_u32 v29, v0, 5, v27
    ds_write_b32 v20, v27 offset:{L_HIST}
    ds_write_b32 v21, v29 offset:{L_HIST}
    s_cmp_le_u32 s24, {CAPP}
    s_cbranch_scc1 M_noovf
    v_mov_b32 v30, 1
    ds_write_b32 v4, v30 offset:{L_FLAG}
M_noovf:
    s_waitcnt lgkmcnt(0)
""")
    pstamp(a, 4)
    a(f"""
    s_barrier
    ds_read_b64 v[20:21], v4 offset:{L_FLAG}
""")
    masked(lambda i, u, k: a(f"ds_read_b32 v{RB+4*i+3}, v{RB+4*i+3} offset:{L_TAB if CARRY else L_HIST}"), "lk")
    for r in range(D):
        a(f"v_mov_b32 v{RING+4*r+1}, v{STAGE+3}")
    a(f"""
    s_waitcnt lgkmcnt(0)
    v_readfirstlane_b32 s24, v20
    v_readfirstlane_b32 s{S_MORE}, v21
    s_cmp_eq_u32 s24, 0
    s_cbranch_scc1 M_go
    s_lshr_b32 s{S_TAKE}, s{S_TAKE}, 1
    s_max_u32 s{S_TAKE}, s{S_TAKE}, 1
    s_waitcnt vmcnt(0)
    s_barrier
    s_branch M_round
M_go:
""")
    pstamp(a, 5)

    def f_scatter(i, u, k):
        r = RB + 4 * i
        a(f"v_lshl_add_u32 v{r+3}, v{RK+i}, 3, v{r+3}")
        a(f"ds_write_b16 v{r+3}, v{r+2} offset:8")
        a(f"ds_write_b64 v{r+3}, v[{r}:{r+1}] offset:{32*(D-1)}")
    masked(f_scatter, "sc")
    a(f"s_waitcnt vmcnt({1 if OPT['warm'] else 0}) lgkmcnt(0)")
    a("s_barrier")
    stamp(a, 3)
    cstamp(a, 1)
    for r in range(D):
        a(f"ds_read_b32 v{RING+4*r}, v{V_PTR} offset:{32*r+8}")
    a(f"ds_read_b64 v[{RING+2}:{RING+3}], v{V_PTR} offset:{32*(D-1)}")
    for st in range(LS):
        a(f"ds_read_b96 v[{STAGE+4*st}:{STAGE+4*st+2}], v{V_PTR} offset:{32*(D+st)}")
    for j in range(5, NSLOT):
        a(f"v_mfma_f32_32x32x16_bf16 v[{ACC+16*j}:{ACC+16*j+15}], v[4:7], v[4:7], 0")
    a(f"s_waitcnt lgkmcnt({LS})")
    for j in range(4):
        a(f"v_perm_b32 v{4+j}, v{RING+3}, v{RING+2}, v{8+j}")
    for r in range(D):
        a(f"buffer_load_dwordx4 v[{RING+4*r}:{RING+4*r+3}], v[{RING+4*r}:{RING+4*r+1}], s[{S_X}:{S_X+3}], 0 idxen offen")
    a(f"s_mov_b32 s{S_PH}, 0")
    if OPT.get("prio") == 2:
        a(f"s_cmp_lt_u32 s{S_WAVE}, 4")
        a("s_cbranch_scc1 M_PE0")
        a("s_setprio 1")
    a("s_branch M_PE0")
    assert D % LS == 0
    for j in range(NSLOT):
        ac = ACC + 16 * j
        for r in range(D):
            nxt = f"M_B{j+1}_{r}" if j + 1 < NSLOT else f"M_PE{r}"
            rg = RING + 4 * r
            st = STAGE + 4 * (r % LS)
            a(f"""
M_B{j}_{r}:
    s_sub_u32 s{S_CNT+j}, s{S_CNT+j}, 1
    s_cbranch_scc1 {nxt}
    s_waitcnt vmcnt({D-1}) lgkmcnt({LS-1})
    v_mfma_f32_32x32x16_bf16 v[{ac}:{ac+15}], v[4:7], v[{rg}:{rg+3}], v[{ac}:{ac+15}]
    buffer_load_dwordx4 v[{rg}:{rg+3}], v[{st+2}:{st+3}], s[{S_X}:{S_X+3}], 0 idxen offen
    v_perm_b32 v4, v{st+1}, v{st}, v8
    v_perm_b32 v5, v{st+1}, v{st}, v9
    v_perm_b32 v6, v{st+1}, v{st}, v10
    v_perm_b32 v7, v{st+1}, v{st}, v11
    ds_read_b96 v[{st}:{st+2}], v{V_PTR} offset:{32*(r+D+LS)}
""")
            if r == D - 1:
                a(f"v_add_u32 v{V_PTR}, {32*D}, v{V_PTR}")
                a(f"s_branch M_B{j}_0")
    for r in range(D):
        a(f"""
M_PE{r}:
    s_cmp_ge_u32 s{S_PH}, {8*P}
    s_cbranch_scc1 M_epi
""")
        for j in range(NSLOT):
            if j % 2 == 0:
                a(f"s_add_u32 s24, s{S_PH}, {j//2}")
            a(f"v_readlane_b32 s{S_CNT+j}, v{j % 2}, s24")
        a(f"s_add_u32 s{S_PH}, s{S_PH}, 8")
        if OPT.get("phbar"):
            a("s_barrier")
        if OPT.get("prio") == 1:
            a(f"s_lshr_b32 s24, s{S_PH}, 1")
            a(f"s_xor_b32 s24, s24, s{S_WAVE}")
            a(f"s_bitcmp1_b32 s24, 2")
            a(f"s_setprio 0")
            a(f"s_cbranch_scc0 M_B0_{r}")
            a(f"s_setprio 1")
        a(f"s_branch M_B0_{r}")
    a("M_epi:")
    if STAMP:
        a("s_waitcnt vmcnt(0) lgkmcnt(0)")
    stamp(a, 4)
    cstamp(a, 2)
    a(f"""
    v_lshrrev_b32 v0, 5, v{L}
    v_lshl_add_u32 v0, v0, 3, v{STAGE+3}
    v_add_u32 v0, s{S_REGION}, v0
    v_and_b32 v4, 15, v{L}
    v_lshrrev_b32 v5, 4, v{L}
    v_mul_u32_u24 v1, {STG}, v4
    v_lshl_add_u32 v1, v5, 4, v1
    v_add_u32 v1, s{S_REGION}, v1
    v_lshlrev_b32 v2, 4, v{L}
    v_add_u32 v2, {L_W}, v2
    s_lshl_b32 s24, s{S_WAVE}, 6
    v_lshl_add_u32 v4, v4, 2, s24
    ds_read_b32 v4, v4 offset:{L_MAP}
    s_mov_b32 s26, 0x80008000
""")

    of = ["", " nt", " sc1", " sc0 sc1"][OPT.get("ost", 1)]
    Q = [[ACC + 16 * j + 4 * kc for j in range(NSLOT)] for kc in range(4)]
    BFS = [[8, 12, 16, 20, 24, 28, 32, 36], Q[0][0:8], Q[2][3:11], Q[3][0:8]]
    BF = {(kc, c, ks): BFS[kc][c * 2 + ks] for kc in range(4) for c in range(4) for ks in range(2)}
    outq = Q[1][0:13] + Q[2][0:3]
    order = [(0, 0), (0, 1), (0, 2), (0, 3)] + [(o, t) for t in range(4) for o in (1, 2, 3)]
    OUT = {ot: outq[i] for i, ot in enumerate(order)}
    AF = Q[0][8:13] + [40, 44]
    GATE = Q[3][8:12]
    NA = len(AF)
    S = Sched(a)

    def f_cvt(kc):
        ops = []
        for j in range(NSLOT):
            q = Q[kc][j]
            ops.append(("valu", f"v_cvt_pk_bf16_f32 v{q}, v{q}, v{q+1}", [q, q + 1], [q]))
            ops.append(("valu", f"v_cvt_pk_bf16_f32 v{q+1}, v{q+2}, v{q+3}", [q + 2, q + 3], [q + 1]))
        return ops

    def f_w(kc):
        return [("dsw", f"ds_write_b64 v0, v[{Q[kc][j]}:{Q[kc][j]+1}] offset:{STG*j}", [Q[kc][j], Q[kc][j] + 1], [])
                for j in range(NSLOT)]

    def f_rb(kc):
        return [("dsr", f"ds_read_b128 v[{BF[kc,c,ks]}:{BF[kc,c,ks]+3}], v1 offset:{c*128+ks*64}", [], R(BF[kc, c, ks]))
                for c in range(4) for ks in range(2)]

    use = {m: [] for m in range(5)}
    negs = []
    for kc in range(4):
        for c in range(4):
            if kc == 0:
                m, o = (0, 0) if c == 0 else (3, c)
            else:
                jj = kc - 1
                if c == 0:
                    m, o = 2, kc
                elif c - 1 == jj:
                    m, o = 1, 0
                else:
                    m, o = 4, 1 + (3 - jj - (c - 1))
                    if c - 1 != (jj + 1) % 3:
                        negs.append((kc, c))
            use[m].append((kc, c, o))
    frs = [(0, ks, t) for t in range(4) for ks in range(2)] + [(3, ks, t) for t in range(4) for ks in range(2)] \
        + [(1, ks, t) for t in range(4) for ks in range(2)] \
        + [(m, ks, t) for t in range(4) for m in (2, 4) for ks in range(2)]

    def f_af(n):
        m, ks, t = frs[n]
        q = AF[n % NA]
        return ("dsr", f"ds_read_b128 v[{q}:{q+3}], v2 offset:{((m*2+ks)*4+t)*1024}", [], R(q))

    def emit(o):
        S.op(o[0], o[1], o[2], o[3])

    for o in f_cvt(0):
        emit(o)
    a("s_waitcnt vmcnt(0) lgkmcnt(0)")
    for o in f_w(0) + f_rb(0):
        emit(o)
    for n in range(NA):
        emit(f_af(n))
    for o in f_cvt(1) + f_w(1):
        emit(o)
    neg_ops = [("valu", f"v_xor_b32 v{BF[kc,c,kk]+i}, s26, v{BF[kc,c,kk]+i}", [BF[kc, c, kk] + i], [BF[kc, c, kk] + i])
               for (kc, c) in negs for kk in range(2) for i in range(4)]
    addr_ops = [
        ("valu", f"v_cmp_gt_u32 vcc, {NPB}, v4", [4], []),
        ("other", f"s_mul_i32 s24, s2, {NPB}", [], []),
        ("valu", "v_add_u32 v4, s24, v4", [4], [4]),
        ("valu", "v_lshlrev_b32 v4, 9, v4", [4], [4]),
        ("valu", "v_lshl_add_u32 v4, v5, 4, v4", [4, 5], [4]),
        ("valu", f"v_mov_b32 v5, {OOB:#x}", [], [5]),
        ("valu", "v_cndmask_b32 v4, v5, v4, vcc", [4, 5], [4]),
        ("other", "s_mov_b32 s24, 0xbfb8aa3b", [], []),
    ]
    fill = f_rb(1) + f_cvt(2) + f_w(2) + f_rb(2) + f_cvt(3) + f_w(3) + f_rb(3) + addr_ops + neg_ops
    gate_ops = []
    for t in range(4):
        for i in range(4):
            gate_ops.append(("valu", f"v_mul_f32 v{GATE[t]+i}, s24, v{OUT[0,t]+i}", [OUT[0, t] + i], [GATE[t] + i]))
    G = [GATE[t] + i for t in range(4) for i in range(4)]
    gate_ops += [("trans", f"v_exp_f32 v{g}, v{g}", [g], [g]) for g in G]
    gate_ops += [("valu", f"v_add_f32 v{g}, 1.0, v{g}", [g], [g]) for g in G]
    gate_ops += [("trans", f"v_rcp_f32 v{g}, v{g}", [g], [g]) for g in G]
    PK = [8, 12, 16, 20, 24, 28, 32, 36]

    def f_store(o, k):
        ops = []
        p = PK[o * 2 + k]
        d0, d1 = OUT[o, 2 * k], OUT[o, 2 * k + 1]
        if o:
            for t in (2 * k, 2 * k + 1):
                d = OUT[o, t]
                g = GATE[t]
                ops.append(("valu", f"v_pk_mul_f32 v[{d}:{d+1}], v[{d}:{d+1}], v[{g}:{g+1}]", [d, d + 1, g, g + 1], [d, d + 1]))
                ops.append(("valu", f"v_pk_mul_f32 v[{d+2}:{d+3}], v[{d+2}:{d+3}], v[{g+2}:{g+3}]", [d + 2, d + 3, g + 2, g + 3], [d + 2, d + 3]))
        for i, dd in enumerate((d0, d0 + 2, d1, d1 + 2)):
            ops.append(("valu", f"v_cvt_pk_bf16_f32 v{p+i}, v{dd}, v{dd+1}", [dd, dd + 1], [p + i]))
        ops.append(("store", f"buffer_store_dwordx4 v[{p}:{p+3}], v4, s[{S_OUT}:{S_OUT+3}], 0 offen offset:{o*128+k*64}{of}",
                    R(p) + [4], []))
        return ops

    def gemm(S, fill, late):
        fill = list(fill)
        touched = set()
        for n, (m, ks, t) in enumerate(frs):
            if n in (14, 16, 24):
                lim = {14: len(f_rb(1) + f_cvt(2) + f_w(2)), 16: 3 * 8 + 2 * 39, 24: 10 ** 6}[n]
                while fill and done[0] < lim:
                    emit(fill.pop(0))
                    done[0] += 1
            fill += late.get(n, [])
            q = AF[n % NA]
            for (kc, c, o) in use[m]:
                b = BF[kc, c, ks]
                d = OUT[o, t]
                first = (o, t) not in touched
                touched.add((o, t))
                cin = "0" if first else f"v[{d}:{d+3}]"
                S.op("mfma", f"v_mfma_f32_16x16x32_bf16 v[{d}:{d+3}], v[{q}:{q+3}], v[{b}:{b+3}], {cin}",
                     R(q) + R(b), R(d), [] if first else R(d))
                for _ in range(FPM):
                    if fill:
                        emit(fill.pop(0))
                        done[0] += 1
            if n + NA < len(frs):
                emit(f_af(n + NA))
        return fill

    FPM = OPT.get("fpm", 3)
    done = [0]
    a(f"s_or_b32 s27, s{S_C0}, s{S_MORE}")
    a("s_cmp_eq_u32 s27, 0")
    a("s_cbranch_scc0 M_multi")
    import copy
    S2 = copy.deepcopy(S)
    S2.a = a
    late = {25: gate_ops + f_store(0, 0) + f_store(0, 1),
            33: f_store(1, 0) + f_store(2, 0) + f_store(3, 0)}
    rest = gemm(S, fill, late)
    for o in rest + f_store(1, 1) + f_store(2, 1) + f_store(3, 1):
        emit(o)
    a("s_branch M_end")
    a("M_multi:")
    S = S2
    done = [0]
    rest = gemm(S, fill, {})
    for o in rest:
        emit(o)
    a(f"""
    s_nop 7
    v_lshlrev_b32 v0, 1, v4
    v_cndmask_b32 v0, v5, v0, vcc
    s_cmp_eq_u32 s{S_C0}, 0
    s_cbranch_scc1 M_noload
""")

    def poff(o, t):
        return o * 256 + (t >> 1) * 128 + (t & 1) * 16
    for o in range(4):
        for t in range(4):
            a(f"buffer_load_dwordx4 v[{8+4*t}:{11+4*t}], v0, s[{S_PART}:{S_PART+3}], 0 offen offset:{poff(o,t)} sc1")
        a("s_waitcnt vmcnt(0)")
        for t in range(4):
            for i in range(4):
                a(f"v_add_f32 v{OUT[o,t]+i}, v{OUT[o,t]+i}, v{8+4*t+i}")
    a(f"""
M_noload:
    s_cmp_eq_u32 s{S_MORE}, 0
    s_cbranch_scc1 M_final
""")
    for o in range(4):
        for t in range(4):
            q = OUT[o, t]
            a(f"buffer_store_dwordx4 v[{q}:{q+3}], v0, s[{S_PART}:{S_PART+3}], 0 offen offset:{poff(o,t)} sc1")
    a(f"""
    s_add_u32 s{S_C0}, s{S_C0}, s{S_TAKE}
    s_waitcnt vmcnt(0) lgkmcnt(0)
    s_barrier
    s_branch M_round
M_final:
""")
    S = Sched(a)
    for o in gate_ops:
        emit(o)
    for o in range(4):
        for k in range(2):
            for op in f_store(o, k):
                emit(op)
    a("M_end:")
    if OPT.get("es"):
        stamp(a, 3)
    if STAMP:
        a("s_waitcnt vmcnt(0)")
    stamp(a, 5)
    stamp_flush(a, 16, 1, 0, S_WAVE)
    a("""
M_done:
    s_endpgm
""")


def descriptor(name, vgpr, sgpr):
    acc = (vgpr + 3) // 4 * 4
    return f"""
.p2align 6
.amdhsa_kernel {name}
  .amdhsa_next_free_vgpr {vgpr}
  .amdhsa_next_free_sgpr {sgpr}
  .amdhsa_accum_offset {acc}
  .amdhsa_group_segment_fixed_size 0
  .amdhsa_kernarg_size 96
  .amdhsa_user_sgpr_count 2
  .amdhsa_user_sgpr_kernarg_segment_ptr 1
  .amdhsa_system_sgpr_workgroup_id_x 1
  .amdhsa_float_denorm_mode_32 3
.end_amdhsa_kernel
"""


def main():
    global STAMP
    for arg in list(sys.argv):
        if "=" in arg:
            k, v = arg.split("=")
            OPT[k] = int(v)
            sys.argv.remove(arg)
    if "--stamp" in sys.argv:
        STAMP = True
        sys.argv.remove("--stamp")
    ref = open(f"cdna_kernels/{NAME}.s.ref").read().split("\n")
    head = [l for l in ref if l.startswith(";") and "@launch" not in l and "Override launch" not in l
            and "grid=ceil" not in l]
    a = Asm()
    gen_part(a)
    gen_main(a)
    out = "\n".join(head) + "\n"
    out += f"; @launch kernel=part_kernel grid=({NC+6},1,1) block=(832,1,1) lds={K1_LDS}\n"
    out += f"; @launch kernel=main_kernel grid=({NB},1,1) block=(512,1,1) lds={L_TOTAL}\n"
    out += '.amdgcn_target "amdgcn-amd-amdhsa--gfx950"\n.text\n'
    out += a.text()
    out += '.section .rodata,"a"\n'
    out += descriptor("part_kernel", 84, 102 if STAMP else 32)
    out += descriptor("main_kernel", 256, 102)
    path = sys.argv[1] if len(sys.argv) > 1 else f"cdna_kernels/{NAME}.s"
    open(path, "w").write(out)
    print("wrote", path, len(out), "bytes; LDS", L_TOTAL, "CAPP", CAPP)


if __name__ == "__main__":
    main()
```

```python
import sys

NAME = "standalone__tensor_product_equiv_equiformer__graph"
N = 25000
E = 800000
NPB = 98
NB = 256
NC = 250
CH = 3200
P = 8
PH = (N + P - 1) // P
NSLOT = 13
import os
D = int(os.environ.get("DD", "6"))
LS = int(os.environ.get("LSS", "3"))
RECB = 12

OPT = {"st": 1, "warm": 1, "stage": 1, "ld": 0, "bal": 0, "prio": 0, "cpf": 0}

REC_OFF = 0
REC_BYTES = NC * CH * RECB
DESC_OFF = 0x1000000
WIMG_OFF = 0x1100000
WIMG_BYTES = 5 * 8192
PART_OFF = 0x2000000
PART_BYTES = NB * NPB * 1024

L_FLAG = 0
L_DUMMY = 256
L_HIST = 512
L_TAB = L_HIST + 4096
L_RANK = L_TAB + 8192
L_MAP = L_RANK + 512
L_W = L_MAP + 512
L_REG = L_W + WIMG_BYTES
REGB = 10240
L_TOTAL = L_REG + 8 * REGB
CAPP = REGB // 32 - (D + LS + 2)
STG = 528
OOB = 0x7FFFF000
PADIDX = 0x7FFF

STAMP = False
STAMP_OFF = 0x8000000


def magic(div, maxv):
    for k in range(31, 15, -1):
        m = -(-(1 << k) // div)
        if m < (1 << 24) and m * maxv < (1 << 32):
            e = m * div - (1 << k)
            if e * maxv < (1 << k):
                assert all((v * m) >> k == v // div for v in range(maxv + 1))
                return m, k
    raise ValueError


class Asm:
    def __init__(self):
        self.lines = []

    def __call__(self, s):
        for ln in s.strip("\n").split("\n"):
            ln = ln.strip()
            if ln:
                self.lines.append(("" if ln.endswith(":") else "    ") + ln)

    def text(self):
        return "\n".join(self.lines) + "\n"


def srd(a, d, base, nrec, add=0, stride=0):
    if add:
        a(f"s_add_u32 s{d}, s{base}, {add}")
        a(f"s_addc_u32 s{d+1}, s{base+1}, 0")
        a(f"s_and_b32 s{d+1}, s{d+1}, 0xffff")
    else:
        a(f"s_mov_b32 s{d}, s{base}")
        a(f"s_and_b32 s{d+1}, s{base+1}, 0xffff")
    if stride:
        a(f"s_or_b32 s{d+1}, s{d+1}, {stride << 16:#x}")
    a(f"s_mov_b32 s{d+2}, {nrec}")
    a(f"s_mov_b32 s{d+3}, 0x20000")


def pstamp(a, k):
    if STAMP and OPT.get("ps"):
        a("s_memrealtime s[42:43]")
        a("s_waitcnt lgkmcnt(0)")
        a(f"s_mov_b32 s{96+k}, s42")


MAINK = [False]


def stamp(a, k):
    if OPT.get("ps") and MAINK[0] and k not in (0, 3):
        return
    if STAMP:
        a("s_memrealtime s[42:43]")
        a("s_waitcnt lgkmcnt(0)")
        a(f"s_mov_b32 s{96+k}, s42")


def cstamp(a, k):
    if STAMP and OPT.get("clk"):
        a("s_memtime s[42:43]")
        a("s_waitcnt lgkmcnt(0)")
        a(f"s_mov_b32 s{96+k}, s42")


def stamp_flush(a, wsreg, kern, vt, swave):
    if STAMP:
        a("s_mov_b64 exec, 1")
        a(f"s_lshl_b32 s42, s2, 4")
        a(f"s_add_u32 s42, s42, s{swave}")
        a(f"s_lshl_b32 s42, s42, 5")
        a(f"s_add_u32 s42, s42, {STAMP_OFF + kern * 0x100000}")
        a(f"v_mov_b32 v{vt}, s42")
        for k in range(6):
            a(f"v_mov_b32 v{vt+1}, s{96+k}")
            a(f"global_store_dword v{vt}, v{vt+1}, s[{wsreg}:{wsreg+1}] offset:{4*k}")
            a("s_nop 1")


def wave_scan(a, v):
    for sh in (1, 2, 4, 8):
        a("s_nop 1")
        a(f"v_add_u32_dpp v{v}, v{v}, v{v} row_shr:{sh} row_mask:0xf bank_mask:0xf bound_ctrl:0")
    a("s_nop 1")
    a(f"v_add_u32_dpp v{v}, v{v}, v{v} row_bcast:15 row_mask:0xa bank_mask:0xf")
    a("s_nop 1")
    a(f"v_add_u32_dpp v{v}, v{v}, v{v} row_bcast:31 row_mask:0xc bank_mask:0xf")
    a("s_nop 1")


class Sched:
    def __init__(self, a):
        self.a = a
        self.lds = []
        self.slot = 0
        self.vw = {}
        self.tw = {}
        self.mw = {}
        self.mc = {}
        self.sw = {}

    def _emit(self, t):
        self.a(t)
        self.slot += 1

    def _nop(self, need):
        while need > 0:
            k = min(need, 8)
            self.a(f"s_nop {k-1}")
            self.slot += k
            need -= k

    def op(self, kind, text, reads=(), writes=(), srcc=()):
        reads, writes, srcc = set(reads), set(writes), set(srcc)
        touched = reads | writes | srcc
        last = -1
        for i, d in enumerate(self.lds):
            if d & touched:
                last = i
        if last >= 0:
            n = len(self.lds) - 1 - last
            self._emit(f"s_waitcnt lgkmcnt({min(n, 15)})")
            self.lds = self.lds[len(self.lds) - min(n, 15):] if n else []
        need = 0
        if kind == "mfma":
            for r in reads | srcc:
                if r in self.vw:
                    need = max(need, 2 - (self.slot - self.vw[r] - 1))
            for r in reads:
                if r in self.mw:
                    need = max(need, 8 - (self.slot - self.mw[r] - 1))
        else:
            for r in reads | writes:
                if r in self.mw:
                    need = max(need, 8 - (self.slot - self.mw[r] - 1))
            for r in writes:
                if r in self.mc:
                    need = max(need, 3 - (self.slot - self.mc[r] - 1))
                if r in self.sw:
                    need = max(need, 2 - (self.slot - self.sw[r] - 1))
            if kind in ("valu", "store", "dsw"):
                for r in reads:
                    if r in self.tw:
                        need = max(need, 1 - (self.slot - self.tw[r] - 1))
        self._nop(need)
        me = self.slot
        self._emit(text)
        if kind in ("valu", "trans"):
            for r in writes:
                self.vw[r] = me
                if kind == "trans":
                    self.tw[r] = me
        elif kind == "mfma":
            for r in writes:
                self.mw[r] = me
            for r in srcc:
                self.mc[r] = me
        elif kind == "dsr":
            self.lds.append(writes)
        elif kind == "dsw":
            self.lds.append(set())
        elif kind == "store":
            for r in reads:
                self.sw[r] = me


def R(b, n=4):
    return list(range(b, b + n))


def stflags():
    return ["", " sc1", " sc0 sc1", " nt"][OPT["st"]]


K1_STG = 1024
K1_LDS = K1_STG + 832 * 48


def gen_part(a):
    mB, kB = magic(NPB, 32767)
    G = OPT.get("stag", 1)
    NPH = OPT.get("nph", 8)
    PHS = -(-N * G // (NPH * G - (G - 1)))
    PHS = -(-PHS // G) * G
    assert (N - 1 + (G - 1) * (PHS // G)) // PHS <= 7
    mP, kP = magic(PHS, 32767)
    sf = stflags()
    lf = ["", " nt", " sc1", " sc0 sc1 nt"][OPT.get("ld", 0)]
    a(f"""
.p2align 8
.globl part_kernel
.type part_kernel,@function
part_kernel:
    s_cmp_ge_u32 s2, {NC + 6}
    s_cbranch_scc1 P_done
    s_load_dwordx4 s[4:7], s[0:1], 8
    s_load_dwordx4 s[8:11], s[0:1], 24
    s_load_dwordx4 s[12:15], s[0:1], 40
    s_load_dwordx2 s[16:17], s[0:1], 56
    s_load_dwordx2 s[18:19], s[0:1], 88
    s_load_dwordx2 s[28:29], s[0:1], 0
    s_cmp_ge_u32 s2, {NC}
    s_cbranch_scc1 P_prep
""")
    if STAMP:
        a("v_lshrrev_b32 v1, 6, v0")
        a("s_nop 0")
        a("v_readfirstlane_b32 s41, v1")
    stamp(a, 0)
    a(f"""
    v_lshlrev_b32 v1, 2, v0
    v_mov_b32 v2, 0
    v_cmp_gt_u32 vcc, 256, v0
    s_and_saveexec_b64 s[20:21], vcc
    ds_write_b32 v1, v2
    s_mov_b64 exec, s[20:21]
    s_mul_i32 s3, s2, {CH}
    v_lshl_add_u32 v3, v0, 2, s3
    v_lshlrev_b32 v4, 2, v3
    v_lshlrev_b32 v5, 1, v3
    v_mul_u32_u24 v6, 6, v3
    v_cmp_gt_u32 vcc, {CH // 4}, v0
    s_and_saveexec_b64 s[20:21], vcc
    s_waitcnt lgkmcnt(0)
    global_load_dwordx4 v[8:11], v4, s[10:11]{lf}
    s_barrier
    global_load_dwordx4 v[12:15], v4, s[8:9]{lf}
    global_load_dwordx2 v[16:17], v5, s[6:7]{lf}
    global_load_dwordx4 v[20:23], v6, s[4:5]{lf}
    global_load_dwordx2 v[24:25], v6, s[4:5] offset:16{lf}
""")
    a(f"""
    v_mov_b32 v2, 1
    s_waitcnt vmcnt(4)
""")
    stamp(a, 1)
    for i in range(4):
        a(f"""
    v_mul_u32_u24 v{28+i}, {mB}, v{8+i}
    v_lshrrev_b32 v{28+i}, {kB}, v{28+i}
    v_min_u32 v{28+i}, 255, v{28+i}
    v_lshlrev_b32 v{36+i}, 2, v{28+i}
    ds_add_rtn_u32 v{32+i}, v{36+i}, v2
""")
    if OPT.get("cpf", 1):
        a(f"""
    s_getpc_b64 s[24:25]
P_pc:
    s_add_u32 s24, s24, main_kernel-P_pc
    s_addc_u32 s25, s25, 0
    s_lshr_b32 s3, s2, 3
    s_lshl_b32 s3, s3, 10
    v_subrev_u32 v26, {CH//4 - 16}, v0
    v_lshl_add_u32 v26, v26, 6, s3
    v_min_u32 v26, M_multi-main_kernel, v26
    s_movk_i32 s3, {CH//4 - 16}
    v_cmp_le_u32 s[26:27], s3, v0
    s_and_b64 exec, exec, s[26:27]
    s_cbranch_execz P_nopf
    global_load_dword v27, v26, s[24:25]
P_nopf:
    """)
    a(f"""
    s_mov_b64 exec, -1
    s_waitcnt lgkmcnt(0)
    s_barrier
    v_cmp_gt_u32 vcc, 64, v0
    s_cbranch_vccz P_skipscan
    v_lshlrev_b32 v1, 4, v0
    ds_read_b128 v[72:75], v1
    s_waitcnt lgkmcnt(0)
    v_add_u32 v76, v72, v73
    v_add_u32 v77, v76, v74
    v_add_u32 v78, v77, v75
    v_mov_b32 v79, v78
""")
    wave_scan(a, 79)
    a(f"""
    v_sub_u32 v80, v79, v78
    v_add_u32 v81, v80, v72
    v_add_u32 v82, v80, v76
    v_add_u32 v83, v80, v77
    ds_write_b128 v1, v[80:83]
    v_lshl_or_b32 v72, v72, 16, v80
    v_lshl_or_b32 v73, v73, 16, v81
    v_lshl_or_b32 v74, v74, 16, v82
    v_lshl_or_b32 v75, v75, 16, v83
    s_lshl_b32 s3, s2, 2
    s_add_u32 s3, s3, {DESC_OFF}
    v_lshlrev_b32 v1, 12, v0
    v_add_u32 v1, s3, v1
    global_store_dword v1, v72, s[18:19]
    global_store_dword v1, v73, s[18:19] offset:1024
    global_store_dword v1, v74, s[18:19] offset:2048
    global_store_dword v1, v75, s[18:19] offset:3072
    s_waitcnt lgkmcnt(0)
P_skipscan:
    v_cmp_gt_u32 vcc, {CH // 4}, v0
    s_and_saveexec_b64 s[20:21], vcc
    s_movk_i32 s22, {NPB}
    s_mov_b32 s23, 0xffff0000
""")
    for i in range(4):
        a(f"""
    v_mul_u32_u24 v1, s22, v{28+i}
    v_sub_u32 v1, v{8+i}, v1
    v_and_b32 v1, 127, v1
    v_lshlrev_b32 v{8+i}, 21, v1
""")
        if G > 1:
            a(f"v_and_b32 v{72+i}, {G-1}, v{28+i}")
            a(f"v_mul_u32_u24 v{72+i}, {PHS//G}, v{72+i}")
    a("s_barrier")
    stamp(a, 2)
    for i in range(4):
        a(f"ds_read_b32 v{28+i}, v{36+i}")
    a("s_waitcnt vmcnt(0)")
    stamp(a, 3)
    if OPT.get("k1warm"):
        a(f"""
    s_mul_i32 s3, s2, {100*512}
    v_lshl_add_u32 v76, v0, 7, s3
    v_cmp_gt_u32 vcc, 400, v0
    s_and_saveexec_b64 s[26:27], vcc
    s_cbranch_execz P_now
    global_load_dword v77, v76, s[28:29]
P_now:
    s_mov_b64 exec, s[26:27]
""")
    for i in range(4):
        r = 40 + 4 * i
        if G > 1:
            a(f"v_add_u32 v4, v{72+i}, v{12+i}")
        a(f"""
    v_mul_u32_u24 v4, {mP}, v{4 if G > 1 else 12+i}
    v_lshrrev_b32 v4, {kP}, v4
    v_min_u32 v4, {NPH-1}, v4
""")
        a(f"""
    v_lshl_or_b32 v4, v4, 18, v{8+i}
    v_and_b32 v3, 0x7fff, v{12+i}
    v_or_b32 v{r+2}, v3, v4
""")
    for i in range(4):
        src = 16 + i // 2
        if i % 2 == 0:
            a(f"v_lshlrev_b32 v{56+i}, 16, v{src}")
        else:
            a(f"v_and_b32 v{56+i}, s23, v{src}")
    for k in range(12):
        src = 20 + k // 2
        if k % 2 == 0:
            a(f"v_lshlrev_b32 v{60+k}, 16, v{src}")
        else:
            a(f"v_and_b32 v{60+k}, s23, v{src}")
    for i in range(4):
        r = 40 + 4 * i
        for j in range(3):
            a(f"v_mul_f32 v{60+3*i+j}, v{56+i}, v{60+3*i+j}")
        a(f"v_cvt_pk_bf16_f32 v{r}, v{56+i}, v{60+3*i}")
        a(f"v_cvt_pk_bf16_f32 v{r+1}, v{61+3*i}, v{62+3*i}")
    a("s_waitcnt lgkmcnt(0)")
    a(f"s_mul_i32 s3, s2, {CH * RECB}")
    if OPT["stage"]:
        for i in range(4):
            r = 40 + 4 * i
            a(f"""
    v_add_u32 v{28+i}, v{28+i}, v{32+i}
    v_mul_u32_u24 v{28+i}, {RECB}, v{28+i}
    v_add_u32 v{28+i}, {K1_STG}, v{28+i}
    ds_write2_b32 v{28+i}, v{r}, v{r+1} offset0:0 offset1:1
    ds_write_b32 v{28+i}, v{r+2} offset:8
""")
        nq = CH * RECB // 16
        a(f"""
    s_mov_b64 exec, -1
    v_lshlrev_b32 v1, 4, v0
    v_add_u32 v2, s3, v1
    s_waitcnt lgkmcnt(0)
    s_barrier
""")
        for i in range(3):
            a(f"ds_read_b128 v[{8+4*i}:{11+4*i}], v1 offset:{K1_STG + 832*16*i}")
        a(f"v_add_u32 v3, {832*16}, v2")
        a(f"v_add_u32 v4, {2*832*16}, v2")
        a(f"v_cmp_gt_u32 vcc, {nq - 2*832}, v0")
        a("s_waitcnt lgkmcnt(2)")
        a(f"global_store_dwordx4 v2, v[8:11], s[18:19]{sf}")
        a("s_waitcnt lgkmcnt(1)")
        a(f"global_store_dwordx4 v3, v[12:15], s[18:19]{sf}")
        a("s_and_saveexec_b64 s[20:21], vcc")
        a("s_cbranch_execz P_fin")
        a("s_waitcnt lgkmcnt(0)")
        a(f"global_store_dwordx4 v4, v[16:19], s[18:19]{sf}")
        a("P_fin:")
    else:
        a(f"s_movk_i32 s22, {RECB}")
        for i in range(4):
            r = 40 + 4 * i
            a(f"""
    v_add_u32 v{28+i}, v{28+i}, v{32+i}
    v_mul_u32_u24 v{28+i}, {RECB}, v{28+i}
    v_add_u32 v{28+i}, s3, v{28+i}
    global_store_dwordx3 v{28+i}, v[{r}:{r+2}], s[18:19]{sf}
""")
    stamp(a, 4)
    if STAMP:
        a("s_waitcnt vmcnt(0)")
    stamp(a, 5)
    stamp_flush(a, 18, 0, 1, 41)
    a("s_branch P_done")
    a(f"""
P_prep:
    s_waitcnt lgkmcnt(0)
    s_lshl_b32 s3, s2, 2
    s_add_u32 s3, s3, {DESC_OFF}
    v_lshlrev_b32 v1, 10, v0
    v_add_u32 v1, s3, v1
    v_mov_b32 v2, 0
    v_cmp_gt_u32 vcc, 256, v0
    s_and_saveexec_b64 s[20:21], vcc
    s_cbranch_execz P_prep1
    global_store_dword v1, v2, s[18:19]
P_prep1:
    s_mov_b64 exec, s[20:21]
    s_sub_u32 s3, s2, {NC}
    s_cmp_eq_u32 s3, 5
    s_cbranch_scc1 P_done
    v_cmp_gt_u32 vcc, 512, v0
    s_and_saveexec_b64 s[20:21], vcc
    s_cbranch_execz P_done
    s_cmp_lt_u32 s3, 2
    s_cselect_b32 s24, s14, s16
    s_cselect_b32 s25, s15, s17
    s_sub_u32 s22, s3, 2
    s_cselect_b32 s22, s3, s22
    s_lshl_b32 s22, s22, 13
    v_lshrrev_b32 v1, 8, v0
    v_bfe_u32 v2, v0, 4, 2
    v_lshl_add_u32 v1, v2, 2, v1
    s_lshl_b32 s23, s3, 7
    v_lshl_add_u32 v4, v1, 3, s23
    global_load_dwordx2 v[16:17], v4, s[12:13]
    global_load_dwordx2 v[18:19], v4, s[12:13] offset:16
    v_lshlrev_b32 v1, 9, v1
    v_bfe_u32 v2, v0, 7, 1
    v_bfe_u32 v3, v0, 2, 2
    v_lshl_add_u32 v2, v2, 2, v3
    v_bfe_u32 v3, v0, 6, 1
    v_lshl_add_u32 v2, v2, 1, v3
    v_and_b32 v3, 3, v0
    v_lshl_add_u32 v2, v2, 2, v3
    v_lshl_add_u32 v1, v2, 1, v1
    v_add_u32 v1, s22, v1
""")
    for e in range(8):
        a(f"global_load_ushort v{8+e}, v1, s[24:25] offset:{128*(8*(e>>2)+(e&3))}")
    a(f"""
    s_lshl_b32 s3, s3, 13
    s_add_u32 s3, s3, {WIMG_OFF}
    v_lshl_add_u32 v1, v0, 4, s3
    s_mov_b32 s23, 0xffff0000
    s_waitcnt vmcnt(0)
""")
    for e in range(8):
        a(f"v_lshlrev_b32 v{8+e}, 16, v{8+e}")
        if e % 2 == 0:
            a(f"v_lshlrev_b32 v2, 16, v{16+e//2}")
        else:
            a(f"v_and_b32 v2, s23, v{16+e//2}")
        a(f"v_mul_f32 v{8+e}, v{8+e}, v2")
    for e in range(4):
        a(f"v_cvt_pk_bf16_f32 v{4+e}, v{8+2*e}, v{9+2*e}")
    a(f"""
    global_store_dwordx4 v1, v[4:7], s[18:19]
P_done:
    s_endpgm
""")


ACC = 48
RING = 12 + 4 * max(LS, 3)
STAGE = 12
V_PTR = 2
V_LANE = 3
S_X = 4
S_REC = 8
S_OUT = 12
S_WS = 16
S_WAVE = 18
S_C0 = 19
S_TAKE = 20
S_MORE = 21
S_REGION = 22
S_PH = 23
S_T = 24
S_CNT = 28
S_LEV = 41
S_MASK = 44
S_PART = 92
NSUB = 3


def gen_main(a):
    MAINK[0] = True
    L = V_LANE
    NU = 6
    RB = 160
    RK = 132
    DS = 128
    BAL = OPT.get("bal", 1)
    a(f"""
.p2align 8
.globl main_kernel
.type main_kernel,@function
main_kernel:
    s_cmp_ge_u32 s2, {NB}
    s_cbranch_scc1 M_done
    s_load_dwordx2 s[16:17], s[0:1], 88
    s_load_dwordx2 s[24:25], s[0:1], 0
    s_load_dwordx2 s[26:27], s[0:1], 72
    v_lshrrev_b32 v1, 6, v0
    v_and_b32 v{L}, 63, v0
    v_readfirstlane_b32 s{S_WAVE}, v1
    s_mov_b32 s{S_C0}, 0
    s_movk_i32 s{S_TAKE}, 48
    s_mul_i32 s{S_REGION}, s{S_WAVE}, {REGB}
    s_add_u32 s{S_REGION}, s{S_REGION}, {L_REG}
""")
    if OPT.get("bperm", 1):
        a("""
    s_and_b32 s3, s2, 7
    s_lshl_b32 s3, s3, 5
    s_lshr_b32 s2, s2, 3
    s_or_b32 s2, s2, s3
""")
    a("s_waitcnt lgkmcnt(0)")
    stamp(a, 0)
    srd(a, S_X, 24, N, stride=512)
    srd(a, S_OUT, 26, N * 512)
    srd(a, S_REC, 16, WIMG_OFF + WIMG_BYTES)
    srd(a, S_PART, 16, PART_BYTES, PART_OFF)

    def any_level(u):
        m = S_MASK + 2 * (u * 4)
        a(f"s_or_b64 s[26:27], s[{m}:{m+1}], s[{m+2}:{m+3}]")
        a(f"s_or_b64 s[26:27], s[26:27], s[{m+4}:{m+5}]")
        a(f"s_or_b64 s[26:27], s[26:27], s[{m+6}:{m+7}]")

    def masked(fn, tag, pre=None):
        for u in range(2, NU):
            a(f"s_cmp_eq_u32 s{S_LEV}, {u}")
            a(f"s_cbranch_scc1 M_{tag}_{u-1}")
        for u in range(NU - 1, -1, -1):
            a(f"M_{tag}_{u}:")
            for k in range(4):
                i = u * 4 + k
                m = S_MASK + 2 * i
                if pre:
                    pre(i, u, k)
                a(f"s_mov_b64 exec, s[{m}:{m+1}]")
                fn(i, u, k)
        a("s_mov_b64 exec, -1")

    a(f"""
M_round:
    v_lshrrev_b32 v1, 3, v{L}
    s_lshl_b32 s24, s{S_WAVE}, 3
    v_add_u32 v1, s24, v1
    s_lshl_b32 s24, s2, 10
    s_add_u32 s24, s24, {DESC_OFF}
    v_lshl_add_u32 v4, v1, 4, s24
    global_load_dwordx4 v[{DS}:{DS+3}], v4, s[16:17]
    s_lshl_b32 s24, s{S_WAVE}, 9
    v_lshl_add_u32 v0, v{L}, 3, s24
    v_mov_b32 v4, 0
    v_mov_b32 v5, 0
    v_mov_b32 v6, {PADIDX:#x}
    v_mov_b32 v7, 0
    ds_write_b64 v0, v[4:5] offset:{L_HIST}
    ds_write_b64 v4, v[4:5] offset:{L_FLAG}
    v_lshlrev_b32 v2, 3, v{L}
    ds_write_b64 v2, v[4:5] offset:{L_RANK}
    v_lshl_add_u32 v2, v{L}, 4, s{S_REGION}
""")
    for i in range(REGB // 1024):
        a(f"ds_write_b128 v2, v[4:7] offset:{1024*i}")
    a(f"""
    s_mov_b32 s24, {4*CH*RECB}
    v_mul_lo_u32 v1, v1, s24
    v_and_b32 v0, 7, v{L}
    v_add_u32 v0, s{S_C0}, v0
    s_movk_i32 s24, {RECB}
    v_mad_u32_u24 v1, v0, s24, v1
    s_add_u32 s25, s{S_C0}, s{S_TAKE}
    v_mov_b32 v24, 0
    v_mov_b32 v25, {OOB:#x}
    s_waitcnt vmcnt(0)
""")
    stamp(a, 1)
    for k in range(4):
        d = DS + k
        a(f"""
    v_lshrrev_b32 v26, 16, v{d}
    v_max_u32 v24, v24, v26
    v_min_u32 v26, s25, v26
    v_sub_u32 v26, v26, v0
    v_and_b32 v{d}, 0xffff, v{d}
    v_mad_u32_u24 v{d}, v{d}, s24, v1
""")
        for u in range(NU):
            m = S_MASK + 2 * (u * 4 + k)
            a(f"v_cmp_lt_i32 s[{m}:{m+1}], {8*u}, v26")
        if k < 3:
            a(f"v_add_u32 v1, {CH*RECB}, v1")
    a(f"s_mov_b32 s{S_LEV}, 2")
    for u in range(2, NU):
        any_level(u)
        a(f"s_cselect_b32 s{S_LEV}, {u+1}, s{S_LEV}")
    for u in range(2, NU):
        a(f"s_cmp_eq_u32 s{S_LEV}, {u}")
        a(f"s_cbranch_scc1 M_ld_{u-1}")
    for u in range(NU - 1, -1, -1):
        a(f"M_ld_{u}:")
        for k in range(4):
            i = u * 4 + k
            m = S_MASK + 2 * i
            r = RB + 4 * i
            a(f"v_cndmask_b32 v{r+3}, v25, v{DS+k}, s[{m}:{m+1}]")
            a(f"buffer_load_dwordx3 v[{r}:{r+2}], v{r+3}, s[{S_REC}:{S_REC+3}], 0 offen offset:{8*RECB*u}")
    a(f"""
    s_waitcnt lgkmcnt(0)
    s_barrier
    v_cmp_lt_u32 vcc, s25, v24
    s_and_saveexec_b64 s[26:27], vcc
    v_mov_b32 v1, 1
    ds_write_b32 v4, v1 offset:{L_FLAG+4}
    s_mov_b64 exec, -1
    v_mov_b32 v6, 0
    v_and_b32 v12, 31, v{L}
    v_lshrrev_b32 v24, 5, v{L}
    v_lshl_add_u32 v{V_PTR}, v24, 4, s{S_REGION}
""")
    for j in range(5):
        a(f"v_mfma_f32_32x32x16_bf16 v[{ACC+16*j}:{ACC+16*j+15}], v[4:7], v[4:7], 0")
    a(f"""
    v_lshrrev_b32 v24, 3, v12
    v_lshlrev_b32 v24, 1, v24
    v_add_u32 v25, 1, v24
    v_lshl_or_b32 v24, v25, 8, v24
    v_and_b32 v25, 1, v12
    v_lshlrev_b32 v25, 4, v25
    v_mov_b32 v26, 0xffff
    v_lshlrev_b32 v26, v25, v26
    v_lshlrev_b32 v24, v25, v24
    v_mov_b32 v27, 0x0c0c0c0c
    v_bfi_b32 v24, v26, v24, v27
    v_bfe_u32 v25, v12, 1, 2
""")
    for j in range(4):
        a(f"v_cmp_eq_u32 vcc, {j}, v25")
        a("s_nop 1")
        a(f"v_cndmask_b32 v{8+j}, v27, v24, vcc")
    a(f"v_lshlrev_b32 v{STAGE+3}, 4, v12")
    if OPT["warm"]:
        a(f"""
    s_and_b32 s24, s2, {31 if OPT.get("k1warm") else 255}
    s_lshl_b32 s24, s24, 3
    s_add_u32 s24, s24, s{S_WAVE}
    s_mul_i32 s24, s24, 13
    v_lshrrev_b32 v156, 2, v{L}
    v_add_u32 v156, s24, v156
    v_and_b32 v157, 3, v{L}
    v_lshlrev_b32 v157, 7, v157
    v_cmp_gt_u32 vcc, 52, v{L}
    v_mov_b32 v24, {PADIDX:#x}
    s_mov_b32 m0, {L_DUMMY}
    v_cndmask_b32 v156, v24, v156, vcc
""")
    a(f"""
    v_and_b32 v12, 7, v{L}
    s_lshl_b32 s24, s{S_WAVE}, 6
    v_lshl_add_u32 v13, v12, 3, s24
    v_lshrrev_b32 v14, 3, v{L}
    v_lshlrev_b32 v14, 2, v14
    v_lshlrev_b32 v16, 5, v{L}
    v_mov_b32 v1, 2
""")
    if not BAL:
        a(f"""
    v_lshlrev_b32 v20, 4, v12
    v_add_u32 v20, s{S_WAVE}, v20
    v_add_u32 v21, 8, v20
    ds_write_b64 v13, v[20:21] offset:{L_MAP}
""")
    a("v_lshlrev_b32 v12, 2, v12")
    a("s_waitcnt vmcnt(8)")
    stamp(a, 2)

    def pre_atomic(i, u, k):
        if u < 2:
            a(f"s_waitcnt vmcnt({u * 4 + 3 - k})")

    def f_atomic(i, u, k):
        r = RB + 4 * i
        a(f"v_lshrrev_b32 v{r+3}, 16, v{r+2}")
        a(f"ds_add_rtn_u32 v{RK+i}, v{r+3}, v1 offset:{L_HIST}")
    masked(f_atomic, "at", pre_atomic)
    a(f"""
    s_mul_i32 s24, s{S_WAVE}, 5120
    s_add_u32 s26, s24, {L_W}
    s_mov_b32 m0, s26
    s_add_u32 s24, s24, {WIMG_OFF}
    v_lshl_add_u32 v158, v{L}, 4, s24
""")
    for i in range(4):
        a(f"buffer_load_dwordx4 v158, s[{S_REC}:{S_REC+3}], 0 offen offset:{1024*i} lds")
    a(f"""
    s_add_u32 s26, s26, 4096
    s_mov_b32 m0, s26
    v_add_u32 v158, 4096, v158
    buffer_load_dwordx4 v158, s[{S_REC}:{S_REC+3}], 0 offen lds
""")
    a(f"s_mov_b32 m0, {L_DUMMY}")
    a("s_nop 0")
    a("s_waitcnt lgkmcnt(0)")
    pstamp(a, 1)
    a("s_barrier")
    pstamp(a, 2)
    if OPT["warm"]:
        a(f"buffer_load_dword v[156:157], s[{S_X}:{S_X+3}], 0 idxen offen lds")
        for _ in range(OPT["warm"] - 1):
            a(f"v_add_u32 v156, 3328, v156")
            a(f"buffer_load_dword v[156:157], s[{S_X}:{S_X+3}], 0 idxen offen lds")

    def f_taddr(i, u, k):
        r = RB + 4 * i
        a(f"v_min_u32 v0, 2, v{RK+i}")
        a(f"v_add_lshl_u32 v{r+3}, v{r+3}, v0, 1")

    if BAL:
        a(f"""
    ds_read_b128 v[24:27], v16 offset:{L_HIST}
    ds_read_b128 v[28:31], v16 offset:{L_HIST+16}
    ds_read_b128 v[32:35], v16 offset:{L_HIST+2048}
    ds_read_b128 v[36:39], v16 offset:{L_HIST+2064}
    v_sub_u32 v40, {2*128 + 127}, v{L}
    v_sub_u32 v41, {2*128 + 63}, v{L}
    v_mov_b32 v42, 0
    v_mov_b32 v43, 0
    s_lshl_b32 s24, s{S_WAVE}, 3
    s_waitcnt lgkmcnt(2)
    v_add3_u32 v24, v24, v25, v26
    v_add3_u32 v28, v28, v29, v30
    v_add3_u32 v24, v24, v27, v31
    s_waitcnt lgkmcnt(0)
    v_add3_u32 v32, v32, v33, v34
    v_add3_u32 v36, v36, v37, v38
    v_add3_u32 v32, v32, v35, v39
    v_add_u32 v24, v24, v28
    v_add_u32 v32, v32, v36
    v_lshl_add_u32 v40, v24, 7, v40
    v_lshl_add_u32 v41, v32, 7, v41
    v_and_b32 v40, 0xfffffe7f, v40
    v_and_b32 v41, 0xfffffe7f, v41
""")
        sel = [(40, i) for i in range(8)] + [(41, None)] * 5
        for n in range(13):
            if n < 8:
                a(f"s_add_u32 s25, s24, {n}")
                a(f"v_readlane_b32 s{28+n}, v40, s25")
            else:
                a(f"s_add_u32 s25, s{S_WAVE}, {8*(n-8)}")
                a(f"v_readlane_b32 s{28+n}, v41, s25")
        for n in range(13):
            p0, p1 = ("vcc", "s[26:27]") if n % 2 == 0 else ("s[24:25]", "s[42:43]")
            a(f"v_cmp_gt_u32 {p0}, s{28+n}, v40")
            a(f"v_cmp_gt_u32 {p1}, s{28+n}, v41")
            if n:
                q0, q1 = ("vcc", "s[26:27]") if n % 2 == 1 else ("s[24:25]", "s[42:43]")
                a(f"v_addc_co_u32 v42, {q0}, 0, v42, {q0}")
                a(f"v_addc_co_u32 v43, {q1}, 0, v43, {q1}")
        a(f"""
    v_lshlrev_b32 v44, 2, v{L}
    v_mov_b32 v20, 127
    v_addc_co_u32 v42, vcc, 0, v42, vcc
    v_addc_co_u32 v43, s[26:27], 0, v43, s[26:27]
    v_mov_b32 v21, 127
    ds_add_u32 v44, v42 offset:{L_RANK}
    ds_add_u32 v44, v43 offset:{L_RANK+256}
    ds_write_b64 v13, v[20:21] offset:{L_MAP}
""")
        if OPT.get("carry", 1):
            masked(f_taddr, "ta")
        a(f"""
    s_waitcnt lgkmcnt(0)
    s_barrier
    ds_read_b32 v42, v44 offset:{L_RANK}
    ds_read_b32 v43, v44 offset:{L_RANK+256}
    v_add_u32 v41, 64, v{L}
    s_lshl_b32 s24, s{S_WAVE}, 6
    s_waitcnt lgkmcnt(0)
    v_bfe_i32 v45, v42, 3, 1
    v_bfe_i32 v46, v43, 3, 1
    v_xor_b32 v45, v45, v42
    v_xor_b32 v46, v46, v43
    v_and_b32 v45, 7, v45
    v_and_b32 v46, 7, v46
    v_cmp_eq_u32 vcc, s{S_WAVE}, v45
    v_cmp_eq_u32 s[26:27], s{S_WAVE}, v46
    v_lshrrev_b32 v42, 3, v42
    v_lshrrev_b32 v43, 3, v43
    v_lshl_add_u32 v42, v42, 2, s24
    v_lshl_add_u32 v43, v43, 2, s24
    s_mov_b64 exec, vcc
    ds_write_b32 v42, v{L} offset:{L_MAP}
    s_mov_b64 exec, s[26:27]
    ds_write_b32 v43, v41 offset:{L_MAP}
    s_mov_b64 exec, -1
    ds_read_b64 v[20:21], v13 offset:{L_MAP}
    s_waitcnt lgkmcnt(0)
""")
    def prefix_carry():
        a(f"""
    v_lshlrev_b32 v20, 5, v20
    v_lshlrev_b32 v21, 5, v21
    ds_read_b128 v[24:27], v20 offset:{L_HIST}
    ds_read_b128 v[28:31], v20 offset:{L_HIST+16}
    ds_read_b128 v[32:35], v21 offset:{L_HIST}
    ds_read_b128 v[36:39], v21 offset:{L_HIST+16}
    v_add_u32 v20, v14, v20
    v_add_u32 v21, v14, v21
    ds_read_b32 v40, v20 offset:{L_HIST}
    ds_read_b32 v41, v21 offset:{L_HIST}
""")
        if not BAL:
            masked(f_taddr, "ta")
        a(f"""
    v_mov_b32 v42, 0
    v_mov_b32 v43, 0
    v_mov_b32 v44, v12
    v_mov_b32 v45, v12
    v_lshlrev_b32 v20, 1, v20
    v_lshlrev_b32 v21, 1, v21
    s_waitcnt lgkmcnt(0)
""")
        for q in range(1, 8):
            lo = (0xFFFFFFFFFFFFFFFF << (8 * q)) & 0xFFFFFFFF
            hi = ((0xFFFFFFFFFFFFFFFF << (8 * q)) >> 32) & 0xFFFFFFFF
            if q <= 4:
                a(f"s_mov_b32 exec_lo, {lo:#x}")
            else:
                a(f"s_mov_b32 exec_hi, {hi:#x}")
            a(f"v_cmp_ne_u32 vcc, 0, v{24+q-1}")
            a(f"v_cmp_ne_u32 s[26:27], 0, v{32+q-1}")
            a(f"v_add_u32 v42, v42, v{24+q-1}")
            a(f"v_add_u32 v43, v43, v{32+q-1}")
            a(f"v_cndmask_b32 v44, v44, v12, vcc")
            a(f"v_cndmask_b32 v45, v45, v12, s[26:27]")
            a(f"v_add_u32 v12, 32, v12")
        a(f"""
    s_mov_b64 exec, -1
    v_add_u32 v46, 2, v42
    v_add_u32 v47, 2, v43
    v_add_u32 v0, v46, v40
    v_add_u32 v1, v47, v41
    v_lshrrev_b32 v46, 2, v46
    v_lshrrev_b32 v47, 2, v47
    v_lshrrev_b32 v0, 2, v0
    v_lshrrev_b32 v1, 2, v1
    v_sub_u32 v0, v0, v46
    v_sub_u32 v1, v1, v47
    v_add_u32 v24, v0, v1
    v_mov_b32 v25, v24
""")
        wave_scan(a, 25)
        a(f"""
    v_readlane_b32 s24, v25, 63
    v_sub_u32 v24, v25, v24
    v_lshl_add_u32 v27, v24, 5, s{S_REGION}
    v_lshl_add_u32 v29, v0, 5, v27
    v_and_b32 v42, 2, v42
    v_and_b32 v43, 2, v43
    v_lshlrev_b32 v46, 3, v42
    v_lshlrev_b32 v47, 3, v43
    v_sub_u32 v27, v27, v46
    v_sub_u32 v29, v29, v47
    v_lshl_add_u32 v46, v40, 3, v27
    v_lshl_add_u32 v47, v41, 3, v29
    ds_bpermute_b32 v26, v44, v46
    ds_bpermute_b32 v28, v45, v47
    v_cmp_eq_u32 vcc, 0, v42
    v_cmp_eq_u32 s[26:27], 0, v43
    s_cmp_le_u32 s24, {CAPP}
    s_cbranch_scc1 M_noovf
    v_mov_b32 v30, 1
    ds_write_b32 v4, v30 offset:{L_FLAG}
M_noovf:
    s_waitcnt lgkmcnt(0)
    v_cndmask_b32 v26, v26, v27, vcc
    v_cndmask_b32 v28, v28, v29, s[26:27]
    ds_write_b64 v20, v[26:27] offset:{L_TAB}
    ds_write_b64 v21, v[28:29] offset:{L_TAB}
    s_waitcnt lgkmcnt(0)
""")

    CARRY = OPT.get("carry", 1)
    if CARRY:
        prefix_carry()
    else:
        a(f"""
    v_lshl_add_u32 v20, v20, 5, v14
    v_lshl_add_u32 v21, v21, 5, v14
    ds_read_b32 v0, v20 offset:{L_HIST}
    ds_read_b32 v1, v21 offset:{L_HIST}
    s_waitcnt lgkmcnt(0)
    v_add_u32 v0, 2, v0
    v_add_u32 v1, 2, v1
    v_lshrrev_b32 v0, 2, v0
    v_lshrrev_b32 v1, 2, v1
    v_add_u32 v24, v0, v1
    v_mov_b32 v25, v24
""")
        wave_scan(a, 25)
        a(f"""
    v_readlane_b32 s24, v25, 63
    v_sub_u32 v24, v25, v24
    v_lshl_add_u32 v27, v24, 5, s{S_REGION}
    v_lshl_add_u32 v29, v0, 5, v27
    ds_write_b32 v20, v27 offset:{L_HIST}
    ds_write_b32 v21, v29 offset:{L_HIST}
    s_cmp_le_u32 s24, {CAPP}
    s_cbranch_scc1 M_noovf
    v_mov_b32 v30, 1
    ds_write_b32 v4, v30 offset:{L_FLAG}
M_noovf:
    s_waitcnt lgkmcnt(0)
""")
    pstamp(a, 4)
    a(f"""
    s_barrier
    ds_read_b64 v[20:21], v4 offset:{L_FLAG}
""")
    masked(lambda i, u, k: a(f"ds_read_b32 v{RB+4*i+3}, v{RB+4*i+3} offset:{L_TAB if CARRY else L_HIST}"), "lk")
    for r in range(D):
        a(f"v_mov_b32 v{RING+4*r+1}, v{STAGE+3}")
    for st in range(1, LS):
        a(f"v_mov_b32 v{STAGE+4*st+3}, v{STAGE+3}")
    a(f"""
    s_waitcnt lgkmcnt(0)
    v_readfirstlane_b32 s24, v20
    v_readfirstlane_b32 s{S_MORE}, v21
    s_cmp_eq_u32 s24, 0
    s_cbranch_scc1 M_go
    s_lshr_b32 s{S_TAKE}, s{S_TAKE}, 1
    s_max_u32 s{S_TAKE}, s{S_TAKE}, 1
    s_waitcnt vmcnt(0)
    s_barrier
    s_branch M_round
M_go:
""")
    pstamp(a, 5)

    def f_scatter(i, u, k):
        r = RB + 4 * i
        a(f"v_lshl_add_u32 v{r+3}, v{RK+i}, 3, v{r+3}")
        a(f"ds_write_b16 v{r+3}, v{r+2} offset:8")
        a(f"ds_write_b64 v{r+3}, v[{r}:{r+1}] offset:{32*(D-1)}")
    masked(f_scatter, "sc")
    a(f"s_waitcnt vmcnt({OPT['warm']}) lgkmcnt(0)")
    a("s_barrier")
    stamp(a, 3)
    cstamp(a, 1)
    for r in range(D):
        a(f"ds_read_b32 v{RING+4*r}, v{V_PTR} offset:{32*r+8}")
    a(f"ds_read_b64 v[{RING+2}:{RING+3}], v{V_PTR} offset:{32*(D-1)}")
    for st in range(LS):
        a(f"ds_read_b96 v[{STAGE+4*st}:{STAGE+4*st+2}], v{V_PTR} offset:{32*(D+st)}")
    for j in range(5, NSLOT):
        a(f"v_mfma_f32_32x32x16_bf16 v[{ACC+16*j}:{ACC+16*j+15}], v[4:7], v[4:7], 0")
    a(f"s_waitcnt lgkmcnt({LS})")
    for j in range(4):
        a(f"v_perm_b32 v{4+j}, v{RING+3}, v{RING+2}, v{8+j}")
    for r in range(D):
        a(f"buffer_load_dwordx4 v[{RING+4*r}:{RING+4*r+3}], v[{RING+4*r}:{RING+4*r+1}], s[{S_X}:{S_X+3}], 0 idxen offen")
    a(f"s_mov_b32 s{S_PH}, 0")
    xf = ["", " nt", " sc1", " sc0"][OPT.get("xf", 0)]
    PB = 2 if OPT.get("eprio") else 0
    if OPT.get("eprio"):
        a("s_setprio 2")
    if OPT.get("offen"):
        a(f"s_mov_b32 s{S_MASK}, s{S_X}")
        a(f"s_and_b32 s{S_MASK+1}, s{S_X+1}, 0xffff")
        a(f"s_mov_b32 s{S_MASK+2}, {N*512}")
        a(f"s_mov_b32 s{S_MASK+3}, 0x20000")
    if OPT.get("prio") == 2:
        a(f"s_cmp_lt_u32 s{S_WAVE}, 4")
        a("s_cbranch_scc1 M_PE0")
        a("s_setprio 1")
    a("s_branch M_epi" if OPT.get("nomain") else "s_branch M_PE0")
    assert D % LS == 0
    for j in range(NSLOT):
        ac = ACC + 16 * j
        for r in range(D):
            nxt = f"M_B{j+1}_{r}" if j + 1 < NSLOT else f"M_PE{r}"
            rg = RING + 4 * r
            st = STAGE + 4 * (r % LS)
            a(f"""
M_B{j}_{r}:
    s_sub_u32 s{S_CNT+j}, s{S_CNT+j}, 1
    s_cbranch_scc1 {nxt}
    s_waitcnt vmcnt({D-1}) lgkmcnt({LS-1})
""")
            if OPT.get("offen"):
                a(f"v_lshl_add_u32 v{st+2}, v{st+2}, 9, v{st+3}")
            a(f"v_mfma_f32_32x32x16_bf16 v[{ac}:{ac+15}], v[4:7], v[{rg}:{rg+3}], v[{ac}:{ac+15}]")
            if OPT.get("offen"):
                a(f"buffer_load_dwordx4 v[{rg}:{rg+3}], v{st+2}, s[{S_MASK}:{S_MASK+3}], 0 offen")
            else:
                a(f"buffer_load_dwordx4 v[{rg}:{rg+3}], v[{st+2}:{st+3}], s[{S_X}:{S_X+3}], 0 idxen offen{xf}")
            a(f"""
    v_perm_b32 v4, v{st+1}, v{st}, v8
    v_perm_b32 v5, v{st+1}, v{st}, v9
    v_perm_b32 v6, v{st+1}, v{st}, v10
    v_perm_b32 v7, v{st+1}, v{st}, v11
    ds_read_b96 v[{st}:{st+2}], v{V_PTR} offset:{32*(r+D+LS)}
""")
            if r == D - 1:
                a(f"v_add_u32 v{V_PTR}, {32*D}, v{V_PTR}")
                a(f"s_branch M_B{j}_0")
    for r in range(D):
        a(f"""
M_PE{r}:
    s_cmp_ge_u32 s{S_PH}, {8*OPT.get("nph", 8)}
    s_cbranch_scc1 M_epi
""")
        for j in range(NSLOT):
            if j % 2 == 0:
                a(f"s_add_u32 s24, s{S_PH}, {j//2}")
            a(f"v_readlane_b32 s{S_CNT+j}, v{j % 2}, s24")
        a(f"s_add_u32 s{S_PH}, s{S_PH}, 8")
        if OPT.get("phbar"):
            a("s_barrier")
        if OPT.get("prio") == 1:
            a(f"s_lshr_b32 s24, s{S_PH}, 1")
            a(f"s_xor_b32 s24, s24, s{S_WAVE}")
            a(f"s_bitcmp1_b32 s24, 2")
            a(f"s_setprio {PB}")
            a(f"s_cbranch_scc0 M_B0_{r}")
            a(f"s_setprio {PB+1}")
        a(f"s_branch M_B0_{r}")
    a("M_epi:")
    if OPT.get("noepi") == 1:
        a("s_endpgm")
    if OPT.get("eprio"):
        a("s_setprio 0")
    if STAMP:
        a("s_waitcnt vmcnt(0) lgkmcnt(0)")
    stamp(a, 4)
    cstamp(a, 2)
    if OPT.get("noepi") == 2:
        a("s_branch M_end")
    if OPT.get("ebar"):
        a("s_barrier")
    a(f"""
    ; v0 = staging write addr, v1 = staging read addr, v2 = W image addr, v4 = local node, v5 = q
    v_lshl_add_u32 v0, v{L}, 3, s{S_REGION}
    v_and_b32 v4, 15, v{L}
    v_lshrrev_b32 v5, 4, v{L}
    v_mul_u32_u24 v1, {STG}, v4
    v_lshl_add_u32 v1, v5, 4, v1
    v_add_u32 v1, s{S_REGION}, v1
    v_lshlrev_b32 v2, 4, v{L}
    v_add_u32 v2, {L_W}, v2
    s_lshl_b32 s24, s{S_WAVE}, 6
    v_lshl_add_u32 v4, v4, 2, s24
    ds_read_b32 v4, v4 offset:{L_MAP}
    s_mov_b32 s26, 0x80008000
""")

    of = ["", " nt", " sc1", " sc0 sc1"][OPT.get("ost", 1)]
    Q = [[ACC + 16 * j + 4 * kc for j in range(NSLOT)] for kc in range(4)]
    BFS = [[8, 12, 16, 20, 24, 28, 32, 36], Q[0][0:8], Q[2][3:11], Q[3][0:8]]
    BF = {(kc, c, ks): BFS[kc][c * 2 + ks] for kc in range(4) for c in range(4) for ks in range(2)}
    outq = Q[1][0:13] + Q[2][0:3]
    order = [(0, 0), (0, 1), (0, 2), (0, 3)] + [(o, t) for t in range(4) for o in (1, 2, 3)]
    OUT = {ot: outq[i] for i, ot in enumerate(order)}
    AF = Q[0][8:13] + [40, 44]
    GATE = Q[3][8:12]
    NA = len(AF)
    S = Sched(a)

    def f_cvt(kc):
        ops = []
        for j in range(NSLOT):
            q = Q[kc][j]
            ops.append(("valu", f"v_cvt_pk_bf16_f32 v{q}, v{q}, v{q+1}", [q, q + 1], [q]))
            ops.append(("valu", f"v_cvt_pk_bf16_f32 v{q+1}, v{q+2}, v{q+3}", [q + 2, q + 3], [q + 1]))
        return ops

    def f_w(kc):
        return [("dsw", f"ds_write_b64 v0, v[{Q[kc][j]}:{Q[kc][j]+1}] offset:{STG*j}", [Q[kc][j], Q[kc][j] + 1], [])
                for j in range(NSLOT)]

    def f_rb(kc):
        return [("dsr", f"ds_read_b128 v[{BF[kc,c,ks]}:{BF[kc,c,ks]+3}], v1 offset:{c*64+ks*256}", [], R(BF[kc, c, ks]))
                for c in range(4) for ks in range(2)]

    use = {m: [] for m in range(5)}
    negs = []
    for kc in range(4):
        for c in range(4):
            if kc == 0:
                m, o = (0, 0) if c == 0 else (3, c)
            else:
                jj = kc - 1
                if c == 0:
                    m, o = 2, kc
                elif c - 1 == jj:
                    m, o = 1, 0
                else:
                    m, o = 4, 1 + (3 - jj - (c - 1))
                    if c - 1 != (jj + 1) % 3:
                        negs.append((kc, c))
            use[m].append((kc, c, o))
    frs = [(0, ks, t) for t in range(4) for ks in range(2)] + [(3, ks, t) for t in range(4) for ks in range(2)] \
        + [(1, ks, t) for t in range(4) for ks in range(2)] \
        + [(m, ks, t) for t in range(4) for m in (2, 4) for ks in range(2)]

    def f_af(n):
        m, ks, t = frs[n]
        q = AF[n % NA]
        return ("dsr", f"ds_read_b128 v[{q}:{q+3}], v2 offset:{((m*2+ks)*4+t)*1024}", [], R(q))

    def emit(o):
        if OPT.get("nostore") and o[0] == "store":
            return
        if OPT.get("nodsw") and o[0] == "dsw":
            return
        if OPT.get("nodsr") and o[0] == "dsr":
            return
        if OPT.get("novalu") and o[0] in ("valu", "trans") and "v4" not in o[1]:
            return
        S.op(o[0], o[1], o[2], o[3])

    for o in f_cvt(0):
        emit(o)
    a("s_waitcnt vmcnt(0) lgkmcnt(0)")
    for o in f_w(0) + f_rb(0):
        emit(o)
    for n in range(NA):
        emit(f_af(n))
    for o in f_cvt(1) + f_w(1):
        emit(o)
    neg_ops = [("valu", f"v_xor_b32 v{BF[kc,c,kk]+i}, s26, v{BF[kc,c,kk]+i}", [BF[kc, c, kk] + i], [BF[kc, c, kk] + i])
               for (kc, c) in negs for kk in range(2) for i in range(4)]
    addr_ops = [
        ("valu", f"v_cmp_gt_u32 vcc, {NPB}, v4", [4], []),
        ("other", f"s_mul_i32 s24, s2, {NPB}", [], []),
        ("valu", "v_add_u32 v4, s24, v4", [4], [4]),
        ("valu", "v_lshlrev_b32 v4, 9, v4", [4], [4]),
        ("valu", "v_lshl_add_u32 v4, v5, 4, v4", [4, 5], [4]),
        ("valu", f"v_mov_b32 v5, {OOB:#x}", [], [5]),
        ("valu", "v_cndmask_b32 v4, v5, v4, vcc", [4, 5], [4]),
        ("other", "s_mov_b32 s24, 0xbfb8aa3b", [], []),
    ]
    fill = f_rb(1) + f_cvt(2) + f_w(2) + f_rb(2) + f_cvt(3) + f_w(3) + f_rb(3) + addr_ops + neg_ops
    gate_ops = []
    for t in range(4):
        for i in range(4):
            gate_ops.append(("valu", f"v_mul_f32 v{GATE[t]+i}, s24, v{OUT[0,t]+i}", [OUT[0, t] + i], [GATE[t] + i]))
    G = [GATE[t] + i for t in range(4) for i in range(4)]
    gate_ops += [("trans", f"v_exp_f32 v{g}, v{g}", [g], [g]) for g in G]
    gate_ops += [("valu", f"v_add_f32 v{g}, 1.0, v{g}", [g], [g]) for g in G]
    gate_ops += [("trans", f"v_rcp_f32 v{g}, v{g}", [g], [g]) for g in G]
    PK = [8, 12, 16, 20, 24, 28, 32, 36]

    def f_store(o, k):
        ops = []
        p = PK[o * 2 + k]
        d0, d1 = OUT[o, 2 * k], OUT[o, 2 * k + 1]
        if o:
            for t in (2 * k, 2 * k + 1):
                d = OUT[o, t]
                g = GATE[t]
                ops.append(("valu", f"v_pk_mul_f32 v[{d}:{d+1}], v[{d}:{d+1}], v[{g}:{g+1}]", [d, d + 1, g, g + 1], [d, d + 1]))
                ops.append(("valu", f"v_pk_mul_f32 v[{d+2}:{d+3}], v[{d+2}:{d+3}], v[{g+2}:{g+3}]", [d + 2, d + 3, g + 2, g + 3], [d + 2, d + 3]))
        for i, dd in enumerate((d0, d0 + 2, d1, d1 + 2)):
            ops.append(("valu", f"v_cvt_pk_bf16_f32 v{p+i}, v{dd}, v{dd+1}", [dd, dd + 1], [p + i]))
        ops.append(("store", f"buffer_store_dwordx4 v[{p}:{p+3}], v4, s[{S_OUT}:{S_OUT+3}], 0 offen offset:{o*128+k*64}{of}",
                    R(p) + [4], []))
        return ops

    def gemm(S, fill, late):
        fill = list(fill)
        touched = set()
        for n, (m, ks, t) in enumerate(frs):
            if n in (14, 16, 24):
                lim = {14: len(f_rb(1) + f_cvt(2) + f_w(2)), 16: 3 * 8 + 2 * 39, 24: 10 ** 6}[n]
                while fill and done[0] < lim:
                    emit(fill.pop(0))
                    done[0] += 1
            fill += late.get(n, [])
            q = AF[n % NA]
            for (kc, c, o) in use[m]:
                b = BF[kc, c, ks]
                d = OUT[o, t]
                first = (o, t) not in touched
                touched.add((o, t))
                cin = "0" if first else f"v[{d}:{d+3}]"
                if not OPT.get("noem"):
                  S.op("mfma", f"v_mfma_f32_16x16x32_bf16 v[{d}:{d+3}], v[{q}:{q+3}], v[{b}:{b+3}], {cin}",
                     R(q) + R(b), R(d), [] if first else R(d))
                for _ in range(FPM):
                    if fill:
                        emit(fill.pop(0))
                        done[0] += 1
            if n + NA < len(frs):
                emit(f_af(n + NA))
        return fill

    FPM = OPT.get("fpm", 3)
    done = [0]
    a(f"s_or_b32 s27, s{S_C0}, s{S_MORE}")
    a("s_cmp_eq_u32 s27, 0")
    a("s_cbranch_scc0 M_multi")
    import copy
    S2 = copy.deepcopy(S)
    S2.a = a
    if OPT.get("adj"):
        late = {25: gate_ops + f_store(0, 0)[:-1] + f_store(0, 1) + f_store(0, 0)[-1:],
                33: f_store(1, 0)[:-1] + f_store(2, 0)[:-1] + f_store(3, 0)[:-1]}
        rest = gemm(S, fill, late)
        for o in rest + f_store(1, 1) + f_store(1, 0)[-1:] + f_store(2, 1) + f_store(2, 0)[-1:] + f_store(3, 1) + f_store(3, 0)[-1:]:
            emit(o)
    else:
        late = {25: gate_ops + f_store(0, 0) + f_store(0, 1),
                33: f_store(1, 0) + f_store(2, 0) + f_store(3, 0)}
        rest = gemm(S, fill, late)
        for o in rest + f_store(1, 1) + f_store(2, 1) + f_store(3, 1):
            emit(o)
    a("s_branch M_end")
    a("M_multi:")
    S = S2
    done = [0]
    rest = gemm(S, fill, {})
    for o in rest:
        emit(o)
    a(f"""
    s_nop 7
    v_lshlrev_b32 v0, 1, v4
    v_cndmask_b32 v0, v5, v0, vcc
    s_cmp_eq_u32 s{S_C0}, 0
    s_cbranch_scc1 M_noload
""")

    def poff(o, t):
        return o * 256 + (t >> 1) * 128 + (t & 1) * 16
    for o in range(4):
        for t in range(4):
            a(f"buffer_load_dwordx4 v[{8+4*t}:{11+4*t}], v0, s[{S_PART}:{S_PART+3}], 0 offen offset:{poff(o,t)} sc1")
        a("s_waitcnt vmcnt(0)")
        for t in range(4):
            for i in range(4):
                a(f"v_add_f32 v{OUT[o,t]+i}, v{OUT[o,t]+i}, v{8+4*t+i}")
    a(f"""
M_noload:
    s_cmp_eq_u32 s{S_MORE}, 0
    s_cbranch_scc1 M_final
""")
    for o in range(4):
        for t in range(4):
            q = OUT[o, t]
            a(f"buffer_store_dwordx4 v[{q}:{q+3}], v0, s[{S_PART}:{S_PART+3}], 0 offen offset:{poff(o,t)} sc1")
    a(f"""
    s_add_u32 s{S_C0}, s{S_C0}, s{S_TAKE}
    s_waitcnt vmcnt(0) lgkmcnt(0)
    s_barrier
    s_branch M_round
M_final:
""")
    S = Sched(a)
    for o in gate_ops:
        emit(o)
    for o in range(4):
        for k in range(2):
            for op in f_store(o, k):
                emit(op)
    a("M_end:")
    if OPT.get("es"):
        stamp(a, 3)
    if STAMP:
        a("s_waitcnt vmcnt(0)")
    stamp(a, 5)
    stamp_flush(a, 16, 1, 0, S_WAVE)
    a("""
M_done:
    s_endpgm
""")


def descriptor(name, vgpr, sgpr):
    acc = (vgpr + 3) // 4 * 4
    return f"""
.p2align 6
.amdhsa_kernel {name}
  .amdhsa_next_free_vgpr {vgpr}
  .amdhsa_next_free_sgpr {sgpr}
  .amdhsa_accum_offset {acc}
  .amdhsa_group_segment_fixed_size 0
  .amdhsa_kernarg_size 96
  .amdhsa_user_sgpr_count 2
  .amdhsa_user_sgpr_kernarg_segment_ptr 1
  .amdhsa_system_sgpr_workgroup_id_x 1
  .amdhsa_float_denorm_mode_32 3
.end_amdhsa_kernel
"""


def main():
    global STAMP
    for arg in list(sys.argv):
        if "=" in arg:
            k, v = arg.split("=")
            OPT[k] = int(v)
            sys.argv.remove(arg)
    if "--stamp" in sys.argv:
        STAMP = True
        sys.argv.remove("--stamp")
    ref = open(f"cdna_kernels/{NAME}.s.ref").read().split("\n")
    head = [l for l in ref if l.startswith(";") and "@launch" not in l and "Override launch" not in l
            and "grid=ceil" not in l]
    a = Asm()
    gen_part(a)
    gen_main(a)
    out = "\n".join(head) + "\n"
    out += f"; @launch kernel=part_kernel grid=({NC+6},1,1) block=(832,1,1) lds={K1_LDS}\n"
    out += f"; @launch kernel=main_kernel grid=({NB},1,1) block=(512,1,1) lds={L_TOTAL}\n"
    out += '.amdgcn_target "amdgcn-amd-amdhsa--gfx950"\n.text\n'
    out += a.text()
    out += '.section .rodata,"a"\n'
    out += descriptor("part_kernel", 84, 102 if STAMP else 32)
    out += descriptor("main_kernel", 256, 102)
    path = sys.argv[1] if len(sys.argv) > 1 else f"cdna_kernels/{NAME}.s"
    open(path, "w").write(out)
    print("wrote", path, len(out), "bytes; LDS", L_TOTAL, "CAPP", CAPP)


if __name__ == "__main__":
    main()
```

```python
import sys

NAME = "standalone__tensor_product_equiv_equiformer__graph"
N = 25000
E = 800000
NPB = 98
NB = 256
NC = 250
CH = 3200
P = 8
PH = (N + P - 1) // P
NSLOT = 13
import os
D = int(os.environ.get("DD", "6"))
LS = int(os.environ.get("LSS", "3"))
RECB = 12

OPT = {"st": 1, "warm": 1, "stage": 1, "ld": 0, "bal": 0, "prio": 0, "cpf": 0, "rot": 1, "dcm": 1, "dsc": 1}

REC_OFF = 0
REC_BYTES = NC * CH * RECB
DESC_OFF = 0x1000000
WIMG_OFF = 0x1100000
WIMG_BYTES = 5 * 8192
PART_OFF = 0x2000000
PART_BYTES = NB * NPB * 1024

L_FLAG = 0
L_DUMMY = 256
L_HIST = 512
L_TAB = L_HIST + 4096
L_RANK = L_TAB + 8192
L_MAP = L_RANK + 512
L_W = L_MAP + 512
L_REG = L_W + WIMG_BYTES
REGB = 10240
L_TOTAL = L_REG + 8 * REGB
CAPP = REGB // 32 - (D + LS + 2)
STG = 528
OOB = 0x7FFFF000
PADIDX = 0x7FFF

STAMP = False
STAMP_OFF = 0x8000000


def magic(div, maxv):
    for k in range(31, 15, -1):
        m = -(-(1 << k) // div)
        if m < (1 << 24) and m * maxv < (1 << 32):
            e = m * div - (1 << k)
            if e * maxv < (1 << k):
                assert all((v * m) >> k == v // div for v in range(maxv + 1))
                return m, k
    raise ValueError


class Asm:
    def __init__(self):
        self.lines = []

    def __call__(self, s):
        for ln in s.strip("\n").split("\n"):
            ln = ln.strip()
            if ln:
                self.lines.append(("" if ln.endswith(":") else "    ") + ln)

    def text(self):
        return "\n".join(self.lines) + "\n"


def srd(a, d, base, nrec, add=0, stride=0):
    if add:
        a(f"s_add_u32 s{d}, s{base}, {add}")
        a(f"s_addc_u32 s{d+1}, s{base+1}, 0")
        a(f"s_and_b32 s{d+1}, s{d+1}, 0xffff")
    else:
        a(f"s_mov_b32 s{d}, s{base}")
        a(f"s_and_b32 s{d+1}, s{base+1}, 0xffff")
    if stride:
        a(f"s_or_b32 s{d+1}, s{d+1}, {stride << 16:#x}")
    a(f"s_mov_b32 s{d+2}, {nrec}")
    a(f"s_mov_b32 s{d+3}, 0x20000")


def pstamp(a, k):
    if STAMP and OPT.get("ps"):
        a("s_memrealtime s[42:43]")
        a("s_waitcnt lgkmcnt(0)")
        a(f"s_mov_b32 s{96+k}, s42")


MAINK = [False]


def stamp(a, k):
    if OPT.get("ps") and MAINK[0] and k not in (0, 3):
        return
    if STAMP:
        a("s_memrealtime s[42:43]")
        a("s_waitcnt lgkmcnt(0)")
        a(f"s_mov_b32 s{96+k}, s42")


def cstamp(a, k):
    if STAMP and OPT.get("clk"):
        a("s_memtime s[42:43]")
        a("s_waitcnt lgkmcnt(0)")
        a(f"s_mov_b32 s{96+k}, s42")


def stamp_flush(a, wsreg, kern, vt, swave):
    if STAMP:
        a("s_mov_b64 exec, 1")
        a(f"s_lshl_b32 s42, s2, 4")
        a(f"s_add_u32 s42, s42, s{swave}")
        a(f"s_lshl_b32 s42, s42, 5")
        a(f"s_add_u32 s42, s42, {STAMP_OFF + kern * 0x100000}")
        a(f"v_mov_b32 v{vt}, s42")
        for k in range(6):
            a(f"v_mov_b32 v{vt+1}, s{96+k}")
            a(f"global_store_dword v{vt}, v{vt+1}, s[{wsreg}:{wsreg+1}] offset:{4*k}")
            a("s_nop 1")


def wave_scan(a, v):
    for sh in (1, 2, 4, 8):
        a("s_nop 1")
        a(f"v_add_u32_dpp v{v}, v{v}, v{v} row_shr:{sh} row_mask:0xf bank_mask:0xf bound_ctrl:0")
    a("s_nop 1")
    a(f"v_add_u32_dpp v{v}, v{v}, v{v} row_bcast:15 row_mask:0xa bank_mask:0xf")
    a("s_nop 1")
    a(f"v_add_u32_dpp v{v}, v{v}, v{v} row_bcast:31 row_mask:0xc bank_mask:0xf")
    a("s_nop 1")


class Sched:
    def __init__(self, a):
        self.a = a
        self.lds = []
        self.slot = 0
        self.vw = {}
        self.tw = {}
        self.mw = {}
        self.mc = {}
        self.sw = {}

    def _emit(self, t):
        self.a(t)
        self.slot += 1

    def _nop(self, need):
        while need > 0:
            k = min(need, 8)
            self.a(f"s_nop {k-1}")
            self.slot += k
            need -= k

    def op(self, kind, text, reads=(), writes=(), srcc=()):
        reads, writes, srcc = set(reads), set(writes), set(srcc)
        touched = reads | writes | srcc
        last = -1
        for i, d in enumerate(self.lds):
            if d & touched:
                last = i
        if last >= 0:
            n = len(self.lds) - 1 - last
            self._emit(f"s_waitcnt lgkmcnt({min(n, 15)})")
            self.lds = self.lds[len(self.lds) - min(n, 15):] if n else []
        need = 0
        if kind == "mfma":
            for r in reads | srcc:
                if r in self.vw:
                    need = max(need, 2 - (self.slot - self.vw[r] - 1))
            for r in reads:
                if r in self.mw:
                    need = max(need, 8 - (self.slot - self.mw[r] - 1))
        else:
            for r in reads | writes:
                if r in self.mw:
                    need = max(need, 8 - (self.slot - self.mw[r] - 1))
            for r in writes:
                if r in self.mc:
                    need = max(need, 3 - (self.slot - self.mc[r] - 1))
                if r in self.sw:
                    need = max(need, 2 - (self.slot - self.sw[r] - 1))
            if kind in ("valu", "store", "dsw"):
                for r in reads:
                    if r in self.tw:
                        need = max(need, 1 - (self.slot - self.tw[r] - 1))
        self._nop(need)
        me = self.slot
        self._emit(text)
        if kind in ("valu", "trans"):
            for r in writes:
                self.vw[r] = me
                if kind == "trans":
                    self.tw[r] = me
        elif kind == "mfma":
            for r in writes:
                self.mw[r] = me
            for r in srcc:
                self.mc[r] = me
        elif kind == "dsr":
            self.lds.append(writes)
        elif kind == "dsw":
            self.lds.append(set())
        elif kind == "store":
            for r in reads:
                self.sw[r] = me


def R(b, n=4):
    return list(range(b, b + n))


def stflags():
    return ["", " sc1", " sc0 sc1", " nt"][OPT["st"]]


K1_STG = 1024
K1_LDS = K1_STG + 832 * 48


def gen_part(a):
    mB, kB = magic(NPB, 32767)
    G = OPT.get("stag", 1)
    NPH = OPT.get("nph", 8)
    PHS = -(-N * G // (NPH * G - (G - 1)))
    PHS = -(-PHS // G) * G
    assert (N - 1 + (G - 1) * (PHS // G)) // PHS <= 7
    mP, kP = magic(PHS, 32767)
    sf = stflags()
    df = ["", " sc1"][OPT.get("dsc", 0)]
    lf = ["", " nt", " sc1", " sc0 sc1 nt"][OPT.get("ld", 0)]
    a(f"""
.p2align 8
.globl part_kernel
.type part_kernel,@function
part_kernel:
    s_cmp_ge_u32 s2, {NC + 6}
    s_cbranch_scc1 P_done
    s_load_dwordx4 s[4:7], s[0:1], 8
    s_load_dwordx4 s[8:11], s[0:1], 24
    s_load_dwordx4 s[12:15], s[0:1], 40
    s_load_dwordx2 s[16:17], s[0:1], 56
    s_load_dwordx2 s[18:19], s[0:1], 88
    s_load_dwordx2 s[28:29], s[0:1], 0
    s_load_dwordx2 s[30:31], s[0:1], 72
    s_cmp_ge_u32 s2, {NC}
    s_cbranch_scc1 P_prep
""")
    if STAMP:
        a("v_lshrrev_b32 v1, 6, v0")
        a("s_nop 0")
        a("v_readfirstlane_b32 s41, v1")
    stamp(a, 0)
    a(f"""
    v_lshlrev_b32 v1, 2, v0
    v_mov_b32 v2, 0
    v_cmp_gt_u32 vcc, 256, v0
    s_and_saveexec_b64 s[20:21], vcc
    ds_write_b32 v1, v2
    s_mov_b64 exec, s[20:21]
    s_mul_i32 s3, s2, {CH}
    v_lshl_add_u32 v3, v0, 2, s3
    v_lshlrev_b32 v4, 2, v3
    v_lshlrev_b32 v5, 1, v3
    v_mul_u32_u24 v6, 6, v3
    v_cmp_gt_u32 vcc, {CH // 4}, v0
    s_and_saveexec_b64 s[20:21], vcc
    s_waitcnt lgkmcnt(0)
    global_load_dwordx4 v[8:11], v4, s[10:11]{lf}
    s_barrier
    global_load_dwordx4 v[12:15], v4, s[8:9]{lf}
    global_load_dwordx2 v[16:17], v5, s[6:7]{lf}
    global_load_dwordx4 v[20:23], v6, s[4:5]{lf}
    global_load_dwordx2 v[24:25], v6, s[4:5] offset:16{lf}
""")
    a(f"""
    v_mov_b32 v2, 1
    s_waitcnt vmcnt(4)
""")
    stamp(a, 1)
    for i in range(4):
        a(f"""
    v_mul_u32_u24 v{28+i}, {mB}, v{8+i}
    v_lshrrev_b32 v{28+i}, {kB}, v{28+i}
    v_min_u32 v{28+i}, 255, v{28+i}
    v_lshlrev_b32 v{36+i}, 2, v{28+i}
    ds_add_rtn_u32 v{32+i}, v{36+i}, v2
""")
    if OPT.get("cpf", 1):
        a(f"""
    s_getpc_b64 s[24:25]
P_pc:
    s_add_u32 s24, s24, main_kernel-P_pc
    s_addc_u32 s25, s25, 0
    s_lshr_b32 s3, s2, 3
    s_lshl_b32 s3, s3, 10
    v_subrev_u32 v26, {CH//4 - 16}, v0
    v_lshl_add_u32 v26, v26, 6, s3
    v_min_u32 v26, M_multi-main_kernel, v26
    s_movk_i32 s3, {CH//4 - 16}
    v_cmp_le_u32 s[26:27], s3, v0
    s_and_b64 exec, exec, s[26:27]
    s_cbranch_execz P_nopf
    global_load_dword v27, v26, s[24:25]
P_nopf:
    """)
    if OPT.get("tlb"):
        pg = OPT["tlb"]
        a(f"""
    s_mov_b64 exec, -1
    s_lshr_b32 s3, s2, 3
    s_lshl_b32 s3, s3, 7
    v_lshlrev_b32 v26, {pg}, v0
    v_add_u32 v26, s3, v26
    v_cmp_gt_u32 vcc, {N*512}, v26
    s_and_saveexec_b64 s[26:27], vcc
    s_cbranch_execz P_notlb
    global_load_dword v84, v26, s[28:29]
    global_load_dword v85, v26, s[30:31]
P_notlb:
""")
    a(f"""
    s_mov_b64 exec, -1
    s_waitcnt lgkmcnt(0)
    s_barrier
    v_cmp_gt_u32 vcc, 64, v0
    s_cbranch_vccz P_skipscan
    v_lshlrev_b32 v1, 4, v0
    ds_read_b128 v[72:75], v1
    s_waitcnt lgkmcnt(0)
    v_add_u32 v76, v72, v73
    v_add_u32 v77, v76, v74
    v_add_u32 v78, v77, v75
    v_mov_b32 v79, v78
""")
    wave_scan(a, 79)
    a(f"""
    v_sub_u32 v80, v79, v78
    v_add_u32 v81, v80, v72
    v_add_u32 v82, v80, v76
    v_add_u32 v83, v80, v77
    ds_write_b128 v1, v[80:83]
    v_lshl_or_b32 v72, v72, 16, v80
    v_lshl_or_b32 v73, v73, 16, v81
    v_lshl_or_b32 v74, v74, 16, v82
    v_lshl_or_b32 v75, v75, 16, v83
    v_mov_b32 v84, v72
    v_mov_b32 v85, v73
    v_mov_b32 v86, v74
    v_mov_b32 v87, v75
    s_waitcnt lgkmcnt(0)
P_skipscan:
    v_cmp_gt_u32 vcc, {CH // 4}, v0
    s_and_saveexec_b64 s[20:21], vcc
    s_movk_i32 s22, {NPB}
    s_mov_b32 s23, 0xffff0000
""")
    for i in range(4):
        a(f"""
    v_mul_u32_u24 v1, s22, v{28+i}
    v_sub_u32 v1, v{8+i}, v1
    v_and_b32 v1, 127, v1
    v_lshlrev_b32 v{8+i}, 21, v1
""")
        if OPT.get("rot"):
            a(f"v_lshrrev_b32 v{72+i}, 5, v{28+i}")
        if G > 1:
            a(f"v_and_b32 v{72+i}, {G-1}, v{28+i}")
            a(f"v_mul_u32_u24 v{72+i}, {PHS//G}, v{72+i}")
    a("s_barrier")
    stamp(a, 2)
    for i in range(4):
        a(f"ds_read_b32 v{28+i}, v{36+i}")
    a("s_waitcnt vmcnt(0)")
    stamp(a, 3)
    a(f"""
    v_cmp_gt_u32 vcc, 64, v0
    s_cbranch_vccz P_nodesc
""")
    if OPT.get("dcm"):
        a(f"""
    s_lshl_b32 s3, s2, 10
    s_add_u32 s3, s3, {DESC_OFF}
    v_lshl_add_u32 v1, v0, 4, s3
    global_store_dwordx4 v1, v[84:87], s[18:19]{df}
""")
    else:
        a(f"""
    s_lshl_b32 s3, s2, 2
    s_add_u32 s3, s3, {DESC_OFF}
    v_lshlrev_b32 v1, 12, v0
    v_add_u32 v1, s3, v1
    global_store_dword v1, v84, s[18:19]{df}
    global_store_dword v1, v85, s[18:19] offset:1024{df}
    global_store_dword v1, v86, s[18:19] offset:2048{df}
    global_store_dword v1, v87, s[18:19] offset:3072{df}
""")
    a("P_nodesc:")
    if OPT.get("k1warm"):
        a(f"""
    s_mul_i32 s3, s2, {100*512}
    v_lshl_add_u32 v76, v0, 7, s3
    v_cmp_gt_u32 vcc, 400, v0
    s_and_saveexec_b64 s[26:27], vcc
    s_cbranch_execz P_now
    global_load_dword v77, v76, s[28:29]
P_now:
    s_mov_b64 exec, s[26:27]
""")
    for i in range(4):
        r = 40 + 4 * i
        if G > 1:
            a(f"v_add_u32 v4, v{72+i}, v{12+i}")
        a(f"""
    v_mul_u32_u24 v4, {mP}, v{4 if G > 1 else 12+i}
    v_lshrrev_b32 v4, {kP}, v4
    v_min_u32 v4, {NPH-1}, v4
""")
        if OPT.get("rot"):
            a(f"v_sub_u32 v4, v4, v{72+i}")
            a(f"v_and_b32 v4, 7, v4")
        a(f"""
    v_lshl_or_b32 v4, v4, 18, v{8+i}
    v_and_b32 v3, 0x7fff, v{12+i}
    v_or_b32 v{r+2}, v3, v4
""")
    for i in range(4):
        src = 16 + i // 2
        if i % 2 == 0:
            a(f"v_lshlrev_b32 v{56+i}, 16, v{src}")
        else:
            a(f"v_and_b32 v{56+i}, s23, v{src}")
    for k in range(12):
        src = 20 + k // 2
        if k % 2 == 0:
            a(f"v_lshlrev_b32 v{60+k}, 16, v{src}")
        else:
            a(f"v_and_b32 v{60+k}, s23, v{src}")
    for i in range(4):
        r = 40 + 4 * i
        for j in range(3):
            a(f"v_mul_f32 v{60+3*i+j}, v{56+i}, v{60+3*i+j}")
        a(f"v_cvt_pk_bf16_f32 v{r}, v{56+i}, v{60+3*i}")
        a(f"v_cvt_pk_bf16_f32 v{r+1}, v{61+3*i}, v{62+3*i}")
    a("s_waitcnt lgkmcnt(0)")
    a(f"s_mul_i32 s3, s2, {CH * RECB}")
    if OPT["stage"]:
        for i in range(4):
            r = 40 + 4 * i
            a(f"""
    v_add_u32 v{28+i}, v{28+i}, v{32+i}
    v_mul_u32_u24 v{28+i}, {RECB}, v{28+i}
    v_add_u32 v{28+i}, {K1_STG}, v{28+i}
    ds_write2_b32 v{28+i}, v{r}, v{r+1} offset0:0 offset1:1
    ds_write_b32 v{28+i}, v{r+2} offset:8
""")
        nq = CH * RECB // 16
        a(f"""
    s_mov_b64 exec, -1
    v_lshlrev_b32 v1, 4, v0
    v_add_u32 v2, s3, v1
    s_waitcnt lgkmcnt(0)
    s_barrier
""")
        for i in range(3):
            a(f"ds_read_b128 v[{8+4*i}:{11+4*i}], v1 offset:{K1_STG + 832*16*i}")
        a(f"v_add_u32 v3, {832*16}, v2")
        a(f"v_add_u32 v4, {2*832*16}, v2")
        a(f"v_cmp_gt_u32 vcc, {nq - 2*832}, v0")
        a("s_waitcnt lgkmcnt(2)")
        a(f"global_store_dwordx4 v2, v[8:11], s[18:19]{sf}")
        a("s_waitcnt lgkmcnt(1)")
        a(f"global_store_dwordx4 v3, v[12:15], s[18:19]{sf}")
        a("s_and_saveexec_b64 s[20:21], vcc")
        a("s_cbranch_execz P_fin")
        a("s_waitcnt lgkmcnt(0)")
        a(f"global_store_dwordx4 v4, v[16:19], s[18:19]{sf}")
        a("P_fin:")
    else:
        a(f"s_movk_i32 s22, {RECB}")
        for i in range(4):
            r = 40 + 4 * i
            a(f"""
    v_add_u32 v{28+i}, v{28+i}, v{32+i}
    v_mul_u32_u24 v{28+i}, {RECB}, v{28+i}
    v_add_u32 v{28+i}, s3, v{28+i}
    global_store_dwordx3 v{28+i}, v[{r}:{r+2}], s[18:19]{sf}
""")
    stamp(a, 4)
    if STAMP:
        a("s_waitcnt vmcnt(0)")
    stamp(a, 5)
    stamp_flush(a, 18, 0, 1, 41)
    a("s_branch P_done")
    a(f"""
P_prep:
    s_waitcnt lgkmcnt(0)
    s_lshl_b32 s3, s2, {10 if OPT.get("dcm") else 2}
    s_add_u32 s3, s3, {DESC_OFF}
    v_lshlrev_b32 v1, {2 if OPT.get("dcm") else 10}, v0
    v_add_u32 v1, s3, v1
    v_mov_b32 v2, 0
    v_cmp_gt_u32 vcc, 256, v0
    s_and_saveexec_b64 s[20:21], vcc
    s_cbranch_execz P_prep1
    global_store_dword v1, v2, s[18:19]{df}
P_prep1:
    s_mov_b64 exec, s[20:21]
    s_sub_u32 s3, s2, {NC}
    s_cmp_eq_u32 s3, 5
    s_cbranch_scc1 P_done
    v_cmp_gt_u32 vcc, 512, v0
    s_and_saveexec_b64 s[20:21], vcc
    s_cbranch_execz P_done
    s_cmp_lt_u32 s3, 2
    s_cselect_b32 s24, s14, s16
    s_cselect_b32 s25, s15, s17
    s_sub_u32 s22, s3, 2
    s_cselect_b32 s22, s3, s22
    s_lshl_b32 s22, s22, 13
    v_lshrrev_b32 v1, 8, v0
    v_bfe_u32 v2, v0, 4, 2
    v_lshl_add_u32 v1, v2, 2, v1
    s_lshl_b32 s23, s3, 7
    v_lshl_add_u32 v4, v1, 3, s23
    global_load_dwordx2 v[16:17], v4, s[12:13]
    global_load_dwordx2 v[18:19], v4, s[12:13] offset:16
    v_lshlrev_b32 v1, 9, v1
    v_bfe_u32 v2, v0, 7, 1
    v_bfe_u32 v3, v0, 2, 2
    v_lshl_add_u32 v2, v2, 2, v3
    v_bfe_u32 v3, v0, 6, 1
    v_lshl_add_u32 v2, v2, 1, v3
    v_and_b32 v3, 3, v0
    v_lshl_add_u32 v2, v2, 2, v3
    v_lshl_add_u32 v1, v2, 1, v1
    v_add_u32 v1, s22, v1
""")
    for e in range(8):
        a(f"global_load_ushort v{8+e}, v1, s[24:25] offset:{128*(8*(e>>2)+(e&3))}")
    a(f"""
    s_lshl_b32 s3, s3, 13
    s_add_u32 s3, s3, {WIMG_OFF}
    v_lshl_add_u32 v1, v0, 4, s3
    s_mov_b32 s23, 0xffff0000
    s_waitcnt vmcnt(0)
""")
    for e in range(8):
        a(f"v_lshlrev_b32 v{8+e}, 16, v{8+e}")
        if e % 2 == 0:
            a(f"v_lshlrev_b32 v2, 16, v{16+e//2}")
        else:
            a(f"v_and_b32 v2, s23, v{16+e//2}")
        a(f"v_mul_f32 v{8+e}, v{8+e}, v2")
    for e in range(4):
        a(f"v_cvt_pk_bf16_f32 v{4+e}, v{8+2*e}, v{9+2*e}")
    a(f"""
    global_store_dwordx4 v1, v[4:7], s[18:19]{df}
P_done:
    s_endpgm
""")


ACC = 48
RING = 12 + 4 * max(LS, 3)
STAGE = 12
V_PTR = 2
V_LANE = 3
S_X = 4
S_REC = 8
S_OUT = 12
S_WS = 16
S_WAVE = 18
S_C0 = 19
S_TAKE = 20
S_MORE = 21
S_REGION = 22
S_PH = 23
S_T = 24
S_CNT = 28
S_LEV = 41
S_MASK = 44
S_PART = 92
NSUB = 3


def gen_main(a):
    MAINK[0] = True
    L = V_LANE
    NU = 6
    RB = 160
    RK = 132
    DS = 128
    BAL = OPT.get("bal", 1)
    a(f"""
.p2align 8
.globl main_kernel
.type main_kernel,@function
main_kernel:
    s_cmp_ge_u32 s2, {NB}
    s_cbranch_scc1 M_done
    s_load_dwordx2 s[16:17], s[0:1], 88
    s_load_dwordx2 s[24:25], s[0:1], 0
    s_load_dwordx2 s[26:27], s[0:1], 72
    v_lshrrev_b32 v1, 6, v0
    v_and_b32 v{L}, 63, v0
    v_readfirstlane_b32 s{S_WAVE}, v1
    s_mov_b32 s{S_C0}, 0
    s_movk_i32 s{S_TAKE}, 48
    s_mul_i32 s{S_REGION}, s{S_WAVE}, {REGB}
    s_add_u32 s{S_REGION}, s{S_REGION}, {L_REG}
""")
    if OPT.get("bperm", 1):
        a("""
    s_and_b32 s3, s2, 7
    s_lshl_b32 s3, s3, 5
    s_lshr_b32 s2, s2, 3
    s_or_b32 s2, s2, s3
""")
    a("s_waitcnt lgkmcnt(0)")
    stamp(a, 0)
    srd(a, S_X, 24, N, stride=512)
    srd(a, S_OUT, 26, N * 512)
    srd(a, S_REC, 16, WIMG_OFF + WIMG_BYTES)
    srd(a, S_PART, 16, PART_BYTES, PART_OFF)

    def any_level(u):
        m = S_MASK + 2 * (u * 4)
        a(f"s_or_b64 s[26:27], s[{m}:{m+1}], s[{m+2}:{m+3}]")
        a(f"s_or_b64 s[26:27], s[26:27], s[{m+4}:{m+5}]")
        a(f"s_or_b64 s[26:27], s[26:27], s[{m+6}:{m+7}]")

    def masked(fn, tag, pre=None):
        for u in range(2, NU):
            a(f"s_cmp_eq_u32 s{S_LEV}, {u}")
            a(f"s_cbranch_scc1 M_{tag}_{u-1}")
        for u in range(NU - 1, -1, -1):
            a(f"M_{tag}_{u}:")
            for k in range(4):
                i = u * 4 + k
                m = S_MASK + 2 * i
                if pre:
                    pre(i, u, k)
                a(f"s_mov_b64 exec, s[{m}:{m+1}]")
                fn(i, u, k)
        a("s_mov_b64 exec, -1")

    a(f"""
M_round:
    v_lshrrev_b32 v1, 3, v{L}
    s_lshl_b32 s24, s{S_WAVE}, 3
    v_add_u32 v1, s24, v1
""")
    if OPT.get("dcm"):
        a(f"""
    s_lshl_b32 s24, s2, 2
    s_add_u32 s24, s24, {DESC_OFF}
    v_lshl_add_u32 v4, v1, 12, s24
    global_load_dword v{DS}, v4, s[16:17]
    global_load_dword v{DS+1}, v4, s[16:17] offset:1024
    global_load_dword v{DS+2}, v4, s[16:17] offset:2048
    global_load_dword v{DS+3}, v4, s[16:17] offset:3072
""")
        if OPT.get("spec"):
            a(f"""
    s_mul_i32 s24, s2, {round(CH * NPB * RECB / N * 64)}
    s_lshr_b32 s24, s24, 6
    s_mul_i32 s26, s{S_WAVE}, {32*CH*RECB}
    s_add_u32 s24, s24, s26
    s_and_b32 s24, s24, -4
    s_mov_b32 m0, {L_DUMMY}
    v_lshrrev_b32 v5, 1, v{L}
    v_mul_u32_u24 v5, {CH*RECB}, v5
    v_and_b32 v6, 1, v{L}
    v_mul_u32_u24 v6, 76, v6
    v_add3_u32 v5, v5, v6, s24
    buffer_load_dword v5, s[{S_REC}:{S_REC+3}], 0 offen lds
""")
    else:
        a(f"""
    s_lshl_b32 s24, s2, 10
    s_add_u32 s24, s24, {DESC_OFF}
    v_lshl_add_u32 v4, v1, 4, s24
    global_load_dwordx4 v[{DS}:{DS+3}], v4, s[16:17]
""")
    a(f"""
    s_lshl_b32 s24, s{S_WAVE}, 9
    v_lshl_add_u32 v0, v{L}, 3, s24
    v_mov_b32 v4, 0
    v_mov_b32 v5, 0
    v_mov_b32 v6, {PADIDX:#x}
    v_mov_b32 v7, 0
    ds_write_b64 v0, v[4:5] offset:{L_HIST}
    ds_write_b64 v4, v[4:5] offset:{L_FLAG}
    v_lshlrev_b32 v2, 3, v{L}
    ds_write_b64 v2, v[4:5] offset:{L_RANK}
    v_lshl_add_u32 v2, v{L}, 4, s{S_REGION}
""")
    for i in range(REGB // 1024):
        a(f"ds_write_b128 v2, v[4:7] offset:{1024*i}")
    a(f"""
    s_mov_b32 s24, {4*CH*RECB}
    v_mul_lo_u32 v1, v1, s24
    v_and_b32 v0, 7, v{L}
    v_add_u32 v0, s{S_C0}, v0
    s_movk_i32 s24, {RECB}
    v_mad_u32_u24 v1, v0, s24, v1
    s_add_u32 s25, s{S_C0}, s{S_TAKE}
    v_mov_b32 v24, 0
    v_mov_b32 v25, {OOB:#x}
    s_waitcnt vmcnt({1 if OPT.get("spec") else 0})
""")
    stamp(a, 1)
    for k in range(4):
        d = DS + k
        a(f"""
    v_lshrrev_b32 v26, 16, v{d}
    v_max_u32 v24, v24, v26
    v_min_u32 v26, s25, v26
    v_sub_u32 v26, v26, v0
    v_and_b32 v{d}, 0xffff, v{d}
    v_mad_u32_u24 v{d}, v{d}, s24, v1
""")
        for u in range(NU):
            m = S_MASK + 2 * (u * 4 + k)
            a(f"v_cmp_lt_i32 s[{m}:{m+1}], {8*u}, v26")
        if k < 3:
            a(f"v_add_u32 v1, {CH*RECB}, v1")
    a(f"s_mov_b32 s{S_LEV}, 2")
    for u in range(2, NU):
        any_level(u)
        a(f"s_cselect_b32 s{S_LEV}, {u+1}, s{S_LEV}")
    for u in range(2, NU):
        a(f"s_cmp_eq_u32 s{S_LEV}, {u}")
        a(f"s_cbranch_scc1 M_ld_{u-1}")
    for u in range(NU - 1, -1, -1):
        a(f"M_ld_{u}:")
        for k in range(4):
            i = u * 4 + k
            m = S_MASK + 2 * i
            r = RB + 4 * i
            a(f"v_cndmask_b32 v{r+3}, v25, v{DS+k}, s[{m}:{m+1}]")
            a(f"buffer_load_dwordx3 v[{r}:{r+2}], v{r+3}, s[{S_REC}:{S_REC+3}], 0 offen offset:{8*RECB*u}" + ['', ' nt', ' sc1'][OPT.get('rf', 0)])
    a(f"""
    s_waitcnt lgkmcnt(0)
    s_barrier
    v_cmp_lt_u32 vcc, s25, v24
    s_and_saveexec_b64 s[26:27], vcc
    v_mov_b32 v1, 1
    ds_write_b32 v4, v1 offset:{L_FLAG+4}
    s_mov_b64 exec, -1
    v_mov_b32 v6, 0
    v_and_b32 v12, 31, v{L}
    v_lshrrev_b32 v24, 5, v{L}
    v_lshl_add_u32 v{V_PTR}, v24, 4, s{S_REGION}
""")
    for j in range(5):
        a(f"v_mfma_f32_32x32x16_bf16 v[{ACC+16*j}:{ACC+16*j+15}], v[4:7], v[4:7], 0")
    a(f"""
    v_lshrrev_b32 v24, 3, v12
    v_lshlrev_b32 v24, 1, v24
    v_add_u32 v25, 1, v24
    v_lshl_or_b32 v24, v25, 8, v24
    v_and_b32 v25, 1, v12
    v_lshlrev_b32 v25, 4, v25
    v_mov_b32 v26, 0xffff
    v_lshlrev_b32 v26, v25, v26
    v_lshlrev_b32 v24, v25, v24
    v_mov_b32 v27, 0x0c0c0c0c
    v_bfi_b32 v24, v26, v24, v27
    v_bfe_u32 v25, v12, 1, 2
""")
    for j in range(4):
        a(f"v_cmp_eq_u32 vcc, {j}, v25")
        a("s_nop 1")
        a(f"v_cndmask_b32 v{8+j}, v27, v24, vcc")
    a(f"v_lshlrev_b32 v{STAGE+3}, 4, v12")
    if OPT["warm"]:
        a(f"""
""")
        if OPT.get("wint"):
            a(f"""
    s_and_b32 s24, s2, 31
    s_lshl_b32 s24, s24, 3
    s_lshr_b32 s26, s2, 5
    s_or_b32 s24, s24, s26
""")
        else:
            a(f"""s_and_b32 s24, s2, {31 if (OPT.get("k1warm") or OPT.get("rot")) else 255}""")
        a(f"""
    s_lshl_b32 s24, s24, 3
    s_add_u32 s24, s24, s{S_WAVE}
    s_mul_i32 s24, s24, 13
""")
        if OPT.get("rot"):
            a(f"s_lshr_b32 s26, s2, 5")
            a(f"s_mul_i32 s26, s26, {PH}")
            a(f"s_add_u32 s24, s24, s26")
        a(f"""
    v_lshrrev_b32 v156, 2, v{L}
    v_add_u32 v156, s24, v156
    v_and_b32 v157, 3, v{L}
    v_lshlrev_b32 v157, 7, v157
    v_cmp_gt_u32 vcc, 52, v{L}
    v_mov_b32 v24, {PADIDX:#x}
    s_mov_b32 m0, {L_DUMMY}
    v_cndmask_b32 v156, v24, v156, vcc
""")
    a(f"""
    v_and_b32 v12, 7, v{L}
    s_lshl_b32 s24, s{S_WAVE}, 6
    v_lshl_add_u32 v13, v12, 3, s24
    v_lshrrev_b32 v14, 3, v{L}
    v_lshlrev_b32 v14, 2, v14
    v_lshlrev_b32 v16, 5, v{L}
    v_mov_b32 v1, 2
""")
    if not BAL:
        a(f"""
    v_lshlrev_b32 v20, 4, v12
    v_add_u32 v20, s{S_WAVE}, v20
    v_add_u32 v21, 8, v20
    ds_write_b64 v13, v[20:21] offset:{L_MAP}
""")
    a("v_lshlrev_b32 v12, 2, v12")
    a("s_waitcnt vmcnt(8)")
    stamp(a, 2)

    def pre_atomic(i, u, k):
        if u < 2:
            a(f"s_waitcnt vmcnt({u * 4 + 3 - k})")

    def f_atomic(i, u, k):
        r = RB + 4 * i
        a(f"v_lshrrev_b32 v{r+3}, 16, v{r+2}")
        a(f"ds_add_rtn_u32 v{RK+i}, v{r+3}, v1 offset:{L_HIST}")
    masked(f_atomic, "at", pre_atomic)
    a(f"""
    s_mul_i32 s24, s{S_WAVE}, 5120
    s_add_u32 s26, s24, {L_W}
    s_mov_b32 m0, s26
    s_add_u32 s24, s24, {WIMG_OFF}
    v_lshl_add_u32 v158, v{L}, 4, s24
""")
    for i in range(4):
        a(f"buffer_load_dwordx4 v158, s[{S_REC}:{S_REC+3}], 0 offen offset:{1024*i} lds")
    a(f"""
    s_add_u32 s26, s26, 4096
    s_mov_b32 m0, s26
    v_add_u32 v158, 4096, v158
    buffer_load_dwordx4 v158, s[{S_REC}:{S_REC+3}], 0 offen lds
""")
    a(f"s_mov_b32 m0, {L_DUMMY}")
    a("s_nop 0")
    a("s_waitcnt lgkmcnt(0)")
    pstamp(a, 1)
    a("s_barrier")
    pstamp(a, 2)
    if OPT.get("l2pf"):
        a(f"s_lshr_b32 s24, s2, 5")
        a(f"s_mul_i32 s24, s24, {32*8*13}")
        a(f"v_subrev_u32 v158, s24, v156")
        a(f"v_cmp_gt_u32 vcc, 52, v{L}")
        a(f"v_mov_b32 v159, v157")
        a(f"s_nop 0")
        a(f"v_cndmask_b32 v158, v156, v158, vcc")
        if OPT["l2pf"] == 1:
            a(f"buffer_load_dword v[158:159], s[{S_X}:{S_X+3}], 0 idxen offen lds")
    if OPT["warm"]:
        a(f"buffer_load_dword v[156:157], s[{S_X}:{S_X+3}], 0 idxen offen lds")
    if OPT.get("l2pf") == 2:
        a(f"buffer_load_dword v[158:159], s[{S_X}:{S_X+3}], 0 idxen offen lds")
    if OPT["warm"]:
        for _ in range(OPT["warm"] - 1):
            a(f"v_add_u32 v156, 3328, v156")
            a(f"buffer_load_dword v[156:157], s[{S_X}:{S_X+3}], 0 idxen offen lds")

    def f_taddr(i, u, k):
        r = RB + 4 * i
        a(f"v_min_u32 v0, 2, v{RK+i}")
        a(f"v_add_lshl_u32 v{r+3}, v{r+3}, v0, 1")

    if BAL:
        a(f"""
    ds_read_b128 v[24:27], v16 offset:{L_HIST}
    ds_read_b128 v[28:31], v16 offset:{L_HIST+16}
    ds_read_b128 v[32:35], v16 offset:{L_HIST+2048}
    ds_read_b128 v[36:39], v16 offset:{L_HIST+2064}
    v_sub_u32 v40, {2*128 + 127}, v{L}
    v_sub_u32 v41, {2*128 + 63}, v{L}
    v_mov_b32 v42, 0
    v_mov_b32 v43, 0
    s_lshl_b32 s24, s{S_WAVE}, 3
    s_waitcnt lgkmcnt(2)
    v_add3_u32 v24, v24, v25, v26
    v_add3_u32 v28, v28, v29, v30
    v_add3_u32 v24, v24, v27, v31
    s_waitcnt lgkmcnt(0)
    v_add3_u32 v32, v32, v33, v34
    v_add3_u32 v36, v36, v37, v38
    v_add3_u32 v32, v32, v35, v39
    v_add_u32 v24, v24, v28
    v_add_u32 v32, v32, v36
    v_lshl_add_u32 v40, v24, 7, v40
    v_lshl_add_u32 v41, v32, 7, v41
    v_and_b32 v40, 0xfffffe7f, v40
    v_and_b32 v41, 0xfffffe7f, v41
""")
        sel = [(40, i) for i in range(8)] + [(41, None)] * 5
        for n in range(13):
            if n < 8:
                a(f"s_add_u32 s25, s24, {n}")
                a(f"v_readlane_b32 s{28+n}, v40, s25")
            else:
                a(f"s_add_u32 s25, s{S_WAVE}, {8*(n-8)}")
                a(f"v_readlane_b32 s{28+n}, v41, s25")
        for n in range(13):
            p0, p1 = ("vcc", "s[26:27]") if n % 2 == 0 else ("s[24:25]", "s[42:43]")
            a(f"v_cmp_gt_u32 {p0}, s{28+n}, v40")
            a(f"v_cmp_gt_u32 {p1}, s{28+n}, v41")
            if n:
                q0, q1 = ("vcc", "s[26:27]") if n % 2 == 1 else ("s[24:25]", "s[42:43]")
                a(f"v_addc_co_u32 v42, {q0}, 0, v42, {q0}")
                a(f"v_addc_co_u32 v43, {q1}, 0, v43, {q1}")
        a(f"""
    v_lshlrev_b32 v44, 2, v{L}
    v_mov_b32 v20, 127
    v_addc_co_u32 v42, vcc, 0, v42, vcc
    v_addc_co_u32 v43, s[26:27], 0, v43, s[26:27]
    v_mov_b32 v21, 127
    ds_add_u32 v44, v42 offset:{L_RANK}
    ds_add_u32 v44, v43 offset:{L_RANK+256}
    ds_write_b64 v13, v[20:21] offset:{L_MAP}
""")
        if OPT.get("carry", 1):
            masked(f_taddr, "ta")
        a(f"""
    s_waitcnt lgkmcnt(0)
    s_barrier
    ds_read_b32 v42, v44 offset:{L_RANK}
    ds_read_b32 v43, v44 offset:{L_RANK+256}
    v_add_u32 v41, 64, v{L}
    s_lshl_b32 s24, s{S_WAVE}, 6
    s_waitcnt lgkmcnt(0)
    v_bfe_i32 v45, v42, 3, 1
    v_bfe_i32 v46, v43, 3, 1
    v_xor_b32 v45, v45, v42
    v_xor_b32 v46, v46, v43
    v_and_b32 v45, 7, v45
    v_and_b32 v46, 7, v46
    v_cmp_eq_u32 vcc, s{S_WAVE}, v45
    v_cmp_eq_u32 s[26:27], s{S_WAVE}, v46
    v_lshrrev_b32 v42, 3, v42
    v_lshrrev_b32 v43, 3, v43
    v_lshl_add_u32 v42, v42, 2, s24
    v_lshl_add_u32 v43, v43, 2, s24
    s_mov_b64 exec, vcc
    ds_write_b32 v42, v{L} offset:{L_MAP}
    s_mov_b64 exec, s[26:27]
    ds_write_b32 v43, v41 offset:{L_MAP}
    s_mov_b64 exec, -1
    ds_read_b64 v[20:21], v13 offset:{L_MAP}
    s_waitcnt lgkmcnt(0)
""")
    def prefix_carry():
        a(f"""
    v_lshlrev_b32 v20, 5, v20
    v_lshlrev_b32 v21, 5, v21
    ds_read_b128 v[24:27], v20 offset:{L_HIST}
    ds_read_b128 v[28:31], v20 offset:{L_HIST+16}
    ds_read_b128 v[32:35], v21 offset:{L_HIST}
    ds_read_b128 v[36:39], v21 offset:{L_HIST+16}
    v_add_u32 v20, v14, v20
    v_add_u32 v21, v14, v21
    ds_read_b32 v40, v20 offset:{L_HIST}
    ds_read_b32 v41, v21 offset:{L_HIST}
""")
        if not BAL:
            masked(f_taddr, "ta")
        a(f"""
    v_mov_b32 v42, 0
    v_mov_b32 v43, 0
    v_mov_b32 v44, v12
    v_mov_b32 v45, v12
    v_lshlrev_b32 v20, 1, v20
    v_lshlrev_b32 v21, 1, v21
    s_waitcnt lgkmcnt(0)
""")
        for q in range(1, 8):
            lo = (0xFFFFFFFFFFFFFFFF << (8 * q)) & 0xFFFFFFFF
            hi = ((0xFFFFFFFFFFFFFFFF << (8 * q)) >> 32) & 0xFFFFFFFF
            if q <= 4:
                a(f"s_mov_b32 exec_lo, {lo:#x}")
            else:
                a(f"s_mov_b32 exec_hi, {hi:#x}")
            a(f"v_cmp_ne_u32 vcc, 0, v{24+q-1}")
            a(f"v_cmp_ne_u32 s[26:27], 0, v{32+q-1}")
            a(f"v_add_u32 v42, v42, v{24+q-1}")
            a(f"v_add_u32 v43, v43, v{32+q-1}")
            a(f"v_cndmask_b32 v44, v44, v12, vcc")
            a(f"v_cndmask_b32 v45, v45, v12, s[26:27]")
            a(f"v_add_u32 v12, 32, v12")
        a(f"""
    s_mov_b64 exec, -1
    v_add_u32 v46, 2, v42
    v_add_u32 v47, 2, v43
    v_add_u32 v0, v46, v40
    v_add_u32 v1, v47, v41
    v_lshrrev_b32 v46, 2, v46
    v_lshrrev_b32 v47, 2, v47
    v_lshrrev_b32 v0, 2, v0
    v_lshrrev_b32 v1, 2, v1
    v_sub_u32 v0, v0, v46
    v_sub_u32 v1, v1, v47
    v_add_u32 v24, v0, v1
    v_mov_b32 v25, v24
""")
        wave_scan(a, 25)
        a(f"""
    v_readlane_b32 s24, v25, 63
    v_sub_u32 v24, v25, v24
    v_lshl_add_u32 v27, v24, 5, s{S_REGION}
    v_lshl_add_u32 v29, v0, 5, v27
    v_and_b32 v42, 2, v42
    v_and_b32 v43, 2, v43
    v_lshlrev_b32 v46, 3, v42
    v_lshlrev_b32 v47, 3, v43
    v_sub_u32 v27, v27, v46
    v_sub_u32 v29, v29, v47
    v_lshl_add_u32 v46, v40, 3, v27
    v_lshl_add_u32 v47, v41, 3, v29
    ds_bpermute_b32 v26, v44, v46
    ds_bpermute_b32 v28, v45, v47
    v_cmp_eq_u32 vcc, 0, v42
    v_cmp_eq_u32 s[26:27], 0, v43
    s_cmp_le_u32 s24, {CAPP}
    s_cbranch_scc1 M_noovf
    v_mov_b32 v30, 1
    ds_write_b32 v4, v30 offset:{L_FLAG}
M_noovf:
    s_waitcnt lgkmcnt(0)
    v_cndmask_b32 v26, v26, v27, vcc
    v_cndmask_b32 v28, v28, v29, s[26:27]
    ds_write_b64 v20, v[26:27] offset:{L_TAB}
    ds_write_b64 v21, v[28:29] offset:{L_TAB}
    s_waitcnt lgkmcnt(0)
""")

    CARRY = OPT.get("carry", 1)
    if CARRY:
        prefix_carry()
    else:
        a(f"""
    v_lshl_add_u32 v20, v20, 5, v14
    v_lshl_add_u32 v21, v21, 5, v14
    ds_read_b32 v0, v20 offset:{L_HIST}
    ds_read_b32 v1, v21 offset:{L_HIST}
    s_waitcnt lgkmcnt(0)
    v_add_u32 v0, 2, v0
    v_add_u32 v1, 2, v1
    v_lshrrev_b32 v0, 2, v0
    v_lshrrev_b32 v1, 2, v1
    v_add_u32 v24, v0, v1
    v_mov_b32 v25, v24
""")
        wave_scan(a, 25)
        a(f"""
    v_readlane_b32 s24, v25, 63
    v_sub_u32 v24, v25, v24
    v_lshl_add_u32 v27, v24, 5, s{S_REGION}
    v_lshl_add_u32 v29, v0, 5, v27
    ds_write_b32 v20, v27 offset:{L_HIST}
    ds_write_b32 v21, v29 offset:{L_HIST}
    s_cmp_le_u32 s24, {CAPP}
    s_cbranch_scc1 M_noovf
    v_mov_b32 v30, 1
    ds_write_b32 v4, v30 offset:{L_FLAG}
M_noovf:
    s_waitcnt lgkmcnt(0)
""")
    pstamp(a, 4)
    a(f"""
    s_barrier
    ds_read_b64 v[20:21], v4 offset:{L_FLAG}
""")
    masked(lambda i, u, k: a(f"ds_read_b32 v{RB+4*i+3}, v{RB+4*i+3} offset:{L_TAB if CARRY else L_HIST}"), "lk")
    for r in range(D):
        a(f"v_mov_b32 v{RING+4*r+1}, v{STAGE+3}")
    for st in range(1, LS):
        a(f"v_mov_b32 v{STAGE+4*st+3}, v{STAGE+3}")
    a(f"""
    s_waitcnt lgkmcnt(0)
    v_readfirstlane_b32 s24, v20
    v_readfirstlane_b32 s{S_MORE}, v21
    s_cmp_eq_u32 s24, 0
    s_cbranch_scc1 M_go
    s_lshr_b32 s{S_TAKE}, s{S_TAKE}, 1
    s_max_u32 s{S_TAKE}, s{S_TAKE}, 1
    s_waitcnt vmcnt(0)
    s_barrier
    s_branch M_round
M_go:
""")
    pstamp(a, 5)

    def f_scatter(i, u, k):
        r = RB + 4 * i
        a(f"v_lshl_add_u32 v{r+3}, v{RK+i}, 3, v{r+3}")
        a(f"ds_write_b16 v{r+3}, v{r+2} offset:8")
        a(f"ds_write_b64 v{r+3}, v[{r}:{r+1}] offset:{32*(D-1)}")
    masked(f_scatter, "sc")
    a(f"s_waitcnt vmcnt({OPT['warm'] + (1 if OPT.get('l2pf') else 0)}) lgkmcnt(0)")
    a("s_barrier")
    stamp(a, 3)
    cstamp(a, 1)
    for r in range(D):
        a(f"ds_read_b32 v{RING+4*r}, v{V_PTR} offset:{32*r+8}")
    a(f"ds_read_b64 v[{RING+2}:{RING+3}], v{V_PTR} offset:{32*(D-1)}")
    for st in range(LS):
        a(f"ds_read_b96 v[{STAGE+4*st}:{STAGE+4*st+2}], v{V_PTR} offset:{32*(D+st)}")
    for j in range(5, NSLOT):
        a(f"v_mfma_f32_32x32x16_bf16 v[{ACC+16*j}:{ACC+16*j+15}], v[4:7], v[4:7], 0")
    a(f"s_waitcnt lgkmcnt({LS})")
    for j in range(4):
        a(f"v_perm_b32 v{4+j}, v{RING+3}, v{RING+2}, v{8+j}")
    for r in range(D):
        a(f"buffer_load_dwordx4 v[{RING+4*r}:{RING+4*r+3}], v[{RING+4*r}:{RING+4*r+1}], s[{S_X}:{S_X+3}], 0 idxen offen")
    a(f"s_mov_b32 s{S_PH}, 0")
    xf = ["", " nt", " sc1", " sc0"][OPT.get("xf", 0)]
    PB = 2 if OPT.get("eprio") else 0
    if OPT.get("eprio"):
        a("s_setprio 2")
    if OPT.get("offen"):
        a(f"s_mov_b32 s{S_MASK}, s{S_X}")
        a(f"s_and_b32 s{S_MASK+1}, s{S_X+1}, 0xffff")
        a(f"s_mov_b32 s{S_MASK+2}, {N*512}")
        a(f"s_mov_b32 s{S_MASK+3}, 0x20000")
    if OPT.get("prio") == 2:
        a(f"s_cmp_lt_u32 s{S_WAVE}, 4")
        a("s_cbranch_scc1 M_PE0")
        a("s_setprio 1")
    a("s_branch M_epi" if OPT.get("nomain") else "s_branch M_PE0")
    assert D % LS == 0
    for j in range(NSLOT):
        ac = ACC + 16 * j
        for r in range(D):
            nxt = f"M_B{j+1}_{r}" if j + 1 < NSLOT else f"M_PE{r}"
            rg = RING + 4 * r
            st = STAGE + 4 * (r % LS)
            a(f"""
M_B{j}_{r}:
    s_sub_u32 s{S_CNT+j}, s{S_CNT+j}, 1
    s_cbranch_scc1 {nxt}
    s_waitcnt vmcnt({D-1}) lgkmcnt({LS-1})
""")
            if OPT.get("offen"):
                a(f"v_lshl_add_u32 v{st+2}, v{st+2}, 9, v{st+3}")
            a(f"v_mfma_f32_32x32x16_bf16 v[{ac}:{ac+15}], v[4:7], v[{rg}:{rg+3}], v[{ac}:{ac+15}]")
            if OPT.get("offen"):
                a(f"buffer_load_dwordx4 v[{rg}:{rg+3}], v{st+2}, s[{S_MASK}:{S_MASK+3}], 0 offen")
            else:
                a(f"buffer_load_dwordx4 v[{rg}:{rg+3}], v[{st+2}:{st+3}], s[{S_X}:{S_X+3}], 0 idxen offen{xf}")
            a(f"""
    v_perm_b32 v4, v{st+1}, v{st}, v8
    v_perm_b32 v5, v{st+1}, v{st}, v9
    v_perm_b32 v6, v{st+1}, v{st}, v10
    v_perm_b32 v7, v{st+1}, v{st}, v11
    ds_read_b96 v[{st}:{st+2}], v{V_PTR} offset:{32*(r+D+LS)}
""")
            if r == D - 1:
                a(f"v_add_u32 v{V_PTR}, {32*D}, v{V_PTR}")
                a(f"s_branch M_B{j}_0")
    for r in range(D):
        a(f"""
M_PE{r}:
    s_cmp_ge_u32 s{S_PH}, {8*OPT.get("nph", 8)}
    s_cbranch_scc1 M_epi
""")
        for j in range(NSLOT):
            if j % 2 == 0:
                a(f"s_add_u32 s24, s{S_PH}, {j//2}")
            a(f"v_readlane_b32 s{S_CNT+j}, v{j % 2}, s24")
        a(f"s_add_u32 s{S_PH}, s{S_PH}, 8")
        if OPT.get("phbar"):
            a("s_barrier")
        if OPT.get("prio") == 1:
            a(f"s_lshr_b32 s24, s{S_PH}, 1")
            a(f"s_xor_b32 s24, s24, s{S_WAVE}")
            a(f"s_bitcmp1_b32 s24, 2")
            a(f"s_setprio {PB}")
            a(f"s_cbranch_scc0 M_B0_{r}")
            a(f"s_setprio {PB+1}")
        a(f"s_branch M_B0_{r}")
    a("M_epi:")
    if OPT.get("noepi") == 1:
        a("s_endpgm")
    if OPT.get("eprio"):
        a("s_setprio 0")
    if STAMP:
        a("s_waitcnt vmcnt(0) lgkmcnt(0)")
    stamp(a, 4)
    cstamp(a, 2)
    if OPT.get("noepi") == 2:
        a("s_branch M_end")
    if OPT.get("ebar"):
        a("s_barrier")
    a(f"""
    ; v0 = staging write addr, v1 = staging read addr, v2 = W image addr, v4 = local node, v5 = q
    v_lshl_add_u32 v0, v{L}, 3, s{S_REGION}
    v_and_b32 v4, 15, v{L}
    v_lshrrev_b32 v5, 4, v{L}
    v_mul_u32_u24 v1, {STG}, v4
    v_lshl_add_u32 v1, v5, 4, v1
    v_add_u32 v1, s{S_REGION}, v1
    v_lshlrev_b32 v2, 4, v{L}
    v_add_u32 v2, {L_W}, v2
    s_lshl_b32 s24, s{S_WAVE}, 6
    v_lshl_add_u32 v4, v4, 2, s24
    ds_read_b32 v4, v4 offset:{L_MAP}
    s_mov_b32 s26, 0x80008000
""")

    of = ["", " nt", " sc1", " sc0 sc1"][OPT.get("ost", 1)]
    Q = [[ACC + 16 * j + 4 * kc for j in range(NSLOT)] for kc in range(4)]
    BFS = [[8, 12, 16, 20, 24, 28, 32, 36], Q[0][0:8], Q[2][3:11], Q[3][0:8]]
    BF = {(kc, c, ks): BFS[kc][c * 2 + ks] for kc in range(4) for c in range(4) for ks in range(2)}
    outq = Q[1][0:13] + Q[2][0:3]
    order = [(0, 0), (0, 1), (0, 2), (0, 3)] + [(o, t) for t in range(4) for o in (1, 2, 3)]
    OUT = {ot: outq[i] for i, ot in enumerate(order)}
    AF = Q[0][8:13] + [40, 44]
    GATE = Q[3][8:12]
    NA = len(AF)
    S = Sched(a)

    def f_cvt(kc):
        ops = []
        for j in range(NSLOT):
            q = Q[kc][j]
            ops.append(("valu", f"v_cvt_pk_bf16_f32 v{q}, v{q}, v{q+1}", [q, q + 1], [q]))
            ops.append(("valu", f"v_cvt_pk_bf16_f32 v{q+1}, v{q+2}, v{q+3}", [q + 2, q + 3], [q + 1]))
        return ops

    def f_w(kc):
        return [("dsw", f"ds_write_b64 v0, v[{Q[kc][j]}:{Q[kc][j]+1}] offset:{STG*j}", [Q[kc][j], Q[kc][j] + 1], [])
                for j in range(NSLOT)]

    def f_rb(kc):
        return [("dsr", f"ds_read_b128 v[{BF[kc,c,ks]}:{BF[kc,c,ks]+3}], v1 offset:{c*64+ks*256}", [], R(BF[kc, c, ks]))
                for c in range(4) for ks in range(2)]

    use = {m: [] for m in range(5)}
    negs = []
    for kc in range(4):
        for c in range(4):
            if kc == 0:
                m, o = (0, 0) if c == 0 else (3, c)
            else:
                jj = kc - 1
                if c == 0:
                    m, o = 2, kc
                elif c - 1 == jj:
                    m, o = 1, 0
                else:
                    m, o = 4, 1 + (3 - jj - (c - 1))
                    if c - 1 != (jj + 1) % 3:
                        negs.append((kc, c))
            use[m].append((kc, c, o))
    frs = [(0, ks, t) for t in range(4) for ks in range(2)] + [(3, ks, t) for t in range(4) for ks in range(2)] \
        + [(1, ks, t) for t in range(4) for ks in range(2)] \
        + [(m, ks, t) for t in range(4) for m in (2, 4) for ks in range(2)]

    def f_af(n):
        m, ks, t = frs[n]
        q = AF[n % NA]
        return ("dsr", f"ds_read_b128 v[{q}:{q+3}], v2 offset:{((m*2+ks)*4+t)*1024}", [], R(q))

    def emit(o):
        if OPT.get("nostore") and o[0] == "store":
            return
        if OPT.get("nodsw") and o[0] == "dsw":
            return
        if OPT.get("nodsr") and o[0] == "dsr":
            return
        if OPT.get("novalu") and o[0] in ("valu", "trans") and "v4" not in o[1]:
            return
        S.op(o[0], o[1], o[2], o[3])

    for o in f_cvt(0):
        emit(o)
    a("s_waitcnt vmcnt(0) lgkmcnt(0)")
    for o in f_w(0) + f_rb(0):
        emit(o)
    for n in range(NA):
        emit(f_af(n))
    for o in f_cvt(1) + f_w(1):
        emit(o)
    neg_ops = [("valu", f"v_xor_b32 v{BF[kc,c,kk]+i}, s26, v{BF[kc,c,kk]+i}", [BF[kc, c, kk] + i], [BF[kc, c, kk] + i])
               for (kc, c) in negs for kk in range(2) for i in range(4)]
    addr_ops = [
        ("valu", f"v_cmp_gt_u32 vcc, {NPB}, v4", [4], []),
        ("other", f"s_mul_i32 s24, s2, {NPB}", [], []),
        ("valu", "v_add_u32 v4, s24, v4", [4], [4]),
        ("valu", "v_lshlrev_b32 v4, 9, v4", [4], [4]),
        ("valu", "v_lshl_add_u32 v4, v5, 4, v4", [4, 5], [4]),
        ("valu", f"v_mov_b32 v5, {OOB:#x}", [], [5]),
        ("valu", "v_cndmask_b32 v4, v5, v4, vcc", [4, 5], [4]),
        ("other", "s_mov_b32 s24, 0xbfb8aa3b", [], []),
    ]
    fill = f_rb(1) + f_cvt(2) + f_w(2) + f_rb(2) + f_cvt(3) + f_w(3) + f_rb(3) + addr_ops + neg_ops
    gate_ops = []
    for t in range(4):
        for i in range(4):
            gate_ops.append(("valu", f"v_mul_f32 v{GATE[t]+i}, s24, v{OUT[0,t]+i}", [OUT[0, t] + i], [GATE[t] + i]))
    G = [GATE[t] + i for t in range(4) for i in range(4)]
    gate_ops += [("trans", f"v_exp_f32 v{g}, v{g}", [g], [g]) for g in G]
    gate_ops += [("valu", f"v_add_f32 v{g}, 1.0, v{g}", [g], [g]) for g in G]
    gate_ops += [("trans", f"v_rcp_f32 v{g}, v{g}", [g], [g]) for g in G]
    PK = [8, 12, 16, 20, 24, 28, 32, 36]

    def f_store(o, k):
        ops = []
        p = PK[o * 2 + k]
        d0, d1 = OUT[o, 2 * k], OUT[o, 2 * k + 1]
        if o:
            for t in (2 * k, 2 * k + 1):
                d = OUT[o, t]
                g = GATE[t]
                ops.append(("valu", f"v_pk_mul_f32 v[{d}:{d+1}], v[{d}:{d+1}], v[{g}:{g+1}]", [d, d + 1, g, g + 1], [d, d + 1]))
                ops.append(("valu", f"v_pk_mul_f32 v[{d+2}:{d+3}], v[{d+2}:{d+3}], v[{g+2}:{g+3}]", [d + 2, d + 3, g + 2, g + 3], [d + 2, d + 3]))
        for i, dd in enumerate((d0, d0 + 2, d1, d1 + 2)):
            ops.append(("valu", f"v_cvt_pk_bf16_f32 v{p+i}, v{dd}, v{dd+1}", [dd, dd + 1], [p + i]))
        ops.append(("store", f"buffer_store_dwordx4 v[{p}:{p+3}], v4, s[{S_OUT}:{S_OUT+3}], 0 offen offset:{o*128+k*64}{of}",
                    R(p) + [4], []))
        return ops

    def gemm(S, fill, late):
        fill = list(fill)
        touched = set()
        for n, (m, ks, t) in enumerate(frs):
            if n in (14, 16, 24):
                lim = {14: len(f_rb(1) + f_cvt(2) + f_w(2)), 16: 3 * 8 + 2 * 39, 24: 10 ** 6}[n]
                while fill and done[0] < lim:
                    emit(fill.pop(0))
                    done[0] += 1
            fill += late.get(n, [])
            q = AF[n % NA]
            for (kc, c, o) in use[m]:
                b = BF[kc, c, ks]
                d = OUT[o, t]
                first = (o, t) not in touched
                touched.add((o, t))
                cin = "0" if first else f"v[{d}:{d+3}]"
                if not OPT.get("noem"):
                  S.op("mfma", f"v_mfma_f32_16x16x32_bf16 v[{d}:{d+3}], v[{q}:{q+3}], v[{b}:{b+3}], {cin}",
                     R(q) + R(b), R(d), [] if first else R(d))
                for _ in range(FPM):
                    if fill:
                        emit(fill.pop(0))
                        done[0] += 1
            if n + NA < len(frs):
                emit(f_af(n + NA))
        return fill

    FPM = OPT.get("fpm", 3)
    done = [0]
    a(f"s_or_b32 s27, s{S_C0}, s{S_MORE}")
    a("s_cmp_eq_u32 s27, 0")
    a("s_cbranch_scc0 M_multi")
    import copy
    S2 = copy.deepcopy(S)
    S2.a = a
    if OPT.get("adj"):
        late = {25: gate_ops + f_store(0, 0)[:-1] + f_store(0, 1) + f_store(0, 0)[-1:],
                33: f_store(1, 0)[:-1] + f_store(2, 0)[:-1] + f_store(3, 0)[:-1]}
        rest = gemm(S, fill, late)
        for o in rest + f_store(1, 1) + f_store(1, 0)[-1:] + f_store(2, 1) + f_store(2, 0)[-1:] + f_store(3, 1) + f_store(3, 0)[-1:]:
            emit(o)
    else:
        late = {25: gate_ops + f_store(0, 0) + f_store(0, 1),
                33: f_store(1, 0) + f_store(2, 0) + f_store(3, 0)}
        rest = gemm(S, fill, late)
        for o in rest + f_store(1, 1) + f_store(2, 1) + f_store(3, 1):
            emit(o)
    a("s_branch M_end")
    a("M_multi:")
    S = S2
    done = [0]
    rest = gemm(S, fill, {})
    for o in rest:
        emit(o)
    a(f"""
    s_nop 7
    v_lshlrev_b32 v0, 1, v4
    v_cndmask_b32 v0, v5, v0, vcc
    s_cmp_eq_u32 s{S_C0}, 0
    s_cbranch_scc1 M_noload
""")

    def poff(o, t):
        return o * 256 + (t >> 1) * 128 + (t & 1) * 16
    for o in range(4):
        for t in range(4):
            a(f"buffer_load_dwordx4 v[{8+4*t}:{11+4*t}], v0, s[{S_PART}:{S_PART+3}], 0 offen offset:{poff(o,t)} sc1")
        a("s_waitcnt vmcnt(0)")
        for t in range(4):
            for i in range(4):
                a(f"v_add_f32 v{OUT[o,t]+i}, v{OUT[o,t]+i}, v{8+4*t+i}")
    a(f"""
M_noload:
    s_cmp_eq_u32 s{S_MORE}, 0
    s_cbranch_scc1 M_final
""")
    for o in range(4):
        for t in range(4):
            q = OUT[o, t]
            a(f"buffer_store_dwordx4 v[{q}:{q+3}], v0, s[{S_PART}:{S_PART+3}], 0 offen offset:{poff(o,t)} sc1")
    a(f"""
    s_add_u32 s{S_C0}, s{S_C0}, s{S_TAKE}
    s_waitcnt vmcnt(0) lgkmcnt(0)
    s_barrier
    s_branch M_round
M_final:
""")
    S = Sched(a)
    for o in gate_ops:
        emit(o)
    for o in range(4):
        for k in range(2):
            for op in f_store(o, k):
                emit(op)
    a("M_end:")
    if OPT.get("es"):
        stamp(a, 3)
    if STAMP:
        a("s_waitcnt vmcnt(0)")
    stamp(a, 5)
    stamp_flush(a, 16, 1, 0, S_WAVE)
    a("""
M_done:
    s_endpgm
""")


def descriptor(name, vgpr, sgpr):
    acc = (vgpr + 3) // 4 * 4
    return f"""
.p2align 6
.amdhsa_kernel {name}
  .amdhsa_next_free_vgpr {vgpr}
  .amdhsa_next_free_sgpr {sgpr}
  .amdhsa_accum_offset {acc}
  .amdhsa_group_segment_fixed_size 0
  .amdhsa_kernarg_size 96
  .amdhsa_user_sgpr_count 2
  .amdhsa_user_sgpr_kernarg_segment_ptr 1
  .amdhsa_system_sgpr_workgroup_id_x 1
  .amdhsa_float_denorm_mode_32 3
.end_amdhsa_kernel
"""


def main():
    global STAMP
    for arg in list(sys.argv):
        if "=" in arg:
            k, v = arg.split("=")
            OPT[k] = int(v)
            sys.argv.remove(arg)
    if "--stamp" in sys.argv:
        STAMP = True
        sys.argv.remove("--stamp")
    ref = open(f"cdna_kernels/{NAME}.s.ref").read().split("\n")
    head = [l for l in ref if l.startswith(";") and "@launch" not in l and "Override launch" not in l
            and "grid=ceil" not in l]
    a = Asm()
    gen_part(a)
    gen_main(a)
    out = "\n".join(head) + "\n"
    out += f"; @launch kernel=part_kernel grid=({NC+6},1,1) block=(832,1,1) lds={K1_LDS}\n"
    out += f"; @launch kernel=main_kernel grid=({NB},1,1) block=(512,1,1) lds={L_TOTAL}\n"
    out += '.amdgcn_target "amdgcn-amd-amdhsa--gfx950"\n.text\n'
    out += a.text()
    out += '.section .rodata,"a"\n'
    out += descriptor("part_kernel", 88, 102 if STAMP else 32)
    out += descriptor("main_kernel", 256, 102)
    path = sys.argv[1] if len(sys.argv) > 1 else f"cdna_kernels/{NAME}.s"
    open(path, "w").write(out)
    print("wrote", path, len(out), "bytes; LDS", L_TOTAL, "CAPP", CAPP)


if __name__ == "__main__":
    main()
```

```python
import sys

NAME = "standalone__tensor_product_equiv_equiformer__graph"
N = 25000
E = 800000
NPB = 98
NB = 256
NC = 250
CH = 3200
P = 8
PH = (N + P - 1) // P
NSLOT = 13
import os
D = int(os.environ.get("DD", "6"))
LS = int(os.environ.get("LSS", "3"))
RECB = 12

OPT = {"st": 1, "warm": 1, "stage": 1, "ld": 0, "bal": 0, "prio": 0, "cpf": 0, "rot": 1, "dcm": 1, "dsc": 1}

REC_OFF = 0
REC_BYTES = NC * CH * RECB
DESC_OFF = 0x1000000
WIMG_OFF = 0x1100000
WIMG_BYTES = 5 * 8192
PART_OFF = 0x2000000
PART_BYTES = NB * NPB * 1024

L_FLAG = 0
L_DUMMY = 256
L_HIST = 512
L_TAB = L_HIST + 4096
L_RANK = L_TAB + 8192
L_MAP = L_RANK + 512
L_W = L_MAP + 512
L_REG = L_W + WIMG_BYTES
REGB = 10240
L_TOTAL = L_REG + 8 * REGB
CAPP = REGB // 32 - (D + LS + 2)
STG = 528
OOB = 0x7FFFF000
PADIDX = 0x7FFF

STAMP = False
STAMP_OFF = 0x8000000


def magic(div, maxv):
    for k in range(31, 15, -1):
        m = -(-(1 << k) // div)
        if m < (1 << 24) and m * maxv < (1 << 32):
            e = m * div - (1 << k)
            if e * maxv < (1 << k):
                assert all((v * m) >> k == v // div for v in range(maxv + 1))
                return m, k
    raise ValueError


class Asm:
    def __init__(self):
        self.lines = []

    def __call__(self, s):
        for ln in s.strip("\n").split("\n"):
            ln = ln.strip()
            if ln:
                self.lines.append(("" if ln.endswith(":") else "    ") + ln)

    def text(self):
        return "\n".join(self.lines) + "\n"


def srd(a, d, base, nrec, add=0, stride=0):
    if add:
        a(f"s_add_u32 s{d}, s{base}, {add}")
        a(f"s_addc_u32 s{d+1}, s{base+1}, 0")
        a(f"s_and_b32 s{d+1}, s{d+1}, 0xffff")
    else:
        a(f"s_mov_b32 s{d}, s{base}")
        a(f"s_and_b32 s{d+1}, s{base+1}, 0xffff")
    if stride:
        a(f"s_or_b32 s{d+1}, s{d+1}, {stride << 16:#x}")
    a(f"s_mov_b32 s{d+2}, {nrec}")
    a(f"s_mov_b32 s{d+3}, 0x20000")


def pstamp(a, k):
    if STAMP and OPT.get("ps"):
        a("s_memrealtime s[42:43]")
        a("s_waitcnt lgkmcnt(0)")
        a(f"s_mov_b32 s{96+k}, s42")


MAINK = [False]


def stamp(a, k):
    if OPT.get("ps") and MAINK[0] and k not in (0, 3):
        return
    if STAMP:
        a("s_memrealtime s[42:43]")
        a("s_waitcnt lgkmcnt(0)")
        a(f"s_mov_b32 s{96+k}, s42")


def cstamp(a, k):
    if STAMP and OPT.get("clk"):
        a("s_memtime s[42:43]")
        a("s_waitcnt lgkmcnt(0)")
        a(f"s_mov_b32 s{96+k}, s42")


def stamp_flush(a, wsreg, kern, vt, swave):
    if STAMP:
        a("s_mov_b64 exec, 1")
        a(f"s_lshl_b32 s42, s2, 4")
        a(f"s_add_u32 s42, s42, s{swave}")
        a(f"s_lshl_b32 s42, s42, 5")
        a(f"s_add_u32 s42, s42, {STAMP_OFF + kern * 0x100000}")
        a(f"v_mov_b32 v{vt}, s42")
        for k in range(6):
            a(f"v_mov_b32 v{vt+1}, s{96+k}")
            a(f"global_store_dword v{vt}, v{vt+1}, s[{wsreg}:{wsreg+1}] offset:{4*k}")
            a("s_nop 1")


def wave_scan(a, v):
    for sh in (1, 2, 4, 8):
        a("s_nop 1")
        a(f"v_add_u32_dpp v{v}, v{v}, v{v} row_shr:{sh} row_mask:0xf bank_mask:0xf bound_ctrl:0")
    a("s_nop 1")
    a(f"v_add_u32_dpp v{v}, v{v}, v{v} row_bcast:15 row_mask:0xa bank_mask:0xf")
    a("s_nop 1")
    a(f"v_add_u32_dpp v{v}, v{v}, v{v} row_bcast:31 row_mask:0xc bank_mask:0xf")
    a("s_nop 1")


class Sched:
    def __init__(self, a):
        self.a = a
        self.lds = []
        self.slot = 0
        self.vw = {}
        self.tw = {}
        self.mw = {}
        self.mc = {}
        self.sw = {}

    def _emit(self, t):
        self.a(t)
        self.slot += 1

    def _nop(self, need):
        while need > 0:
            k = min(need, 8)
            self.a(f"s_nop {k-1}")
            self.slot += k
            need -= k

    def op(self, kind, text, reads=(), writes=(), srcc=()):
        reads, writes, srcc = set(reads), set(writes), set(srcc)
        touched = reads | writes | srcc
        last = -1
        for i, d in enumerate(self.lds):
            if d & touched:
                last = i
        if last >= 0:
            n = len(self.lds) - 1 - last
            self._emit(f"s_waitcnt lgkmcnt({min(n, 15)})")
            self.lds = self.lds[len(self.lds) - min(n, 15):] if n else []
        need = 0
        if kind == "mfma":
            for r in reads | srcc:
                if r in self.vw:
                    need = max(need, 2 - (self.slot - self.vw[r] - 1))
            for r in reads:
                if r in self.mw:
                    need = max(need, 8 - (self.slot - self.mw[r] - 1))
        else:
            for r in reads | writes:
                if r in self.mw:
                    need = max(need, 8 - (self.slot - self.mw[r] - 1))
            for r in writes:
                if r in self.mc:
                    need = max(need, 3 - (self.slot - self.mc[r] - 1))
                if r in self.sw:
                    need = max(need, 2 - (self.slot - self.sw[r] - 1))
            if kind in ("valu", "store", "dsw"):
                for r in reads:
                    if r in self.tw:
                        need = max(need, 1 - (self.slot - self.tw[r] - 1))
        self._nop(need)
        me = self.slot
        self._emit(text)
        if kind in ("valu", "trans"):
            for r in writes:
                self.vw[r] = me
                if kind == "trans":
                    self.tw[r] = me
        elif kind == "mfma":
            for r in writes:
                self.mw[r] = me
            for r in srcc:
                self.mc[r] = me
        elif kind == "dsr":
            self.lds.append(writes)
        elif kind == "dsw":
            self.lds.append(set())
        elif kind == "store":
            for r in reads:
                self.sw[r] = me


def R(b, n=4):
    return list(range(b, b + n))


def stflags():
    return ["", " sc1", " sc0 sc1", " nt"][OPT["st"]]


K1_STG = 1024
K1_LDS = K1_STG + 832 * 48


def gen_part(a):
    mB, kB = magic(NPB, 32767)
    G = OPT.get("stag", 1)
    NPH = OPT.get("nph", 8)
    PHS = -(-N * G // (NPH * G - (G - 1)))
    PHS = -(-PHS // G) * G
    assert (N - 1 + (G - 1) * (PHS // G)) // PHS <= 7
    mP, kP = magic(PHS, 32767)
    sf = stflags()
    df = ["", " sc1"][OPT.get("dsc", 0)]
    lf = ["", " nt", " sc1", " sc0 sc1 nt"][OPT.get("ld", 0)]
    a(f"""
.p2align 8
.globl part_kernel
.type part_kernel,@function
part_kernel:
    s_cmp_ge_u32 s2, {NC + 6}
    s_cbranch_scc1 P_done
    s_load_dwordx4 s[4:7], s[0:1], 8
    s_load_dwordx4 s[8:11], s[0:1], 24
    s_load_dwordx4 s[12:15], s[0:1], 40
    s_load_dwordx2 s[16:17], s[0:1], 56
    s_load_dwordx2 s[18:19], s[0:1], 88
    s_load_dwordx2 s[28:29], s[0:1], 0
    s_load_dwordx2 s[30:31], s[0:1], 72
    s_cmp_ge_u32 s2, {NC}
    s_cbranch_scc1 P_prep
""")
    if STAMP:
        a("v_lshrrev_b32 v1, 6, v0")
        a("s_nop 0")
        a("v_readfirstlane_b32 s41, v1")
    stamp(a, 0)
    a(f"""
    v_lshlrev_b32 v1, 2, v0
    v_mov_b32 v2, 0
    v_cmp_gt_u32 vcc, 256, v0
    s_and_saveexec_b64 s[20:21], vcc
    ds_write_b32 v1, v2
    s_mov_b64 exec, s[20:21]
    s_mul_i32 s3, s2, {CH}
    v_lshl_add_u32 v3, v0, 2, s3
    v_lshlrev_b32 v4, 2, v3
    v_lshlrev_b32 v5, 1, v3
    v_mul_u32_u24 v6, 6, v3
    v_cmp_gt_u32 vcc, {CH // 4}, v0
    s_and_saveexec_b64 s[20:21], vcc
    s_waitcnt lgkmcnt(0)
    global_load_dwordx4 v[8:11], v4, s[10:11]{lf}
    s_barrier
    global_load_dwordx4 v[12:15], v4, s[8:9]{lf}
    global_load_dwordx2 v[16:17], v5, s[6:7]{lf}
    global_load_dwordx4 v[20:23], v6, s[4:5]{lf}
    global_load_dwordx2 v[24:25], v6, s[4:5] offset:16{lf}
""")
    a(f"""
    v_mov_b32 v2, 1
    s_waitcnt vmcnt(4)
""")
    stamp(a, 1)
    for i in range(4):
        a(f"""
    v_mul_u32_u24 v{28+i}, {mB}, v{8+i}
    v_lshrrev_b32 v{28+i}, {kB}, v{28+i}
    v_min_u32 v{28+i}, 255, v{28+i}
    v_lshlrev_b32 v{36+i}, 2, v{28+i}
    ds_add_rtn_u32 v{32+i}, v{36+i}, v2
""")
    if OPT.get("cpf", 1):
        a(f"""
    s_getpc_b64 s[24:25]
P_pc:
    s_add_u32 s24, s24, main_kernel-P_pc
    s_addc_u32 s25, s25, 0
    s_lshr_b32 s3, s2, 3
    s_lshl_b32 s3, s3, 10
    v_subrev_u32 v26, {CH//4 - 16}, v0
    v_lshl_add_u32 v26, v26, 6, s3
    v_min_u32 v26, M_multi-main_kernel, v26
    s_movk_i32 s3, {CH//4 - 16}
    v_cmp_le_u32 s[26:27], s3, v0
    s_and_b64 exec, exec, s[26:27]
    s_cbranch_execz P_nopf
    global_load_dword v27, v26, s[24:25]
P_nopf:
    """)
    if OPT.get("tlb"):
        pg = OPT["tlb"]
        a(f"""
    s_mov_b64 exec, -1
    s_lshr_b32 s3, s2, 3
    s_lshl_b32 s3, s3, 7
    v_lshlrev_b32 v26, {pg}, v0
    v_add_u32 v26, s3, v26
    v_cmp_gt_u32 vcc, {N*512}, v26
    s_and_saveexec_b64 s[26:27], vcc
    s_cbranch_execz P_notlb
    global_load_dword v84, v26, s[28:29]
    global_load_dword v85, v26, s[30:31]
P_notlb:
""")
    a(f"""
    s_mov_b64 exec, -1
    s_waitcnt lgkmcnt(0)
    s_barrier
    v_cmp_gt_u32 vcc, 64, v0
    s_cbranch_vccz P_skipscan
    v_lshlrev_b32 v1, 4, v0
    ds_read_b128 v[72:75], v1
    s_waitcnt lgkmcnt(0)
    v_add_u32 v76, v72, v73
    v_add_u32 v77, v76, v74
    v_add_u32 v78, v77, v75
    v_mov_b32 v79, v78
""")
    wave_scan(a, 79)
    a(f"""
    v_sub_u32 v80, v79, v78
    v_add_u32 v81, v80, v72
    v_add_u32 v82, v80, v76
    v_add_u32 v83, v80, v77
    ds_write_b128 v1, v[80:83]
    v_lshl_or_b32 v72, v72, 16, v80
    v_lshl_or_b32 v73, v73, 16, v81
    v_lshl_or_b32 v74, v74, 16, v82
    v_lshl_or_b32 v75, v75, 16, v83
    v_mov_b32 v84, v72
    v_mov_b32 v85, v73
    v_mov_b32 v86, v74
    v_mov_b32 v87, v75
    s_waitcnt lgkmcnt(0)
P_skipscan:
    v_cmp_gt_u32 vcc, {CH // 4}, v0
    s_and_saveexec_b64 s[20:21], vcc
    s_movk_i32 s22, {NPB}
    s_mov_b32 s23, 0xffff0000
""")
    for i in range(4):
        a(f"""
    v_mul_u32_u24 v1, s22, v{28+i}
    v_sub_u32 v1, v{8+i}, v1
    v_and_b32 v1, 127, v1
    v_lshlrev_b32 v{8+i}, 21, v1
""")
        if OPT.get("rot"):
            a(f"v_lshrrev_b32 v{72+i}, 5, v{28+i}")
        if G > 1:
            a(f"v_and_b32 v{72+i}, {G-1}, v{28+i}")
            a(f"v_mul_u32_u24 v{72+i}, {PHS//G}, v{72+i}")
    a("s_barrier")
    stamp(a, 2)
    for i in range(4):
        a(f"ds_read_b32 v{28+i}, v{36+i}")
    a("s_waitcnt vmcnt(0)")
    stamp(a, 3)
    a(f"""
    v_cmp_gt_u32 vcc, 64, v0
    s_cbranch_vccz P_nodesc
""")
    if OPT.get("dcm"):
        a(f"""
    s_lshl_b32 s3, s2, 10
    s_add_u32 s3, s3, {DESC_OFF}
    v_lshl_add_u32 v1, v0, 4, s3
    global_store_dwordx4 v1, v[84:87], s[18:19]{df}
""")
    else:
        a(f"""
    s_lshl_b32 s3, s2, 2
    s_add_u32 s3, s3, {DESC_OFF}
    v_lshlrev_b32 v1, 12, v0
    v_add_u32 v1, s3, v1
    global_store_dword v1, v84, s[18:19]{df}
    global_store_dword v1, v85, s[18:19] offset:1024{df}
    global_store_dword v1, v86, s[18:19] offset:2048{df}
    global_store_dword v1, v87, s[18:19] offset:3072{df}
""")
    a("P_nodesc:")
    if OPT.get("k1warm"):
        a(f"""
    s_mul_i32 s3, s2, {100*512}
    v_lshl_add_u32 v76, v0, 7, s3
    v_cmp_gt_u32 vcc, 400, v0
    s_and_saveexec_b64 s[26:27], vcc
    s_cbranch_execz P_now
    global_load_dword v77, v76, s[28:29]
P_now:
    s_mov_b64 exec, s[26:27]
""")
    for i in range(4):
        r = 40 + 4 * i
        if G > 1:
            a(f"v_add_u32 v4, v{72+i}, v{12+i}")
        a(f"""
    v_mul_u32_u24 v4, {mP}, v{4 if G > 1 else 12+i}
    v_lshrrev_b32 v4, {kP}, v4
    v_min_u32 v4, {NPH-1}, v4
""")
        if OPT.get("rot"):
            a(f"v_sub_u32 v4, v4, v{72+i}")
            a(f"v_and_b32 v4, 7, v4")
        a(f"""
    v_lshl_or_b32 v4, v4, 18, v{8+i}
    v_and_b32 v3, 0x7fff, v{12+i}
    v_or_b32 v{r+2}, v3, v4
""")
    for i in range(4):
        src = 16 + i // 2
        if i % 2 == 0:
            a(f"v_lshlrev_b32 v{56+i}, 16, v{src}")
        else:
            a(f"v_and_b32 v{56+i}, s23, v{src}")
    for k in range(12):
        src = 20 + k // 2
        if k % 2 == 0:
            a(f"v_lshlrev_b32 v{60+k}, 16, v{src}")
        else:
            a(f"v_and_b32 v{60+k}, s23, v{src}")
    for i in range(4):
        r = 40 + 4 * i
        for j in range(3):
            a(f"v_mul_f32 v{60+3*i+j}, v{56+i}, v{60+3*i+j}")
        a(f"v_cvt_pk_bf16_f32 v{r}, v{56+i}, v{60+3*i}")
        a(f"v_cvt_pk_bf16_f32 v{r+1}, v{61+3*i}, v{62+3*i}")
    a("s_waitcnt lgkmcnt(0)")
    a(f"s_mul_i32 s3, s2, {CH * RECB}")
    if OPT["stage"]:
        for i in range(4):
            r = 40 + 4 * i
            a(f"""
    v_add_u32 v{28+i}, v{28+i}, v{32+i}
    v_mul_u32_u24 v{28+i}, {RECB}, v{28+i}
    v_add_u32 v{28+i}, {K1_STG}, v{28+i}
    ds_write2_b32 v{28+i}, v{r}, v{r+1} offset0:0 offset1:1
    ds_write_b32 v{28+i}, v{r+2} offset:8
""")
        nq = CH * RECB // 16
        a(f"""
    s_mov_b64 exec, -1
    v_lshlrev_b32 v1, 4, v0
    v_add_u32 v2, s3, v1
    s_waitcnt lgkmcnt(0)
    s_barrier
""")
        for i in range(3):
            a(f"ds_read_b128 v[{8+4*i}:{11+4*i}], v1 offset:{K1_STG + 832*16*i}")
        a(f"v_add_u32 v3, {832*16}, v2")
        a(f"v_add_u32 v4, {2*832*16}, v2")
        a(f"v_cmp_gt_u32 vcc, {nq - 2*832}, v0")
        a("s_waitcnt lgkmcnt(2)")
        a(f"global_store_dwordx4 v2, v[8:11], s[18:19]{sf}")
        a("s_waitcnt lgkmcnt(1)")
        a(f"global_store_dwordx4 v3, v[12:15], s[18:19]{sf}")
        a("s_and_saveexec_b64 s[20:21], vcc")
        a("s_cbranch_execz P_fin")
        a("s_waitcnt lgkmcnt(0)")
        a(f"global_store_dwordx4 v4, v[16:19], s[18:19]{sf}")
        a("P_fin:")
    else:
        a(f"s_movk_i32 s22, {RECB}")
        for i in range(4):
            r = 40 + 4 * i
            a(f"""
    v_add_u32 v{28+i}, v{28+i}, v{32+i}
    v_mul_u32_u24 v{28+i}, {RECB}, v{28+i}
    v_add_u32 v{28+i}, s3, v{28+i}
    global_store_dwordx3 v{28+i}, v[{r}:{r+2}], s[18:19]{sf}
""")
    stamp(a, 4)
    if STAMP:
        a("s_waitcnt vmcnt(0)")
    stamp(a, 5)
    stamp_flush(a, 18, 0, 1, 41)
    a("s_branch P_done")
    a(f"""
P_prep:
    s_waitcnt lgkmcnt(0)
    s_lshl_b32 s3, s2, {10 if OPT.get("dcm") else 2}
    s_add_u32 s3, s3, {DESC_OFF}
    v_lshlrev_b32 v1, {2 if OPT.get("dcm") else 10}, v0
    v_add_u32 v1, s3, v1
    v_mov_b32 v2, 0
    v_cmp_gt_u32 vcc, 256, v0
    s_and_saveexec_b64 s[20:21], vcc
    s_cbranch_execz P_prep1
    global_store_dword v1, v2, s[18:19]{df}
P_prep1:
    s_mov_b64 exec, s[20:21]
    s_sub_u32 s3, s2, {NC}
    s_cmp_eq_u32 s3, 5
    s_cbranch_scc1 P_done
    v_cmp_gt_u32 vcc, 512, v0
    s_and_saveexec_b64 s[20:21], vcc
    s_cbranch_execz P_done
    s_cmp_lt_u32 s3, 2
    s_cselect_b32 s24, s14, s16
    s_cselect_b32 s25, s15, s17
    s_sub_u32 s22, s3, 2
    s_cselect_b32 s22, s3, s22
    s_lshl_b32 s22, s22, 13
    v_lshrrev_b32 v1, 8, v0
    v_bfe_u32 v2, v0, 4, 2
    v_lshl_add_u32 v1, v2, 2, v1
    s_lshl_b32 s23, s3, 7
    v_lshl_add_u32 v4, v1, 3, s23
    global_load_dwordx2 v[16:17], v4, s[12:13]
    global_load_dwordx2 v[18:19], v4, s[12:13] offset:16
    v_lshlrev_b32 v1, 9, v1
    v_and_b32 v2, 15, v0
    v_bfe_u32 v3, v0, 6, 2
    v_lshl_add_u32 v2, v2, 2, v3
    v_lshl_add_u32 v1, v2, 1, v1
    v_add_u32 v1, s22, v1
""")
    for e in range(8):
        a(f"global_load_ushort v{8+e}, v1, s[24:25] offset:{128*(8*(e>>2)+(e&3))}")
    a(f"""
    s_lshl_b32 s3, s3, 13
    s_add_u32 s3, s3, {WIMG_OFF}
    v_lshl_add_u32 v1, v0, 4, s3
    s_mov_b32 s23, 0xffff0000
    s_waitcnt vmcnt(0)
""")
    for e in range(8):
        a(f"v_lshlrev_b32 v{8+e}, 16, v{8+e}")
        if e % 2 == 0:
            a(f"v_lshlrev_b32 v2, 16, v{16+e//2}")
        else:
            a(f"v_and_b32 v2, s23, v{16+e//2}")
        a(f"v_mul_f32 v{8+e}, v{8+e}, v2")
    for e in range(4):
        a(f"v_cvt_pk_bf16_f32 v{4+e}, v{8+2*e}, v{9+2*e}")
    a(f"""
    global_store_dwordx4 v1, v[4:7], s[18:19]{df}
P_done:
    s_endpgm
""")


ACC = 48
RING = 12 + 4 * max(LS, 3)
STAGE = 12
V_PTR = 2
V_LANE = 3
S_X = 4
S_REC = 8
S_OUT = 12
S_WS = 16
S_WAVE = 18
S_C0 = 19
S_TAKE = 20
S_MORE = 21
S_REGION = 22
S_PH = 23
S_T = 24
S_CNT = 28
S_LEV = 41
S_MASK = 44
S_PART = 92
NSUB = 3


def gen_main(a):
    MAINK[0] = True
    L = V_LANE
    NU = 6
    RB = 160
    RK = 132
    DS = 128
    BAL = OPT.get("bal", 1)
    a(f"""
.p2align 8
.globl main_kernel
.type main_kernel,@function
main_kernel:
    s_cmp_ge_u32 s2, {NB}
    s_cbranch_scc1 M_done
    s_load_dwordx2 s[16:17], s[0:1], 88
    s_load_dwordx2 s[24:25], s[0:1], 0
    s_load_dwordx2 s[26:27], s[0:1], 72
    v_lshrrev_b32 v1, 6, v0
    v_and_b32 v{L}, 63, v0
    v_readfirstlane_b32 s{S_WAVE}, v1
    s_mov_b32 s{S_C0}, 0
    s_movk_i32 s{S_TAKE}, 48
    s_mul_i32 s{S_REGION}, s{S_WAVE}, {REGB}
    s_add_u32 s{S_REGION}, s{S_REGION}, {L_REG}
""")
    if OPT.get("bperm", 1):
        a("""
    s_and_b32 s3, s2, 7
    s_lshl_b32 s3, s3, 5
    s_lshr_b32 s2, s2, 3
    s_or_b32 s2, s2, s3
""")
    a("s_waitcnt lgkmcnt(0)")
    stamp(a, 0)
    srd(a, S_X, 24, N, stride=512)
    srd(a, S_OUT, 26, N * 512)
    srd(a, S_REC, 16, WIMG_OFF + WIMG_BYTES)
    srd(a, S_PART, 16, PART_BYTES, PART_OFF)

    def any_level(u):
        m = S_MASK + 2 * (u * 4)
        a(f"s_or_b64 s[26:27], s[{m}:{m+1}], s[{m+2}:{m+3}]")
        a(f"s_or_b64 s[26:27], s[26:27], s[{m+4}:{m+5}]")
        a(f"s_or_b64 s[26:27], s[26:27], s[{m+6}:{m+7}]")

    def masked(fn, tag, pre=None):
        for u in range(2, NU):
            a(f"s_cmp_eq_u32 s{S_LEV}, {u}")
            a(f"s_cbranch_scc1 M_{tag}_{u-1}")
        for u in range(NU - 1, -1, -1):
            a(f"M_{tag}_{u}:")
            for k in range(4):
                i = u * 4 + k
                m = S_MASK + 2 * i
                if pre:
                    pre(i, u, k)
                a(f"s_mov_b64 exec, s[{m}:{m+1}]")
                fn(i, u, k)
        a("s_mov_b64 exec, -1")

    a(f"""
M_round:
    v_lshrrev_b32 v1, 3, v{L}
    s_lshl_b32 s24, s{S_WAVE}, 3
    v_add_u32 v1, s24, v1
""")
    if OPT.get("dcm"):
        a(f"""
    s_lshl_b32 s24, s2, 2
    s_add_u32 s24, s24, {DESC_OFF}
    v_lshl_add_u32 v4, v1, 12, s24
    global_load_dword v{DS}, v4, s[16:17]
    global_load_dword v{DS+1}, v4, s[16:17] offset:1024
    global_load_dword v{DS+2}, v4, s[16:17] offset:2048
    global_load_dword v{DS+3}, v4, s[16:17] offset:3072
""")
        if OPT.get("spec"):
            a(f"""
    s_mul_i32 s24, s2, {round(CH * NPB * RECB / N * 64)}
    s_lshr_b32 s24, s24, 6
    s_mul_i32 s26, s{S_WAVE}, {32*CH*RECB}
    s_add_u32 s24, s24, s26
    s_and_b32 s24, s24, -4
    s_mov_b32 m0, {L_DUMMY}
    v_lshrrev_b32 v5, 1, v{L}
    v_mul_u32_u24 v5, {CH*RECB}, v5
    v_and_b32 v6, 1, v{L}
    v_mul_u32_u24 v6, 76, v6
    v_add3_u32 v5, v5, v6, s24
    buffer_load_dword v5, s[{S_REC}:{S_REC+3}], 0 offen lds
""")
    else:
        a(f"""
    s_lshl_b32 s24, s2, 10
    s_add_u32 s24, s24, {DESC_OFF}
    v_lshl_add_u32 v4, v1, 4, s24
    global_load_dwordx4 v[{DS}:{DS+3}], v4, s[16:17]
""")
    a(f"""
    s_lshl_b32 s24, s{S_WAVE}, 9
    v_lshl_add_u32 v0, v{L}, 3, s24
    v_mov_b32 v4, 0
    v_mov_b32 v5, 0
    v_mov_b32 v6, {PADIDX:#x}
    v_mov_b32 v7, 0
    ds_write_b64 v0, v[4:5] offset:{L_HIST}
    ds_write_b64 v4, v[4:5] offset:{L_FLAG}
    v_lshlrev_b32 v2, 3, v{L}
    ds_write_b64 v2, v[4:5] offset:{L_RANK}
    v_lshl_add_u32 v2, v{L}, 4, s{S_REGION}
""")
    for i in range(REGB // 1024):
        a(f"ds_write_b128 v2, v[4:7] offset:{1024*i}")
    a(f"""
    s_mov_b32 s24, {4*CH*RECB}
    v_mul_lo_u32 v1, v1, s24
    v_and_b32 v0, 7, v{L}
    v_add_u32 v0, s{S_C0}, v0
    s_movk_i32 s24, {RECB}
    v_mad_u32_u24 v1, v0, s24, v1
    s_add_u32 s25, s{S_C0}, s{S_TAKE}
    v_mov_b32 v24, 0
    v_mov_b32 v25, {OOB:#x}
    s_waitcnt vmcnt({1 if OPT.get("spec") else 0})
""")
    stamp(a, 1)
    for k in range(4):
        d = DS + k
        a(f"""
    v_lshrrev_b32 v26, 16, v{d}
    v_max_u32 v24, v24, v26
    v_min_u32 v26, s25, v26
    v_sub_u32 v26, v26, v0
    v_and_b32 v{d}, 0xffff, v{d}
    v_mad_u32_u24 v{d}, v{d}, s24, v1
""")
        for u in range(NU):
            m = S_MASK + 2 * (u * 4 + k)
            a(f"v_cmp_lt_i32 s[{m}:{m+1}], {8*u}, v26")
        if k < 3:
            a(f"v_add_u32 v1, {CH*RECB}, v1")
    a(f"s_mov_b32 s{S_LEV}, 2")
    for u in range(2, NU):
        any_level(u)
        a(f"s_cselect_b32 s{S_LEV}, {u+1}, s{S_LEV}")
    for u in range(2, NU):
        a(f"s_cmp_eq_u32 s{S_LEV}, {u}")
        a(f"s_cbranch_scc1 M_ld_{u-1}")
    for u in range(NU - 1, -1, -1):
        a(f"M_ld_{u}:")
        for k in range(4):
            i = u * 4 + k
            m = S_MASK + 2 * i
            r = RB + 4 * i
            a(f"v_cndmask_b32 v{r+3}, v25, v{DS+k}, s[{m}:{m+1}]")
            a(f"buffer_load_dwordx3 v[{r}:{r+2}], v{r+3}, s[{S_REC}:{S_REC+3}], 0 offen offset:{8*RECB*u}" + ['', ' nt', ' sc1'][OPT.get('rf', 0)])
    a(f"""
    s_waitcnt lgkmcnt(0)
    s_barrier
    v_cmp_lt_u32 vcc, s25, v24
    s_and_saveexec_b64 s[26:27], vcc
    v_mov_b32 v1, 1
    ds_write_b32 v4, v1 offset:{L_FLAG+4}
    s_mov_b64 exec, -1
    v_mov_b32 v6, 0
    v_and_b32 v12, 31, v{L}
    v_lshrrev_b32 v24, 5, v{L}
    v_lshl_add_u32 v{V_PTR}, v24, 4, s{S_REGION}
""")
    for j in range(5):
        a(f"v_mfma_f32_32x32x16_bf16 v[{ACC+16*j}:{ACC+16*j+15}], v[4:7], v[4:7], 0")
    a(f"""
    v_lshrrev_b32 v24, 3, v12
    v_lshlrev_b32 v24, 1, v24
    v_add_u32 v25, 1, v24
    v_lshl_or_b32 v24, v25, 8, v24
    v_and_b32 v25, 1, v12
    v_lshlrev_b32 v25, 4, v25
    v_mov_b32 v26, 0xffff
    v_lshlrev_b32 v26, v25, v26
    v_lshlrev_b32 v24, v25, v24
    v_mov_b32 v27, 0x0c0c0c0c
    v_bfi_b32 v24, v26, v24, v27
    v_bfe_u32 v25, v12, 1, 2
""")
    for j in range(4):
        a(f"v_cmp_eq_u32 vcc, {j}, v25")
        a("s_nop 1")
        a(f"v_cndmask_b32 v{8+j}, v27, v24, vcc")
    a(f"v_lshlrev_b32 v{STAGE+3}, 4, v12")
    if OPT["warm"]:
        a(f"""
""")
        if OPT.get("wint"):
            a(f"""
    s_and_b32 s24, s2, 31
    s_lshl_b32 s24, s24, 3
    s_lshr_b32 s26, s2, 5
    s_or_b32 s24, s24, s26
""")
        else:
            a(f"""s_and_b32 s24, s2, {31 if (OPT.get("k1warm") or OPT.get("rot")) else 255}""")
        a(f"""
    s_lshl_b32 s24, s24, 3
    s_add_u32 s24, s24, s{S_WAVE}
    s_mul_i32 s24, s24, 13
""")
        if OPT.get("rot"):
            a(f"s_lshr_b32 s26, s2, 5")
            a(f"s_mul_i32 s26, s26, {PH}")
            a(f"s_add_u32 s24, s24, s26")
        a(f"""
    v_lshrrev_b32 v156, 2, v{L}
    v_add_u32 v156, s24, v156
    v_and_b32 v157, 3, v{L}
    v_lshlrev_b32 v157, 7, v157
    v_cmp_gt_u32 vcc, 52, v{L}
    v_mov_b32 v24, {PADIDX:#x}
    s_mov_b32 m0, {L_DUMMY}
    v_cndmask_b32 v156, v24, v156, vcc
""")
    a(f"""
    v_and_b32 v12, 7, v{L}
    s_lshl_b32 s24, s{S_WAVE}, 6
    v_lshl_add_u32 v13, v12, 3, s24
    v_lshrrev_b32 v14, 3, v{L}
    v_lshlrev_b32 v14, 2, v14
    v_lshlrev_b32 v16, 5, v{L}
    v_mov_b32 v1, 2
""")
    if not BAL:
        a(f"""
    v_lshlrev_b32 v20, 4, v12
    v_add_u32 v20, s{S_WAVE}, v20
    v_add_u32 v21, 8, v20
    ds_write_b64 v13, v[20:21] offset:{L_MAP}
""")
    a("v_lshlrev_b32 v12, 2, v12")
    a("s_waitcnt vmcnt(8)")
    stamp(a, 2)

    def pre_atomic(i, u, k):
        if u < 2:
            a(f"s_waitcnt vmcnt({u * 4 + 3 - k})")

    def f_atomic(i, u, k):
        r = RB + 4 * i
        a(f"v_lshrrev_b32 v{r+3}, 16, v{r+2}")
        a(f"ds_add_rtn_u32 v{RK+i}, v{r+3}, v1 offset:{L_HIST}")
    masked(f_atomic, "at", pre_atomic)
    a(f"""
    s_mul_i32 s24, s{S_WAVE}, 5120
    s_add_u32 s26, s24, {L_W}
    s_mov_b32 m0, s26
    s_add_u32 s24, s24, {WIMG_OFF}
    v_lshl_add_u32 v158, v{L}, 4, s24
""")
    for i in range(4):
        a(f"buffer_load_dwordx4 v158, s[{S_REC}:{S_REC+3}], 0 offen offset:{1024*i} lds")
    a(f"""
    s_add_u32 s26, s26, 4096
    s_mov_b32 m0, s26
    v_add_u32 v158, 4096, v158
    buffer_load_dwordx4 v158, s[{S_REC}:{S_REC+3}], 0 offen lds
""")
    a(f"s_mov_b32 m0, {L_DUMMY}")
    a("s_nop 0")
    a("s_waitcnt lgkmcnt(0)")
    pstamp(a, 1)
    a("s_barrier")
    pstamp(a, 2)
    if OPT.get("l2pf"):
        a(f"s_lshr_b32 s24, s2, 5")
        a(f"s_mul_i32 s24, s24, {32*8*13}")
        a(f"v_subrev_u32 v158, s24, v156")
        a(f"v_cmp_gt_u32 vcc, 52, v{L}")
        a(f"v_mov_b32 v159, v157")
        a(f"s_nop 0")
        a(f"v_cndmask_b32 v158, v156, v158, vcc")
        if OPT["l2pf"] == 1:
            a(f"buffer_load_dword v[158:159], s[{S_X}:{S_X+3}], 0 idxen offen lds")
    if OPT["warm"]:
        a(f"buffer_load_dword v[156:157], s[{S_X}:{S_X+3}], 0 idxen offen lds")
    if OPT.get("l2pf") == 2:
        a(f"buffer_load_dword v[158:159], s[{S_X}:{S_X+3}], 0 idxen offen lds")
    if OPT["warm"]:
        for _ in range(OPT["warm"] - 1):
            a(f"v_add_u32 v156, 3328, v156")
            a(f"buffer_load_dword v[156:157], s[{S_X}:{S_X+3}], 0 idxen offen lds")

    def f_taddr(i, u, k):
        r = RB + 4 * i
        a(f"v_min_u32 v0, 2, v{RK+i}")
        a(f"v_add_lshl_u32 v{r+3}, v{r+3}, v0, 1")

    if BAL:
        a(f"""
    ds_read_b128 v[24:27], v16 offset:{L_HIST}
    ds_read_b128 v[28:31], v16 offset:{L_HIST+16}
    ds_read_b128 v[32:35], v16 offset:{L_HIST+2048}
    ds_read_b128 v[36:39], v16 offset:{L_HIST+2064}
    v_sub_u32 v40, {2*128 + 127}, v{L}
    v_sub_u32 v41, {2*128 + 63}, v{L}
    v_mov_b32 v42, 0
    v_mov_b32 v43, 0
    s_lshl_b32 s24, s{S_WAVE}, 3
    s_waitcnt lgkmcnt(2)
    v_add3_u32 v24, v24, v25, v26
    v_add3_u32 v28, v28, v29, v30
    v_add3_u32 v24, v24, v27, v31
    s_waitcnt lgkmcnt(0)
    v_add3_u32 v32, v32, v33, v34
    v_add3_u32 v36, v36, v37, v38
    v_add3_u32 v32, v32, v35, v39
    v_add_u32 v24, v24, v28
    v_add_u32 v32, v32, v36
    v_lshl_add_u32 v40, v24, 7, v40
    v_lshl_add_u32 v41, v32, 7, v41
    v_and_b32 v40, 0xfffffe7f, v40
    v_and_b32 v41, 0xfffffe7f, v41
""")
        sel = [(40, i) for i in range(8)] + [(41, None)] * 5
        for n in range(13):
            if n < 8:
                a(f"s_add_u32 s25, s24, {n}")
                a(f"v_readlane_b32 s{28+n}, v40, s25")
            else:
                a(f"s_add_u32 s25, s{S_WAVE}, {8*(n-8)}")
                a(f"v_readlane_b32 s{28+n}, v41, s25")
        for n in range(13):
            p0, p1 = ("vcc", "s[26:27]") if n % 2 == 0 else ("s[24:25]", "s[42:43]")
            a(f"v_cmp_gt_u32 {p0}, s{28+n}, v40")
            a(f"v_cmp_gt_u32 {p1}, s{28+n}, v41")
            if n:
                q0, q1 = ("vcc", "s[26:27]") if n % 2 == 1 else ("s[24:25]", "s[42:43]")
                a(f"v_addc_co_u32 v42, {q0}, 0, v42, {q0}")
                a(f"v_addc_co_u32 v43, {q1}, 0, v43, {q1}")
        a(f"""
    v_lshlrev_b32 v44, 2, v{L}
    v_mov_b32 v20, 127
    v_addc_co_u32 v42, vcc, 0, v42, vcc
    v_addc_co_u32 v43, s[26:27], 0, v43, s[26:27]
    v_mov_b32 v21, 127
    ds_add_u32 v44, v42 offset:{L_RANK}
    ds_add_u32 v44, v43 offset:{L_RANK+256}
    ds_write_b64 v13, v[20:21] offset:{L_MAP}
""")
        if OPT.get("carry", 1):
            masked(f_taddr, "ta")
        a(f"""
    s_waitcnt lgkmcnt(0)
    s_barrier
    ds_read_b32 v42, v44 offset:{L_RANK}
    ds_read_b32 v43, v44 offset:{L_RANK+256}
    v_add_u32 v41, 64, v{L}
    s_lshl_b32 s24, s{S_WAVE}, 6
    s_waitcnt lgkmcnt(0)
    v_bfe_i32 v45, v42, 3, 1
    v_bfe_i32 v46, v43, 3, 1
    v_xor_b32 v45, v45, v42
    v_xor_b32 v46, v46, v43
    v_and_b32 v45, 7, v45
    v_and_b32 v46, 7, v46
    v_cmp_eq_u32 vcc, s{S_WAVE}, v45
    v_cmp_eq_u32 s[26:27], s{S_WAVE}, v46
    v_lshrrev_b32 v42, 3, v42
    v_lshrrev_b32 v43, 3, v43
    v_lshl_add_u32 v42, v42, 2, s24
    v_lshl_add_u32 v43, v43, 2, s24
    s_mov_b64 exec, vcc
    ds_write_b32 v42, v{L} offset:{L_MAP}
    s_mov_b64 exec, s[26:27]
    ds_write_b32 v43, v41 offset:{L_MAP}
    s_mov_b64 exec, -1
    ds_read_b64 v[20:21], v13 offset:{L_MAP}
    s_waitcnt lgkmcnt(0)
""")
    def prefix_carry():
        a(f"""
    v_lshlrev_b32 v20, 5, v20
    v_lshlrev_b32 v21, 5, v21
    ds_read_b128 v[24:27], v20 offset:{L_HIST}
    ds_read_b128 v[28:31], v20 offset:{L_HIST+16}
    ds_read_b128 v[32:35], v21 offset:{L_HIST}
    ds_read_b128 v[36:39], v21 offset:{L_HIST+16}
    v_add_u32 v20, v14, v20
    v_add_u32 v21, v14, v21
    ds_read_b32 v40, v20 offset:{L_HIST}
    ds_read_b32 v41, v21 offset:{L_HIST}
""")
        if not BAL:
            masked(f_taddr, "ta")
        a(f"""
    v_mov_b32 v42, 0
    v_mov_b32 v43, 0
    v_mov_b32 v44, v12
    v_mov_b32 v45, v12
    v_lshlrev_b32 v20, 1, v20
    v_lshlrev_b32 v21, 1, v21
    s_waitcnt lgkmcnt(0)
""")
        for q in range(1, 8):
            lo = (0xFFFFFFFFFFFFFFFF << (8 * q)) & 0xFFFFFFFF
            hi = ((0xFFFFFFFFFFFFFFFF << (8 * q)) >> 32) & 0xFFFFFFFF
            if q <= 4:
                a(f"s_mov_b32 exec_lo, {lo:#x}")
            else:
                a(f"s_mov_b32 exec_hi, {hi:#x}")
            a(f"v_cmp_ne_u32 vcc, 0, v{24+q-1}")
            a(f"v_cmp_ne_u32 s[26:27], 0, v{32+q-1}")
            a(f"v_add_u32 v42, v42, v{24+q-1}")
            a(f"v_add_u32 v43, v43, v{32+q-1}")
            a(f"v_cndmask_b32 v44, v44, v12, vcc")
            a(f"v_cndmask_b32 v45, v45, v12, s[26:27]")
            a(f"v_add_u32 v12, 32, v12")
        a(f"""
    s_mov_b64 exec, -1
    v_add_u32 v46, 2, v42
    v_add_u32 v47, 2, v43
    v_add_u32 v0, v46, v40
    v_add_u32 v1, v47, v41
    v_lshrrev_b32 v46, 2, v46
    v_lshrrev_b32 v47, 2, v47
    v_lshrrev_b32 v0, 2, v0
    v_lshrrev_b32 v1, 2, v1
    v_sub_u32 v0, v0, v46
    v_sub_u32 v1, v1, v47
    v_add_u32 v24, v0, v1
    v_mov_b32 v25, v24
""")
        wave_scan(a, 25)
        a(f"""
    v_readlane_b32 s24, v25, 63
    v_sub_u32 v24, v25, v24
    v_lshl_add_u32 v27, v24, 5, s{S_REGION}
    v_lshl_add_u32 v29, v0, 5, v27
    v_and_b32 v42, 2, v42
    v_and_b32 v43, 2, v43
    v_lshlrev_b32 v46, 3, v42
    v_lshlrev_b32 v47, 3, v43
    v_sub_u32 v27, v27, v46
    v_sub_u32 v29, v29, v47
    v_lshl_add_u32 v46, v40, 3, v27
    v_lshl_add_u32 v47, v41, 3, v29
    ds_bpermute_b32 v26, v44, v46
    ds_bpermute_b32 v28, v45, v47
    v_cmp_eq_u32 vcc, 0, v42
    v_cmp_eq_u32 s[26:27], 0, v43
    s_cmp_le_u32 s24, {CAPP}
    s_cbranch_scc1 M_noovf
    v_mov_b32 v30, 1
    ds_write_b32 v4, v30 offset:{L_FLAG}
M_noovf:
    s_waitcnt lgkmcnt(0)
    v_cndmask_b32 v26, v26, v27, vcc
    v_cndmask_b32 v28, v28, v29, s[26:27]
    ds_write_b64 v20, v[26:27] offset:{L_TAB}
    ds_write_b64 v21, v[28:29] offset:{L_TAB}
    s_waitcnt lgkmcnt(0)
""")

    CARRY = OPT.get("carry", 1)
    if CARRY:
        prefix_carry()
    else:
        a(f"""
    v_lshl_add_u32 v20, v20, 5, v14
    v_lshl_add_u32 v21, v21, 5, v14
    ds_read_b32 v0, v20 offset:{L_HIST}
    ds_read_b32 v1, v21 offset:{L_HIST}
    s_waitcnt lgkmcnt(0)
    v_add_u32 v0, 2, v0
    v_add_u32 v1, 2, v1
    v_lshrrev_b32 v0, 2, v0
    v_lshrrev_b32 v1, 2, v1
    v_add_u32 v24, v0, v1
    v_mov_b32 v25, v24
""")
        wave_scan(a, 25)
        a(f"""
    v_readlane_b32 s24, v25, 63
    v_sub_u32 v24, v25, v24
    v_lshl_add_u32 v27, v24, 5, s{S_REGION}
    v_lshl_add_u32 v29, v0, 5, v27
    ds_write_b32 v20, v27 offset:{L_HIST}
    ds_write_b32 v21, v29 offset:{L_HIST}
    s_cmp_le_u32 s24, {CAPP}
    s_cbranch_scc1 M_noovf
    v_mov_b32 v30, 1
    ds_write_b32 v4, v30 offset:{L_FLAG}
M_noovf:
    s_waitcnt lgkmcnt(0)
""")
    pstamp(a, 4)
    a(f"""
    s_barrier
    ds_read_b64 v[20:21], v4 offset:{L_FLAG}
""")
    masked(lambda i, u, k: a(f"ds_read_b32 v{RB+4*i+3}, v{RB+4*i+3} offset:{L_TAB if CARRY else L_HIST}"), "lk")
    for r in range(D):
        a(f"v_mov_b32 v{RING+4*r+1}, v{STAGE+3}")
    for st in range(1, LS):
        a(f"v_mov_b32 v{STAGE+4*st+3}, v{STAGE+3}")
    a(f"""
    s_waitcnt lgkmcnt(0)
    v_readfirstlane_b32 s24, v20
    v_readfirstlane_b32 s{S_MORE}, v21
    s_cmp_eq_u32 s24, 0
    s_cbranch_scc1 M_go
    s_lshr_b32 s{S_TAKE}, s{S_TAKE}, 1
    s_max_u32 s{S_TAKE}, s{S_TAKE}, 1
    s_waitcnt vmcnt(0)
    s_barrier
    s_branch M_round
M_go:
""")
    pstamp(a, 5)

    def f_scatter(i, u, k):
        r = RB + 4 * i
        a(f"v_lshl_add_u32 v{r+3}, v{RK+i}, 3, v{r+3}")
        a(f"ds_write_b16 v{r+3}, v{r+2} offset:8")
        a(f"ds_write_b64 v{r+3}, v[{r}:{r+1}] offset:{32*(D-1)}")
    masked(f_scatter, "sc")
    a(f"s_waitcnt vmcnt({OPT['warm'] + (1 if OPT.get('l2pf') else 0)}) lgkmcnt(0)")
    a("s_barrier")
    stamp(a, 3)
    cstamp(a, 1)
    for r in range(D):
        a(f"ds_read_b32 v{RING+4*r}, v{V_PTR} offset:{32*r+8}")
    a(f"ds_read_b64 v[{RING+2}:{RING+3}], v{V_PTR} offset:{32*(D-1)}")
    for st in range(LS):
        a(f"ds_read_b96 v[{STAGE+4*st}:{STAGE+4*st+2}], v{V_PTR} offset:{32*(D+st)}")
    for j in range(5, NSLOT):
        a(f"v_mfma_f32_32x32x16_bf16 v[{ACC+16*j}:{ACC+16*j+15}], v[4:7], v[4:7], 0")
    a(f"s_waitcnt lgkmcnt({LS})")
    for j in range(4):
        a(f"v_perm_b32 v{4+j}, v{RING+3}, v{RING+2}, v{8+j}")
    for r in range(D):
        a(f"buffer_load_dwordx4 v[{RING+4*r}:{RING+4*r+3}], v[{RING+4*r}:{RING+4*r+1}], s[{S_X}:{S_X+3}], 0 idxen offen")
    a(f"s_mov_b32 s{S_PH}, 0")
    xf = ["", " nt", " sc1", " sc0"][OPT.get("xf", 0)]
    PB = 2 if OPT.get("eprio") else 0
    if OPT.get("eprio"):
        a("s_setprio 2")
    if OPT.get("offen"):
        a(f"s_mov_b32 s{S_MASK}, s{S_X}")
        a(f"s_and_b32 s{S_MASK+1}, s{S_X+1}, 0xffff")
        a(f"s_mov_b32 s{S_MASK+2}, {N*512}")
        a(f"s_mov_b32 s{S_MASK+3}, 0x20000")
    if OPT.get("prio") == 2:
        a(f"s_cmp_lt_u32 s{S_WAVE}, 4")
        a("s_cbranch_scc1 M_PE0")
        a("s_setprio 1")
    a("s_branch M_epi" if OPT.get("nomain") else "s_branch M_PE0")
    assert D % LS == 0
    for j in range(NSLOT):
        ac = ACC + 16 * j
        for r in range(D):
            nxt = f"M_B{j+1}_{r}" if j + 1 < NSLOT else f"M_PE{r}"
            rg = RING + 4 * r
            st = STAGE + 4 * (r % LS)
            a(f"""
M_B{j}_{r}:
    s_sub_u32 s{S_CNT+j}, s{S_CNT+j}, 1
    s_cbranch_scc1 {nxt}
    s_waitcnt vmcnt({D-1}) lgkmcnt({LS-1})
""")
            if OPT.get("offen"):
                a(f"v_lshl_add_u32 v{st+2}, v{st+2}, 9, v{st+3}")
            a(f"v_mfma_f32_32x32x16_bf16 v[{ac}:{ac+15}], v[4:7], v[{rg}:{rg+3}], v[{ac}:{ac+15}]")
            if OPT.get("offen"):
                a(f"buffer_load_dwordx4 v[{rg}:{rg+3}], v{st+2}, s[{S_MASK}:{S_MASK+3}], 0 offen")
            else:
                a(f"buffer_load_dwordx4 v[{rg}:{rg+3}], v[{st+2}:{st+3}], s[{S_X}:{S_X+3}], 0 idxen offen{xf}")
            a(f"""
    v_perm_b32 v4, v{st+1}, v{st}, v8
    v_perm_b32 v5, v{st+1}, v{st}, v9
    v_perm_b32 v6, v{st+1}, v{st}, v10
    v_perm_b32 v7, v{st+1}, v{st}, v11
    ds_read_b96 v[{st}:{st+2}], v{V_PTR} offset:{32*(r+D+LS)}
""")
            if r == D - 1:
                a(f"v_add_u32 v{V_PTR}, {32*D}, v{V_PTR}")
                a(f"s_branch M_B{j}_0")
    for r in range(D):
        a(f"""
M_PE{r}:
    s_cmp_ge_u32 s{S_PH}, {8*OPT.get("nph", 8)}
    s_cbranch_scc1 M_epi
""")
        for j in range(NSLOT):
            if j % 2 == 0:
                a(f"s_add_u32 s24, s{S_PH}, {j//2}")
            a(f"v_readlane_b32 s{S_CNT+j}, v{j % 2}, s24")
        a(f"s_add_u32 s{S_PH}, s{S_PH}, 8")
        if OPT.get("phbar"):
            a("s_barrier")
        if OPT.get("prio") == 1:
            a(f"s_lshr_b32 s24, s{S_PH}, 1")
            a(f"s_xor_b32 s24, s24, s{S_WAVE}")
            a(f"s_bitcmp1_b32 s24, 2")
            a(f"s_setprio {PB}")
            a(f"s_cbranch_scc0 M_B0_{r}")
            a(f"s_setprio {PB+1}")
        a(f"s_branch M_B0_{r}")
    a("M_epi:")
    if OPT.get("noepi") == 1:
        a("s_endpgm")
    if OPT.get("eprio"):
        a("s_setprio 0")
    if STAMP:
        a("s_waitcnt vmcnt(0) lgkmcnt(0)")
    stamp(a, 4)
    cstamp(a, 2)
    if OPT.get("noepi") == 2:
        a("s_branch M_end")
    if OPT.get("ebar"):
        a("s_barrier")
    a(f"""
    ; v0 = staging write addr, v1 = staging read addr, v2 = W image addr, v4 = local node, v5 = q
    v_lshl_add_u32 v0, v{L}, 3, s{S_REGION}
    v_and_b32 v4, 15, v{L}
    v_lshrrev_b32 v5, 4, v{L}
    v_mul_u32_u24 v1, {STG}, v4
    v_lshl_add_u32 v1, v5, 4, v1
    v_add_u32 v1, s{S_REGION}, v1
    v_lshlrev_b32 v2, 4, v{L}
    v_add_u32 v2, {L_W}, v2
    s_lshl_b32 s24, s{S_WAVE}, 6
    v_lshl_add_u32 v5, v5, 4, s24
    ds_read_b128 v[4:7], v5 offset:{L_MAP}
    s_mov_b32 s26, 0x80008000
""")

    of = ["", " nt", " sc1", " sc0 sc1"][OPT.get("ost", 1)]
    Q = [[ACC + 16 * j + 4 * kc for j in range(NSLOT)] for kc in range(4)]
    BFS = [[8, 12, 16, 20, 24, 28, 32, 36], Q[0][0:8], Q[2][3:11], Q[3][0:8]]
    BF = {(kc, c, ks): BFS[kc][c * 2 + ks] for kc in range(4) for c in range(4) for ks in range(2)}
    outq = Q[1][0:13] + Q[2][0:3]
    order = [(0, 0), (0, 1), (0, 2), (0, 3)] + [(o, t) for t in range(4) for o in (1, 2, 3)]
    OUT = {ot: outq[i] for i, ot in enumerate(order)}
    AF = Q[0][8:13] + [40, 44]
    GATE = Q[3][8:12]
    NA = len(AF)
    S = Sched(a)

    def f_cvt(kc):
        ops = []
        for j in range(NSLOT):
            q = Q[kc][j]
            ops.append(("valu", f"v_cvt_pk_bf16_f32 v{q}, v{q}, v{q+1}", [q, q + 1], [q]))
            ops.append(("valu", f"v_cvt_pk_bf16_f32 v{q+1}, v{q+2}, v{q+3}", [q + 2, q + 3], [q + 1]))
        return ops

    def f_w(kc):
        return [("dsw", f"ds_write_b64 v0, v[{Q[kc][j]}:{Q[kc][j]+1}] offset:{STG*j}", [Q[kc][j], Q[kc][j] + 1], [])
                for j in range(NSLOT)]

    def f_rb(kc):
        return [("dsr", f"ds_read_b128 v[{BF[kc,c,ks]}:{BF[kc,c,ks]+3}], v1 offset:{c*64+ks*256}", [], R(BF[kc, c, ks]))
                for c in range(4) for ks in range(2)]

    use = {m: [] for m in range(5)}
    negs = []
    for kc in range(4):
        for c in range(4):
            if kc == 0:
                m, o = (0, 0) if c == 0 else (3, c)
            else:
                jj = kc - 1
                if c == 0:
                    m, o = 2, kc
                elif c - 1 == jj:
                    m, o = 1, 0
                else:
                    m, o = 4, 1 + (3 - jj - (c - 1))
                    if c - 1 != (jj + 1) % 3:
                        negs.append((kc, c))
            use[m].append((kc, c, o))
    frs = [(0, ks, t) for t in range(4) for ks in range(2)] + [(3, ks, t) for t in range(4) for ks in range(2)] \
        + [(1, ks, t) for t in range(4) for ks in range(2)] \
        + [(m, ks, t) for t in range(4) for m in (2, 4) for ks in range(2)]

    def f_af(n):
        m, ks, t = frs[n]
        q = AF[n % NA]
        return ("dsr", f"ds_read_b128 v[{q}:{q+3}], v2 offset:{((m*2+ks)*4+t)*1024}", [], R(q))

    def emit(o):
        if OPT.get("nostore") and o[0] == "store":
            return
        if OPT.get("nodsw") and o[0] == "dsw":
            return
        if OPT.get("nodsr") and o[0] == "dsr":
            return
        if OPT.get("novalu") and o[0] in ("valu", "trans") and "v4" not in o[1]:
            return
        S.op(o[0], o[1], o[2], o[3])

    for o in f_cvt(0):
        emit(o)
    a("s_waitcnt vmcnt(0) lgkmcnt(0)")
    for o in f_w(0) + f_rb(0):
        emit(o)
    for n in range(NA):
        emit(f_af(n))
    for o in f_cvt(1) + f_w(1):
        emit(o)
    neg_ops = [("valu", f"v_xor_b32 v{BF[kc,c,kk]+i}, s26, v{BF[kc,c,kk]+i}", [BF[kc, c, kk] + i], [BF[kc, c, kk] + i])
               for (kc, c) in negs for kk in range(2) for i in range(4)]
    TA, TB = Q[3][12], Q[3][12] + 1
    addr_ops = [("other", f"s_mul_i32 s24, s2, {NPB*512}", [], []),
                ("valu", f"v_and_b32 v{TA}, 15, v{L}", [], [TA]),
                ("valu", f"v_lshl_add_u32 v{TA}, v{TA}, 3, s24", [TA], [TA]),
                ("valu", f"v_mov_b32 v{TB}, {OOB:#x}", [], [TB])]
    for i in range(4):
        addr_ops += [("valu", f"v_cmp_gt_u32 vcc, {NPB}, v{4+i}", [4 + i], []),
                     ("valu", f"v_lshl_add_u32 v{4+i}, v{4+i}, 9, v{TA}", [4 + i, TA], [4 + i]),
                     ("other", "s_nop 0", [], []),
                     ("valu", f"v_cndmask_b32 v{4+i}, v{TB}, v{4+i}, vcc", [4 + i, TB], [4 + i])]
    addr_ops += [("other", "s_mov_b32 s24, 0xbfb8aa3b", [], [])]
    fill = f_rb(1) + f_cvt(2) + f_w(2) + f_rb(2) + f_cvt(3) + f_w(3) + f_rb(3) + addr_ops + neg_ops
    gate_ops = []
    for t in range(4):
        for i in range(4):
            gate_ops.append(("valu", f"v_mul_f32 v{GATE[t]+i}, s24, v{OUT[0,t]+i}", [OUT[0, t] + i], [GATE[t] + i]))
    G = [GATE[t] + i for t in range(4) for i in range(4)]
    gate_ops += [("trans", f"v_exp_f32 v{g}, v{g}", [g], [g]) for g in G]
    gate_ops += [("valu", f"v_add_f32 v{g}, 1.0, v{g}", [g], [g]) for g in G]
    gate_ops += [("trans", f"v_rcp_f32 v{g}, v{g}", [g], [g]) for g in G]
    PK = [8, 12, 16, 20, 24, 28, 32, 36]

    def f_mul(o, t):
        d, g = OUT[o, t], GATE[t]
        return [("valu", f"v_pk_mul_f32 v[{d}:{d+1}], v[{d}:{d+1}], v[{g}:{g+1}]", [d, d + 1, g, g + 1], [d, d + 1]),
                ("valu", f"v_pk_mul_f32 v[{d+2}:{d+3}], v[{d+2}:{d+3}], v[{g+2}:{g+3}]", [d + 2, d + 3, g + 2, g + 3], [d + 2, d + 3])]

    def f_pack(o, k):
        ops = []
        if o:
            ops += f_mul(o, 2 * k) + f_mul(o, 2 * k + 1)
        for i in range(4):
            p = 8 + o * 8 + i * 2 + k
            d0, d1 = OUT[o, 2 * k] + i, OUT[o, 2 * k + 1] + i
            ops.append(("valu", f"v_cvt_pk_bf16_f32 v{p}, v{d0}, v{d1}", [d0, d1], [p]))
        return ops

    def f_st(o):
        return [("store", f"buffer_store_dwordx2 v[{8+o*8+i*2}:{9+o*8+i*2}], v{4+i}, s[{S_OUT}:{S_OUT+3}], 0 offen offset:{o*128}{of}",
                 [8 + o * 8 + i * 2, 9 + o * 8 + i * 2, 4 + i], []) for i in range(4)]

    def gemm(S, fill, late):
        fill = list(fill)
        touched = set()
        for n, (m, ks, t) in enumerate(frs):
            if n in (14, 16, 24):
                lim = {14: len(f_rb(1) + f_cvt(2) + f_w(2)), 16: 3 * 8 + 2 * 39, 24: 10 ** 6}[n]
                while fill and done[0] < lim:
                    emit(fill.pop(0))
                    done[0] += 1
            fill += late.get(n, [])
            q = AF[n % NA]
            for (kc, c, o) in use[m]:
                b = BF[kc, c, ks]
                d = OUT[o, t]
                first = (o, t) not in touched
                touched.add((o, t))
                cin = "0" if first else f"v[{d}:{d+3}]"
                if not OPT.get("noem"):
                  S.op("mfma", f"v_mfma_f32_16x16x32_bf16 v[{d}:{d+3}], v[{b}:{b+3}], v[{q}:{q+3}], {cin}",
                     R(q) + R(b), R(d), [] if first else R(d))
                for _ in range(FPM):
                    if fill:
                        emit(fill.pop(0))
                        done[0] += 1
            if n + NA < len(frs):
                emit(f_af(n + NA))
        return fill

    FPM = OPT.get("fpm", 3)
    done = [0]
    a(f"s_or_b32 s27, s{S_C0}, s{S_MORE}")
    a("s_cmp_eq_u32 s27, 0")
    a("s_cbranch_scc0 M_multi")
    import copy
    S2 = copy.deepcopy(S)
    S2.a = a
    late = {25: gate_ops + f_pack(0, 0) + f_pack(0, 1) + f_st(0),
            33: f_pack(1, 0) + f_pack(2, 0) + f_pack(3, 0)}
    rest = gemm(S, fill, late)
    for o in rest + f_pack(1, 1) + f_st(1) + f_pack(2, 1) + f_st(2) + f_pack(3, 1) + f_st(3):
        emit(o)
    a("s_branch M_end")
    a("M_multi:")
    S = S2
    done = [0]
    rest = gemm(S, fill, {})
    for o in rest:
        emit(o)
    a("s_nop 7")
    a(f"v_and_b32 v0, 15, v{L}")
    a(f"v_mul_u32_u24 v0, 12, v0")
    for i in range(4):
        a(f"v_lshlrev_b32 v{40+i}, 1, v{4+i}")
        a(f"v_sub_u32 v{40+i}, v{40+i}, v0")
        a(f"v_cmp_eq_u32 vcc, v{TB}, v{4+i}")
        a("s_nop 1")
        a(f"v_cndmask_b32 v{40+i}, v{40+i}, v{TB}, vcc")
    a(f"""
    s_cmp_eq_u32 s{S_C0}, 0
    s_cbranch_scc1 M_noload
""")
    for o in range(4):
        for t in range(4):
            for i in range(4):
                a(f"buffer_load_dword v{8+4*t+i}, v{40+i}, s[{S_PART}:{S_PART+3}], 0 offen offset:{o*256+t*64} sc1")
        a("s_waitcnt vmcnt(0)")
        for t in range(4):
            for i in range(4):
                a(f"v_add_f32 v{OUT[o,t]+i}, v{OUT[o,t]+i}, v{8+4*t+i}")
    a(f"""
M_noload:
    s_cmp_eq_u32 s{S_MORE}, 0
    s_cbranch_scc1 M_final
""")
    for o in range(4):
        for t in range(4):
            for i in range(4):
                a(f"buffer_store_dword v{OUT[o,t]+i}, v{40+i}, s[{S_PART}:{S_PART+3}], 0 offen offset:{o*256+t*64} sc1")
    a(f"""
    s_add_u32 s{S_C0}, s{S_C0}, s{S_TAKE}
    s_waitcnt vmcnt(0) lgkmcnt(0)
    s_barrier
    s_branch M_round
M_final:
""")
    S = Sched(a)
    for o in gate_ops:
        emit(o)
    for o in range(4):
        for op in f_pack(o, 0) + f_pack(o, 1) + f_st(o):
            emit(op)
    a("M_end:")
    if OPT.get("es"):
        stamp(a, 3)
    if STAMP:
        a("s_waitcnt vmcnt(0)")
    stamp(a, 5)
    stamp_flush(a, 16, 1, 0, S_WAVE)
    a("""
M_done:
    s_endpgm
""")


def descriptor(name, vgpr, sgpr):
    acc = (vgpr + 3) // 4 * 4
    return f"""
.p2align 6
.amdhsa_kernel {name}
  .amdhsa_next_free_vgpr {vgpr}
  .amdhsa_next_free_sgpr {sgpr}
  .amdhsa_accum_offset {acc}
  .amdhsa_group_segment_fixed_size 0
  .amdhsa_kernarg_size 96
  .amdhsa_user_sgpr_count 2
  .amdhsa_user_sgpr_kernarg_segment_ptr 1
  .amdhsa_system_sgpr_workgroup_id_x 1
  .amdhsa_float_denorm_mode_32 3
.end_amdhsa_kernel
"""


def main():
    global STAMP
    for arg in list(sys.argv):
        if "=" in arg:
            k, v = arg.split("=")
            OPT[k] = int(v)
            sys.argv.remove(arg)
    if "--stamp" in sys.argv:
        STAMP = True
        sys.argv.remove("--stamp")
    ref = open(f"cdna_kernels/{NAME}.s.ref").read().split("\n")
    head = [l for l in ref if l.startswith(";") and "@launch" not in l and "Override launch" not in l
            and "grid=ceil" not in l]
    a = Asm()
    gen_part(a)
    gen_main(a)
    out = "\n".join(head) + "\n"
    out += f"; @launch kernel=part_kernel grid=({NC+6},1,1) block=(832,1,1) lds={K1_LDS}\n"
    out += f"; @launch kernel=main_kernel grid=({NB},1,1) block=(512,1,1) lds={L_TOTAL}\n"
    out += '.amdgcn_target "amdgcn-amd-amdhsa--gfx950"\n.text\n'
    out += a.text()
    out += '.section .rodata,"a"\n'
    out += descriptor("part_kernel", 88, 102 if STAMP else 32)
    out += descriptor("main_kernel", 256, 102)
    path = sys.argv[1] if len(sys.argv) > 1 else f"cdna_kernels/{NAME}.s"
    open(path, "w").write(out)
    print("wrote", path, len(out), "bytes; LDS", L_TOTAL, "CAPP", CAPP)


if __name__ == "__main__":
    main()
```

```python
import sys

NAME = "standalone__tensor_product_equiv_equiformer__graph"
N = 25000
E = 800000
NPB = 98
NB = 256
NC = 250
CH = 3200
P = 8
PH = (N + P - 1) // P
NSLOT = 13
import os
D = int(os.environ.get("DD", "6"))
LS = int(os.environ.get("LSS", "3"))
RECB = 12

OPT = {"st": 1, "warm": 1, "stage": 1, "ld": 0, "bal": 0, "prio": 0, "cpf": 0, "rot": 1, "dcm": 1, "dsc": 1, "smf": 1}

REC_OFF = 0
REC_BYTES = NC * CH * RECB
DESC_OFF = 0x1000000
WIMG_OFF = 0x1100000
WIMG_BYTES = 5 * 8192
PART_OFF = 0x2000000
PART_BYTES = NB * NPB * 1024

L_FLAG = 0
L_DUMMY = 256
L_HIST = 512
L_TAB = L_HIST + 4096
L_RANK = L_TAB + 8192
L_MAP = L_RANK + 512
L_W = L_MAP + 512
L_REG = L_W + WIMG_BYTES
REGB = 10240
L_TOTAL = L_REG + 8 * REGB
CAPP = REGB // 32 - (D + LS + 2)
STG = 528
OOB = 0x7FFFF000
PADIDX = 0x7FFF

STAMP = False
STAMP_OFF = 0x8000000


def magic(div, maxv):
    for k in range(31, 15, -1):
        m = -(-(1 << k) // div)
        if m < (1 << 24) and m * maxv < (1 << 32):
            e = m * div - (1 << k)
            if e * maxv < (1 << k):
                assert all((v * m) >> k == v // div for v in range(maxv + 1))
                return m, k
    raise ValueError


class Asm:
    def __init__(self):
        self.lines = []

    def __call__(self, s):
        for ln in s.strip("\n").split("\n"):
            ln = ln.strip()
            if ln:
                self.lines.append(("" if ln.endswith(":") else "    ") + ln)

    def text(self):
        return "\n".join(self.lines) + "\n"


def srd(a, d, base, nrec, add=0, stride=0):
    if add:
        a(f"s_add_u32 s{d}, s{base}, {add}")
        a(f"s_addc_u32 s{d+1}, s{base+1}, 0")
        a(f"s_and_b32 s{d+1}, s{d+1}, 0xffff")
    else:
        a(f"s_mov_b32 s{d}, s{base}")
        a(f"s_and_b32 s{d+1}, s{base+1}, 0xffff")
    if stride:
        a(f"s_or_b32 s{d+1}, s{d+1}, {stride << 16:#x}")
    a(f"s_mov_b32 s{d+2}, {nrec}")
    a(f"s_mov_b32 s{d+3}, 0x20000")


def pstamp(a, k):
    if STAMP and OPT.get("ps"):
        a("s_memrealtime s[42:43]")
        a("s_waitcnt lgkmcnt(0)")
        a(f"s_mov_b32 s{96+k}, s42")


MAINK = [False]


def stamp(a, k):
    if OPT.get("ps") and MAINK[0] and k not in (0, 3):
        return
    if STAMP:
        a("s_memrealtime s[42:43]")
        a("s_waitcnt lgkmcnt(0)")
        a(f"s_mov_b32 s{96+k}, s42")


def cstamp(a, k):
    if STAMP and OPT.get("clk"):
        a("s_memtime s[42:43]")
        a("s_waitcnt lgkmcnt(0)")
        a(f"s_mov_b32 s{96+k}, s42")


def stamp_flush(a, wsreg, kern, vt, swave):
    if STAMP:
        a("s_mov_b64 exec, 1")
        a(f"s_lshl_b32 s42, s2, 4")
        a(f"s_add_u32 s42, s42, s{swave}")
        a(f"s_lshl_b32 s42, s42, 5")
        a(f"s_add_u32 s42, s42, {STAMP_OFF + kern * 0x100000}")
        a(f"v_mov_b32 v{vt}, s42")
        for k in range(6):
            a(f"v_mov_b32 v{vt+1}, s{96+k}")
            a(f"global_store_dword v{vt}, v{vt+1}, s[{wsreg}:{wsreg+1}] offset:{4*k}")
            a("s_nop 1")


def wave_scan(a, v):
    for sh in (1, 2, 4, 8):
        a("s_nop 1")
        a(f"v_add_u32_dpp v{v}, v{v}, v{v} row_shr:{sh} row_mask:0xf bank_mask:0xf bound_ctrl:0")
    a("s_nop 1")
    a(f"v_add_u32_dpp v{v}, v{v}, v{v} row_bcast:15 row_mask:0xa bank_mask:0xf")
    a("s_nop 1")
    a(f"v_add_u32_dpp v{v}, v{v}, v{v} row_bcast:31 row_mask:0xc bank_mask:0xf")
    a("s_nop 1")


class Sched:
    def __init__(self, a):
        self.a = a
        self.lds = []
        self.slot = 0
        self.vw = {}
        self.tw = {}
        self.mw = {}
        self.mc = {}
        self.sw = {}

    def _emit(self, t):
        self.a(t)
        self.slot += 1

    def _nop(self, need):
        while need > 0:
            k = min(need, 8)
            self.a(f"s_nop {k-1}")
            self.slot += k
            need -= k

    def op(self, kind, text, reads=(), writes=(), srcc=()):
        reads, writes, srcc = set(reads), set(writes), set(srcc)
        touched = reads | writes | srcc
        last = -1
        for i, d in enumerate(self.lds):
            if d & touched:
                last = i
        if last >= 0:
            n = len(self.lds) - 1 - last
            self._emit(f"s_waitcnt lgkmcnt({min(n, 15)})")
            self.lds = self.lds[len(self.lds) - min(n, 15):] if n else []
        need = 0
        if kind == "mfma":
            for r in reads | srcc:
                if r in self.vw:
                    need = max(need, 2 - (self.slot - self.vw[r] - 1))
            for r in reads:
                if r in self.mw:
                    need = max(need, 8 - (self.slot - self.mw[r] - 1))
        else:
            for r in reads | writes:
                if r in self.mw:
                    need = max(need, 8 - (self.slot - self.mw[r] - 1))
            for r in writes:
                if r in self.mc:
                    need = max(need, 3 - (self.slot - self.mc[r] - 1))
                if r in self.sw:
                    need = max(need, 2 - (self.slot - self.sw[r] - 1))
            if kind in ("valu", "store", "dsw"):
                for r in reads:
                    if r in self.tw:
                        need = max(need, 1 - (self.slot - self.tw[r] - 1))
        self._nop(need)
        me = self.slot
        self._emit(text)
        if kind in ("valu", "trans"):
            for r in writes:
                self.vw[r] = me
                if kind == "trans":
                    self.tw[r] = me
        elif kind == "mfma":
            for r in writes:
                self.mw[r] = me
            for r in srcc:
                self.mc[r] = me
        elif kind == "dsr":
            self.lds.append(writes)
        elif kind == "dsw":
            self.lds.append(set())
        elif kind == "store":
            for r in reads:
                self.sw[r] = me


def R(b, n=4):
    return list(range(b, b + n))


def stflags():
    return ["", " sc1", " sc0 sc1", " nt"][OPT["st"]]


K1_STG = 1024
K1_LDS = K1_STG + 832 * 48


def gen_part(a):
    mB, kB = magic(NPB, 32767)
    G = OPT.get("stag", 1)
    NPH = OPT.get("nph", 8)
    PHS = -(-N * G // (NPH * G - (G - 1)))
    PHS = -(-PHS // G) * G
    assert (N - 1 + (G - 1) * (PHS // G)) // PHS <= 7
    mP, kP = magic(PHS, 32767)
    sf = stflags()
    df = ["", " sc1"][OPT.get("dsc", 0)]
    lf = ["", " nt", " sc1", " sc0 sc1 nt"][OPT.get("ld", 0)]
    a(f"""
.p2align 8
.globl part_kernel
.type part_kernel,@function
part_kernel:
    s_cmp_ge_u32 s2, {NC + 6}
    s_cbranch_scc1 P_done
    s_load_dwordx4 s[4:7], s[0:1], 8
    s_load_dwordx4 s[8:11], s[0:1], 24
    s_load_dwordx4 s[12:15], s[0:1], 40
    s_load_dwordx2 s[16:17], s[0:1], 56
    s_load_dwordx2 s[18:19], s[0:1], 88
    s_load_dwordx2 s[28:29], s[0:1], 0
    s_load_dwordx2 s[30:31], s[0:1], 72
    s_cmp_ge_u32 s2, {NC}
    s_cbranch_scc1 P_prep
""")
    if STAMP:
        a("v_lshrrev_b32 v1, 6, v0")
        a("s_nop 0")
        a("v_readfirstlane_b32 s41, v1")
    stamp(a, 0)
    a(f"""
    v_lshlrev_b32 v1, 2, v0
    v_mov_b32 v2, 0
    v_cmp_gt_u32 vcc, 256, v0
    s_and_saveexec_b64 s[20:21], vcc
    ds_write_b32 v1, v2
    s_mov_b64 exec, s[20:21]
    s_mul_i32 s3, s2, {CH}
    v_lshl_add_u32 v3, v0, 2, s3
    v_lshlrev_b32 v4, 2, v3
    v_lshlrev_b32 v5, 1, v3
    v_mul_u32_u24 v6, 6, v3
    v_cmp_gt_u32 vcc, {CH // 4}, v0
    s_and_saveexec_b64 s[20:21], vcc
    s_waitcnt lgkmcnt(0)
    global_load_dwordx4 v[8:11], v4, s[10:11]{lf}
    s_barrier
    global_load_dwordx4 v[12:15], v4, s[8:9]{lf}
    global_load_dwordx2 v[16:17], v5, s[6:7]{lf}
    global_load_dwordx4 v[20:23], v6, s[4:5]{lf}
    global_load_dwordx2 v[24:25], v6, s[4:5] offset:16{lf}
""")
    a(f"""
    v_mov_b32 v2, 1
    s_waitcnt vmcnt(4)
""")
    stamp(a, 1)
    for i in range(4):
        a(f"""
    v_mul_u32_u24 v{28+i}, {mB}, v{8+i}
    v_lshrrev_b32 v{28+i}, {kB}, v{28+i}
    v_min_u32 v{28+i}, 255, v{28+i}
    v_lshlrev_b32 v{36+i}, 2, v{28+i}
    ds_add_rtn_u32 v{32+i}, v{36+i}, v2
""")
    if OPT.get("cpf", 1):
        a(f"""
    s_getpc_b64 s[24:25]
P_pc:
    s_add_u32 s24, s24, main_kernel-P_pc
    s_addc_u32 s25, s25, 0
    s_lshr_b32 s3, s2, 3
    s_lshl_b32 s3, s3, 10
    v_subrev_u32 v26, {CH//4 - 16}, v0
    v_lshl_add_u32 v26, v26, 6, s3
    v_min_u32 v26, M_multi-main_kernel, v26
    s_movk_i32 s3, {CH//4 - 16}
    v_cmp_le_u32 s[26:27], s3, v0
    s_and_b64 exec, exec, s[26:27]
    s_cbranch_execz P_nopf
    global_load_dword v27, v26, s[24:25]
P_nopf:
    """)
    if OPT.get("tlb"):
        pg = OPT["tlb"]
        a(f"""
    s_mov_b64 exec, -1
    s_lshr_b32 s3, s2, 3
    s_lshl_b32 s3, s3, 7
    v_lshlrev_b32 v26, {pg}, v0
    v_add_u32 v26, s3, v26
    v_cmp_gt_u32 vcc, {N*512}, v26
    s_and_saveexec_b64 s[26:27], vcc
    s_cbranch_execz P_notlb
    global_load_dword v84, v26, s[28:29]
    global_load_dword v85, v26, s[30:31]
P_notlb:
""")
    a(f"""
    s_mov_b64 exec, -1
    s_waitcnt lgkmcnt(0)
    s_barrier
    v_cmp_gt_u32 vcc, 64, v0
    s_cbranch_vccz P_skipscan
    v_lshlrev_b32 v1, 4, v0
    ds_read_b128 v[72:75], v1
    s_waitcnt lgkmcnt(0)
    v_add_u32 v76, v72, v73
    v_add_u32 v77, v76, v74
    v_add_u32 v78, v77, v75
    v_mov_b32 v79, v78
""")
    wave_scan(a, 79)
    a(f"""
    v_sub_u32 v80, v79, v78
    v_add_u32 v81, v80, v72
    v_add_u32 v82, v80, v76
    v_add_u32 v83, v80, v77
    ds_write_b128 v1, v[80:83]
    v_lshl_or_b32 v72, v72, 16, v80
    v_lshl_or_b32 v73, v73, 16, v81
    v_lshl_or_b32 v74, v74, 16, v82
    v_lshl_or_b32 v75, v75, 16, v83
    v_mov_b32 v84, v72
    v_mov_b32 v85, v73
    v_mov_b32 v86, v74
    v_mov_b32 v87, v75
    s_waitcnt lgkmcnt(0)
P_skipscan:
    v_cmp_gt_u32 vcc, {CH // 4}, v0
    s_and_saveexec_b64 s[20:21], vcc
    s_movk_i32 s22, {NPB}
    s_mov_b32 s23, 0xffff0000
""")
    for i in range(4):
        a(f"""
    v_mul_u32_u24 v1, s22, v{28+i}
    v_sub_u32 v1, v{8+i}, v1
    v_and_b32 v1, 127, v1
    v_lshlrev_b32 v{8+i}, 21, v1
""")
        if OPT.get("rot"):
            a(f"v_lshrrev_b32 v{72+i}, 5, v{28+i}")
        if G > 1:
            a(f"v_and_b32 v{72+i}, {G-1}, v{28+i}")
            a(f"v_mul_u32_u24 v{72+i}, {PHS//G}, v{72+i}")
    a("s_barrier")
    stamp(a, 2)
    for i in range(4):
        a(f"ds_read_b32 v{28+i}, v{36+i}")
    a("s_waitcnt vmcnt(0)")
    stamp(a, 3)
    a(f"""
    v_cmp_gt_u32 vcc, 64, v0
    s_cbranch_vccz P_nodesc
""")
    if OPT.get("dcm"):
        a(f"""
    s_lshl_b32 s3, s2, 10
    s_add_u32 s3, s3, {DESC_OFF}
    v_lshl_add_u32 v1, v0, 4, s3
    global_store_dwordx4 v1, v[84:87], s[18:19]{df}
""")
    else:
        a(f"""
    s_lshl_b32 s3, s2, 2
    s_add_u32 s3, s3, {DESC_OFF}
    v_lshlrev_b32 v1, 12, v0
    v_add_u32 v1, s3, v1
    global_store_dword v1, v84, s[18:19]{df}
    global_store_dword v1, v85, s[18:19] offset:1024{df}
    global_store_dword v1, v86, s[18:19] offset:2048{df}
    global_store_dword v1, v87, s[18:19] offset:3072{df}
""")
    a("P_nodesc:")
    if OPT.get("k1warm"):
        a(f"""
    s_mul_i32 s3, s2, {100*512}
    v_lshl_add_u32 v76, v0, 7, s3
    v_cmp_gt_u32 vcc, 400, v0
    s_and_saveexec_b64 s[26:27], vcc
    s_cbranch_execz P_now
    global_load_dword v77, v76, s[28:29]
P_now:
    s_mov_b64 exec, s[26:27]
""")
    for i in range(4):
        r = 40 + 4 * i
        if G > 1:
            a(f"v_add_u32 v4, v{72+i}, v{12+i}")
        a(f"""
    v_mul_u32_u24 v4, {mP}, v{4 if G > 1 else 12+i}
    v_lshrrev_b32 v4, {kP}, v4
    v_min_u32 v4, {NPH-1}, v4
""")
        if OPT.get("rot"):
            a(f"v_sub_u32 v4, v4, v{72+i}")
            a(f"v_and_b32 v4, 7, v4")
        a(f"""
    v_lshl_or_b32 v4, v4, 18, v{8+i}
    v_and_b32 v3, 0x7fff, v{12+i}
    v_or_b32 v{r+2}, v3, v4
""")
    for i in range(4):
        src = 16 + i // 2
        if i % 2 == 0:
            a(f"v_lshlrev_b32 v{56+i}, 16, v{src}")
        else:
            a(f"v_and_b32 v{56+i}, s23, v{src}")
    for k in range(12):
        src = 20 + k // 2
        if k % 2 == 0:
            a(f"v_lshlrev_b32 v{60+k}, 16, v{src}")
        else:
            a(f"v_and_b32 v{60+k}, s23, v{src}")
    for i in range(4):
        r = 40 + 4 * i
        for j in range(3):
            a(f"v_mul_f32 v{60+3*i+j}, v{56+i}, v{60+3*i+j}")
        a(f"v_cvt_pk_bf16_f32 v{r}, v{56+i}, v{60+3*i}")
        a(f"v_cvt_pk_bf16_f32 v{r+1}, v{61+3*i}, v{62+3*i}")
    a("s_waitcnt lgkmcnt(0)")
    a(f"s_mul_i32 s3, s2, {CH * RECB}")
    if OPT["stage"]:
        for i in range(4):
            r = 40 + 4 * i
            a(f"""
    v_add_u32 v{28+i}, v{28+i}, v{32+i}
    v_mul_u32_u24 v{28+i}, {RECB}, v{28+i}
    v_add_u32 v{28+i}, {K1_STG}, v{28+i}
    ds_write2_b32 v{28+i}, v{r}, v{r+1} offset0:0 offset1:1
    ds_write_b32 v{28+i}, v{r+2} offset:8
""")
        nq = CH * RECB // 16
        a(f"""
    s_mov_b64 exec, -1
    v_lshlrev_b32 v1, 4, v0
    v_add_u32 v2, s3, v1
    s_waitcnt lgkmcnt(0)
    s_barrier
""")
        for i in range(3):
            a(f"ds_read_b128 v[{8+4*i}:{11+4*i}], v1 offset:{K1_STG + 832*16*i}")
        a(f"v_add_u32 v3, {832*16}, v2")
        a(f"v_add_u32 v4, {2*832*16}, v2")
        a(f"v_cmp_gt_u32 vcc, {nq - 2*832}, v0")
        a("s_waitcnt lgkmcnt(2)")
        a(f"global_store_dwordx4 v2, v[8:11], s[18:19]{sf}")
        a("s_waitcnt lgkmcnt(1)")
        a(f"global_store_dwordx4 v3, v[12:15], s[18:19]{sf}")
        a("s_and_saveexec_b64 s[20:21], vcc")
        a("s_cbranch_execz P_fin")
        a("s_waitcnt lgkmcnt(0)")
        a(f"global_store_dwordx4 v4, v[16:19], s[18:19]{sf}")
        a("P_fin:")
    else:
        a(f"s_movk_i32 s22, {RECB}")
        for i in range(4):
            r = 40 + 4 * i
            a(f"""
    v_add_u32 v{28+i}, v{28+i}, v{32+i}
    v_mul_u32_u24 v{28+i}, {RECB}, v{28+i}
    v_add_u32 v{28+i}, s3, v{28+i}
    global_store_dwordx3 v{28+i}, v[{r}:{r+2}], s[18:19]{sf}
""")
    stamp(a, 4)
    if STAMP:
        a("s_waitcnt vmcnt(0)")
    stamp(a, 5)
    stamp_flush(a, 18, 0, 1, 41)
    a("s_branch P_done")
    a(f"""
P_prep:
    s_waitcnt lgkmcnt(0)
    s_lshl_b32 s3, s2, {10 if OPT.get("dcm") else 2}
    s_add_u32 s3, s3, {DESC_OFF}
    v_lshlrev_b32 v1, {2 if OPT.get("dcm") else 10}, v0
    v_add_u32 v1, s3, v1
    v_mov_b32 v2, 0
    v_cmp_gt_u32 vcc, 256, v0
    s_and_saveexec_b64 s[20:21], vcc
    s_cbranch_execz P_prep1
    global_store_dword v1, v2, s[18:19]{df}
P_prep1:
    s_mov_b64 exec, s[20:21]
    s_sub_u32 s3, s2, {NC}
    s_cmp_eq_u32 s3, 5
    s_cbranch_scc1 P_done
    v_cmp_gt_u32 vcc, 512, v0
    s_and_saveexec_b64 s[20:21], vcc
    s_cbranch_execz P_done
    s_cmp_lt_u32 s3, 2
    s_cselect_b32 s24, s14, s16
    s_cselect_b32 s25, s15, s17
    s_sub_u32 s22, s3, 2
    s_cselect_b32 s22, s3, s22
    s_lshl_b32 s22, s22, 13
    v_lshrrev_b32 v1, 8, v0
    v_bfe_u32 v2, v0, 4, 2
    v_lshl_add_u32 v1, v2, 2, v1
    s_lshl_b32 s23, s3, 7
    v_lshl_add_u32 v4, v1, 3, s23
    global_load_dwordx2 v[16:17], v4, s[12:13]
    global_load_dwordx2 v[18:19], v4, s[12:13] offset:16
    v_lshlrev_b32 v1, 9, v1
    v_bfe_u32 v2, v0, 7, 1
    v_bfe_u32 v3, v0, 2, 2
    v_lshl_add_u32 v2, v2, 2, v3
    v_bfe_u32 v3, v0, 6, 1
    v_lshl_add_u32 v2, v2, 1, v3
    v_and_b32 v3, 3, v0
    v_lshl_add_u32 v2, v2, 2, v3
    v_lshl_add_u32 v1, v2, 1, v1
    v_add_u32 v1, s22, v1
""")
    for e in range(8):
        a(f"global_load_ushort v{8+e}, v1, s[24:25] offset:{128*(8*(e>>2)+(e&3))}")
    a(f"""
    s_lshl_b32 s3, s3, 13
    s_add_u32 s3, s3, {WIMG_OFF}
    v_lshl_add_u32 v1, v0, 4, s3
    s_mov_b32 s23, 0xffff0000
    s_waitcnt vmcnt(0)
""")
    for e in range(8):
        a(f"v_lshlrev_b32 v{8+e}, 16, v{8+e}")
        if e % 2 == 0:
            a(f"v_lshlrev_b32 v2, 16, v{16+e//2}")
        else:
            a(f"v_and_b32 v2, s23, v{16+e//2}")
        a(f"v_mul_f32 v{8+e}, v{8+e}, v2")
    for e in range(4):
        a(f"v_cvt_pk_bf16_f32 v{4+e}, v{8+2*e}, v{9+2*e}")
    a(f"""
    global_store_dwordx4 v1, v[4:7], s[18:19]{df}
P_done:
    s_endpgm
""")


ACC = 48
RING = 12 + 4 * max(LS, 3)
STAGE = 12
V_PTR = 2
V_LANE = 3
S_X = 4
S_REC = 8
S_OUT = 12
S_WS = 16
S_WAVE = 18
S_C0 = 19
S_TAKE = 20
S_MORE = 21
S_REGION = 22
S_PH = 23
S_T = 24
S_CNT = 28
S_LEV = 41
S_MASK = 44
S_PART = 92
NSUB = 3


def gen_main(a):
    MAINK[0] = True
    L = V_LANE
    NU = 6
    RB = 160
    RK = 132
    DS = 128
    BAL = OPT.get("bal", 1)
    a(f"""
.p2align 8
.globl main_kernel
.type main_kernel,@function
main_kernel:
    s_cmp_ge_u32 s2, {NB}
    s_cbranch_scc1 M_done
    s_load_dwordx2 s[16:17], s[0:1], 88
    s_load_dwordx2 s[24:25], s[0:1], 0
    s_load_dwordx2 s[26:27], s[0:1], 72
    v_lshrrev_b32 v1, 6, v0
    v_and_b32 v{L}, 63, v0
    v_readfirstlane_b32 s{S_WAVE}, v1
    s_mov_b32 s{S_C0}, 0
    s_movk_i32 s{S_TAKE}, 48
    s_mul_i32 s{S_REGION}, s{S_WAVE}, {REGB}
    s_add_u32 s{S_REGION}, s{S_REGION}, {L_REG}
""")
    if OPT.get("bperm", 1):
        a("""
    s_and_b32 s3, s2, 7
    s_lshl_b32 s3, s3, 5
    s_lshr_b32 s2, s2, 3
    s_or_b32 s2, s2, s3
""")
    a("s_waitcnt lgkmcnt(0)")
    stamp(a, 0)
    srd(a, S_X, 24, N, stride=512)
    srd(a, S_OUT, 26, N * 512)
    srd(a, S_REC, 16, WIMG_OFF + WIMG_BYTES)
    srd(a, S_PART, 16, PART_BYTES, PART_OFF)

    def any_level(u):
        m = S_MASK + 2 * (u * 4)
        a(f"s_or_b64 s[26:27], s[{m}:{m+1}], s[{m+2}:{m+3}]")
        a(f"s_or_b64 s[26:27], s[26:27], s[{m+4}:{m+5}]")
        a(f"s_or_b64 s[26:27], s[26:27], s[{m+6}:{m+7}]")

    def masked(fn, tag, pre=None):
        for u in range(2, NU):
            a(f"s_cmp_eq_u32 s{S_LEV}, {u}")
            a(f"s_cbranch_scc1 M_{tag}_{u-1}")
        for u in range(NU - 1, -1, -1):
            a(f"M_{tag}_{u}:")
            for k in range(4):
                i = u * 4 + k
                m = S_MASK + 2 * i
                if pre:
                    pre(i, u, k)
                a(f"s_mov_b64 exec, s[{m}:{m+1}]")
                fn(i, u, k)
        a("s_mov_b64 exec, -1")

    a(f"""
M_round:
    v_lshrrev_b32 v1, 3, v{L}
    s_lshl_b32 s24, s{S_WAVE}, 3
    v_add_u32 v1, s24, v1
""")
    if OPT.get("dcm"):
        a(f"""
    s_lshl_b32 s24, s2, 2
    s_add_u32 s24, s24, {DESC_OFF}
    v_lshl_add_u32 v4, v1, 12, s24
    global_load_dword v{DS}, v4, s[16:17]
    global_load_dword v{DS+1}, v4, s[16:17] offset:1024
    global_load_dword v{DS+2}, v4, s[16:17] offset:2048
    global_load_dword v{DS+3}, v4, s[16:17] offset:3072
""")
        if OPT.get("spec"):
            a(f"""
    s_mul_i32 s24, s2, {round(CH * NPB * RECB / N * 64)}
    s_lshr_b32 s24, s24, 6
    s_mul_i32 s26, s{S_WAVE}, {32*CH*RECB}
    s_add_u32 s24, s24, s26
    s_and_b32 s24, s24, -4
    s_mov_b32 m0, {L_DUMMY}
    v_lshrrev_b32 v5, 1, v{L}
    v_mul_u32_u24 v5, {CH*RECB}, v5
    v_and_b32 v6, 1, v{L}
    v_mul_u32_u24 v6, 76, v6
    v_add3_u32 v5, v5, v6, s24
    buffer_load_dword v5, s[{S_REC}:{S_REC+3}], 0 offen lds
""")
    else:
        a(f"""
    s_lshl_b32 s24, s2, 10
    s_add_u32 s24, s24, {DESC_OFF}
    v_lshl_add_u32 v4, v1, 4, s24
    global_load_dwordx4 v[{DS}:{DS+3}], v4, s[16:17]
""")
    a(f"""
    s_lshl_b32 s24, s{S_WAVE}, 9
    v_lshl_add_u32 v0, v{L}, 3, s24
    v_mov_b32 v4, 0
    v_mov_b32 v5, 0
    v_mov_b32 v6, {PADIDX:#x}
    v_mov_b32 v7, 0
    ds_write_b64 v0, v[4:5] offset:{L_HIST}
    ds_write_b64 v4, v[4:5] offset:{L_FLAG}
    v_lshlrev_b32 v2, 3, v{L}
    ds_write_b64 v2, v[4:5] offset:{L_RANK}
    v_lshl_add_u32 v2, v{L}, 4, s{S_REGION}
""")
    for i in range(REGB // 1024):
        a(f"ds_write_b128 v2, v[4:7] offset:{1024*i}")
    a(f"""
    s_mov_b32 s24, {4*CH*RECB}
    v_mul_lo_u32 v1, v1, s24
    v_and_b32 v0, 7, v{L}
    v_add_u32 v0, s{S_C0}, v0
    s_movk_i32 s24, {RECB}
    v_mad_u32_u24 v1, v0, s24, v1
    s_add_u32 s25, s{S_C0}, s{S_TAKE}
    v_mov_b32 v24, 0
    v_mov_b32 v25, {OOB:#x}
    s_waitcnt vmcnt({1 if OPT.get("spec") else 0})
""")
    stamp(a, 1)
    for k in range(4):
        d = DS + k
        a(f"""
    v_lshrrev_b32 v26, 16, v{d}
    v_max_u32 v24, v24, v26
    v_min_u32 v26, s25, v26
    v_sub_u32 v26, v26, v0
    v_and_b32 v{d}, 0xffff, v{d}
    v_mad_u32_u24 v{d}, v{d}, s24, v1
""")
        for u in range(NU):
            m = S_MASK + 2 * (u * 4 + k)
            a(f"v_cmp_lt_i32 s[{m}:{m+1}], {8*u}, v26")
        if k < 3:
            a(f"v_add_u32 v1, {CH*RECB}, v1")
    a(f"s_mov_b32 s{S_LEV}, 2")
    for u in range(2, NU):
        any_level(u)
        a(f"s_cselect_b32 s{S_LEV}, {u+1}, s{S_LEV}")
    for u in range(2, NU):
        a(f"s_cmp_eq_u32 s{S_LEV}, {u}")
        a(f"s_cbranch_scc1 M_ld_{u-1}")
    for u in range(NU - 1, -1, -1):
        a(f"M_ld_{u}:")
        for k in range(4):
            i = u * 4 + k
            m = S_MASK + 2 * i
            r = RB + 4 * i
            a(f"v_cndmask_b32 v{r+3}, v25, v{DS+k}, s[{m}:{m+1}]")
            a(f"buffer_load_dwordx3 v[{r}:{r+2}], v{r+3}, s[{S_REC}:{S_REC+3}], 0 offen offset:{8*RECB*u}" + ['', ' nt', ' sc1'][OPT.get('rf', 0)])
    a(f"""
    s_waitcnt lgkmcnt(0)
    s_barrier
    v_cmp_lt_u32 vcc, s25, v24
    s_and_saveexec_b64 s[26:27], vcc
    v_mov_b32 v1, 1
    ds_write_b32 v4, v1 offset:{L_FLAG+4}
    s_mov_b64 exec, -1
    v_mov_b32 v6, 0
    v_and_b32 v12, 31, v{L}
    v_lshrrev_b32 v24, 5, v{L}
    v_lshl_add_u32 v{V_PTR}, v24, 4, s{S_REGION}
""")
    for j in range(5):
        a(f"v_mfma_f32_32x32x16_bf16 v[{ACC+16*j}:{ACC+16*j+15}], v[4:7], v[4:7], 0")
    SMF = OPT.get("smf", 0)
    if SMF:
        a(f"""
    v_lshrrev_b32 v24, 3, v12
    v_mul_u32_u24 v24, 0x202, v24
    v_add_u32 v24, 0x0c0c0100, v24
    v_mov_b32 v27, 0x0c0c0c0c
    v_and_b32 v25, 4, v12
    v_cmp_eq_u32 vcc, 0, v25
    v_and_b32 v10, 3, v12
    v_mul_u32_u24 v10, 0x55, v10
    v_cndmask_b32 v8, v27, v24, vcc
    v_cndmask_b32 v9, v24, v27, vcc
""")
    else:
        a(f"""
    v_lshrrev_b32 v24, 3, v12
    v_lshlrev_b32 v24, 1, v24
    v_add_u32 v25, 1, v24
    v_lshl_or_b32 v24, v25, 8, v24
    v_and_b32 v25, 1, v12
    v_lshlrev_b32 v25, 4, v25
    v_mov_b32 v26, 0xffff
    v_lshlrev_b32 v26, v25, v26
    v_lshlrev_b32 v24, v25, v24
    v_mov_b32 v27, 0x0c0c0c0c
    v_bfi_b32 v24, v26, v24, v27
    v_bfe_u32 v25, v12, 1, 2
""")
        for j in range(4):
            a(f"v_cmp_eq_u32 vcc, {j}, v25")
            a("s_nop 1")
            a(f"v_cndmask_b32 v{8+j}, v27, v24, vcc")
    a(f"v_lshlrev_b32 v{STAGE+3}, 4, v12")
    if OPT["warm"]:
        a(f"""
""")
        if OPT.get("wint"):
            a(f"""
    s_and_b32 s24, s2, 31
    s_lshl_b32 s24, s24, 3
    s_lshr_b32 s26, s2, 5
    s_or_b32 s24, s24, s26
""")
        else:
            a(f"""s_and_b32 s24, s2, {31 if (OPT.get("k1warm") or OPT.get("rot")) else 255}""")
        a(f"""
    s_lshl_b32 s24, s24, 3
    s_add_u32 s24, s24, s{S_WAVE}
    s_mul_i32 s24, s24, 13
""")
        if OPT.get("rot"):
            a(f"s_lshr_b32 s26, s2, 5")
            a(f"s_mul_i32 s26, s26, {PH}")
            a(f"s_add_u32 s24, s24, s26")
        a(f"""
    v_lshrrev_b32 v156, 2, v{L}
    v_add_u32 v156, s24, v156
    v_and_b32 v157, 3, v{L}
    v_lshlrev_b32 v157, 7, v157
    v_cmp_gt_u32 vcc, 52, v{L}
    v_mov_b32 v24, {PADIDX:#x}
    s_mov_b32 m0, {L_DUMMY}
    v_cndmask_b32 v156, v24, v156, vcc
""")
    a(f"""
    v_and_b32 v12, 7, v{L}
    s_lshl_b32 s24, s{S_WAVE}, 6
    v_lshl_add_u32 v13, v12, 3, s24
    v_lshrrev_b32 v14, 3, v{L}
    v_lshlrev_b32 v14, 2, v14
    v_lshlrev_b32 v16, 5, v{L}
    v_mov_b32 v1, 2
""")
    if not BAL:
        a(f"""
    v_lshlrev_b32 v20, 4, v12
    v_add_u32 v20, s{S_WAVE}, v20
    v_add_u32 v21, 8, v20
    ds_write_b64 v13, v[20:21] offset:{L_MAP}
""")
    a("v_lshlrev_b32 v12, 2, v12")
    a("s_waitcnt vmcnt(8)")
    stamp(a, 2)

    def pre_atomic(i, u, k):
        if u < 2:
            a(f"s_waitcnt vmcnt({u * 4 + 3 - k})")

    def f_atomic(i, u, k):
        r = RB + 4 * i
        a(f"v_lshrrev_b32 v{r+3}, 16, v{r+2}")
        a(f"ds_add_rtn_u32 v{RK+i}, v{r+3}, v1 offset:{L_HIST}")
    masked(f_atomic, "at", pre_atomic)
    a(f"""
    s_mul_i32 s24, s{S_WAVE}, 5120
    s_add_u32 s26, s24, {L_W}
    s_mov_b32 m0, s26
    s_add_u32 s24, s24, {WIMG_OFF}
    v_lshl_add_u32 v158, v{L}, 4, s24
""")
    for i in range(4):
        a(f"buffer_load_dwordx4 v158, s[{S_REC}:{S_REC+3}], 0 offen offset:{1024*i} lds")
    a(f"""
    s_add_u32 s26, s26, 4096
    s_mov_b32 m0, s26
    v_add_u32 v158, 4096, v158
    buffer_load_dwordx4 v158, s[{S_REC}:{S_REC+3}], 0 offen lds
""")
    a(f"s_mov_b32 m0, {L_DUMMY}")
    a("s_nop 0")
    a("s_waitcnt lgkmcnt(0)")
    pstamp(a, 1)
    a("s_barrier")
    pstamp(a, 2)
    if OPT.get("l2pf"):
        a(f"s_lshr_b32 s24, s2, 5")
        a(f"s_mul_i32 s24, s24, {32*8*13}")
        a(f"v_subrev_u32 v158, s24, v156")
        a(f"v_cmp_gt_u32 vcc, 52, v{L}")
        a(f"v_mov_b32 v159, v157")
        a(f"s_nop 0")
        a(f"v_cndmask_b32 v158, v156, v158, vcc")
        if OPT["l2pf"] == 1:
            a(f"buffer_load_dword v[158:159], s[{S_X}:{S_X+3}], 0 idxen offen lds")
    if OPT["warm"]:
        a(f"buffer_load_dword v[156:157], s[{S_X}:{S_X+3}], 0 idxen offen lds")
    if OPT.get("l2pf") == 2:
        a(f"buffer_load_dword v[158:159], s[{S_X}:{S_X+3}], 0 idxen offen lds")
    if OPT["warm"]:
        for _ in range(OPT["warm"] - 1):
            a(f"v_add_u32 v156, 3328, v156")
            a(f"buffer_load_dword v[156:157], s[{S_X}:{S_X+3}], 0 idxen offen lds")

    def f_taddr(i, u, k):
        r = RB + 4 * i
        a(f"v_min_u32 v0, 2, v{RK+i}")
        a(f"v_add_lshl_u32 v{r+3}, v{r+3}, v0, 1")

    if BAL:
        a(f"""
    ds_read_b128 v[24:27], v16 offset:{L_HIST}
    ds_read_b128 v[28:31], v16 offset:{L_HIST+16}
    ds_read_b128 v[32:35], v16 offset:{L_HIST+2048}
    ds_read_b128 v[36:39], v16 offset:{L_HIST+2064}
    v_sub_u32 v40, {2*128 + 127}, v{L}
    v_sub_u32 v41, {2*128 + 63}, v{L}
    v_mov_b32 v42, 0
    v_mov_b32 v43, 0
    s_lshl_b32 s24, s{S_WAVE}, 3
    s_waitcnt lgkmcnt(2)
    v_add3_u32 v24, v24, v25, v26
    v_add3_u32 v28, v28, v29, v30
    v_add3_u32 v24, v24, v27, v31
    s_waitcnt lgkmcnt(0)
    v_add3_u32 v32, v32, v33, v34
    v_add3_u32 v36, v36, v37, v38
    v_add3_u32 v32, v32, v35, v39
    v_add_u32 v24, v24, v28
    v_add_u32 v32, v32, v36
    v_lshl_add_u32 v40, v24, 7, v40
    v_lshl_add_u32 v41, v32, 7, v41
    v_and_b32 v40, 0xfffffe7f, v40
    v_and_b32 v41, 0xfffffe7f, v41
""")
        sel = [(40, i) for i in range(8)] + [(41, None)] * 5
        for n in range(13):
            if n < 8:
                a(f"s_add_u32 s25, s24, {n}")
                a(f"v_readlane_b32 s{28+n}, v40, s25")
            else:
                a(f"s_add_u32 s25, s{S_WAVE}, {8*(n-8)}")
                a(f"v_readlane_b32 s{28+n}, v41, s25")
        for n in range(13):
            p0, p1 = ("vcc", "s[26:27]") if n % 2 == 0 else ("s[24:25]", "s[42:43]")
            a(f"v_cmp_gt_u32 {p0}, s{28+n}, v40")
            a(f"v_cmp_gt_u32 {p1}, s{28+n}, v41")
            if n:
                q0, q1 = ("vcc", "s[26:27]") if n % 2 == 1 else ("s[24:25]", "s[42:43]")
                a(f"v_addc_co_u32 v42, {q0}, 0, v42, {q0}")
                a(f"v_addc_co_u32 v43, {q1}, 0, v43, {q1}")
        a(f"""
    v_lshlrev_b32 v44, 2, v{L}
    v_mov_b32 v20, 127
    v_addc_co_u32 v42, vcc, 0, v42, vcc
    v_addc_co_u32 v43, s[26:27], 0, v43, s[26:27]
    v_mov_b32 v21, 127
    ds_add_u32 v44, v42 offset:{L_RANK}
    ds_add_u32 v44, v43 offset:{L_RANK+256}
    ds_write_b64 v13, v[20:21] offset:{L_MAP}
""")
        if OPT.get("carry", 1):
            masked(f_taddr, "ta")
        a(f"""
    s_waitcnt lgkmcnt(0)
    s_barrier
    ds_read_b32 v42, v44 offset:{L_RANK}
    ds_read_b32 v43, v44 offset:{L_RANK+256}
    v_add_u32 v41, 64, v{L}
    s_lshl_b32 s24, s{S_WAVE}, 6
    s_waitcnt lgkmcnt(0)
    v_bfe_i32 v45, v42, 3, 1
    v_bfe_i32 v46, v43, 3, 1
    v_xor_b32 v45, v45, v42
    v_xor_b32 v46, v46, v43
    v_and_b32 v45, 7, v45
    v_and_b32 v46, 7, v46
    v_cmp_eq_u32 vcc, s{S_WAVE}, v45
    v_cmp_eq_u32 s[26:27], s{S_WAVE}, v46
    v_lshrrev_b32 v42, 3, v42
    v_lshrrev_b32 v43, 3, v43
    v_lshl_add_u32 v42, v42, 2, s24
    v_lshl_add_u32 v43, v43, 2, s24
    s_mov_b64 exec, vcc
    ds_write_b32 v42, v{L} offset:{L_MAP}
    s_mov_b64 exec, s[26:27]
    ds_write_b32 v43, v41 offset:{L_MAP}
    s_mov_b64 exec, -1
    ds_read_b64 v[20:21], v13 offset:{L_MAP}
    s_waitcnt lgkmcnt(0)
""")
    def prefix_carry():
        a(f"""
    v_lshlrev_b32 v20, 5, v20
    v_lshlrev_b32 v21, 5, v21
    ds_read_b128 v[24:27], v20 offset:{L_HIST}
    ds_read_b128 v[28:31], v20 offset:{L_HIST+16}
    ds_read_b128 v[32:35], v21 offset:{L_HIST}
    ds_read_b128 v[36:39], v21 offset:{L_HIST+16}
    v_add_u32 v20, v14, v20
    v_add_u32 v21, v14, v21
    ds_read_b32 v40, v20 offset:{L_HIST}
    ds_read_b32 v41, v21 offset:{L_HIST}
""")
        if not BAL:
            masked(f_taddr, "ta")
        a(f"""
    v_mov_b32 v42, 0
    v_mov_b32 v43, 0
    v_mov_b32 v44, v12
    v_mov_b32 v45, v12
    v_lshlrev_b32 v20, 1, v20
    v_lshlrev_b32 v21, 1, v21
    s_waitcnt lgkmcnt(0)
""")
        for q in range(1, 8):
            lo = (0xFFFFFFFFFFFFFFFF << (8 * q)) & 0xFFFFFFFF
            hi = ((0xFFFFFFFFFFFFFFFF << (8 * q)) >> 32) & 0xFFFFFFFF
            if q <= 4:
                a(f"s_mov_b32 exec_lo, {lo:#x}")
            else:
                a(f"s_mov_b32 exec_hi, {hi:#x}")
            a(f"v_cmp_ne_u32 vcc, 0, v{24+q-1}")
            a(f"v_cmp_ne_u32 s[26:27], 0, v{32+q-1}")
            a(f"v_add_u32 v42, v42, v{24+q-1}")
            a(f"v_add_u32 v43, v43, v{32+q-1}")
            a(f"v_cndmask_b32 v44, v44, v12, vcc")
            a(f"v_cndmask_b32 v45, v45, v12, s[26:27]")
            a(f"v_add_u32 v12, 32, v12")
        a(f"""
    s_mov_b64 exec, -1
    v_add_u32 v46, 2, v42
    v_add_u32 v47, 2, v43
    v_add_u32 v0, v46, v40
    v_add_u32 v1, v47, v41
    v_lshrrev_b32 v46, 2, v46
    v_lshrrev_b32 v47, 2, v47
    v_lshrrev_b32 v0, 2, v0
    v_lshrrev_b32 v1, 2, v1
    v_sub_u32 v0, v0, v46
    v_sub_u32 v1, v1, v47
    v_add_u32 v24, v0, v1
    v_mov_b32 v25, v24
""")
        wave_scan(a, 25)
        a(f"""
    v_readlane_b32 s24, v25, 63
    v_sub_u32 v24, v25, v24
    v_lshl_add_u32 v27, v24, 5, s{S_REGION}
    v_lshl_add_u32 v29, v0, 5, v27
    v_and_b32 v42, 2, v42
    v_and_b32 v43, 2, v43
    v_lshlrev_b32 v46, 3, v42
    v_lshlrev_b32 v47, 3, v43
    v_sub_u32 v27, v27, v46
    v_sub_u32 v29, v29, v47
    v_lshl_add_u32 v46, v40, 3, v27
    v_lshl_add_u32 v47, v41, 3, v29
    ds_bpermute_b32 v26, v44, v46
    ds_bpermute_b32 v28, v45, v47
    v_cmp_eq_u32 vcc, 0, v42
    v_cmp_eq_u32 s[26:27], 0, v43
    s_cmp_le_u32 s24, {CAPP}
    s_cbranch_scc1 M_noovf
    v_mov_b32 v30, 1
    ds_write_b32 v4, v30 offset:{L_FLAG}
M_noovf:
    s_waitcnt lgkmcnt(0)
    v_cndmask_b32 v26, v26, v27, vcc
    v_cndmask_b32 v28, v28, v29, s[26:27]
    ds_write_b64 v20, v[26:27] offset:{L_TAB}
    ds_write_b64 v21, v[28:29] offset:{L_TAB}
    s_waitcnt lgkmcnt(0)
""")

    CARRY = OPT.get("carry", 1)
    if CARRY:
        prefix_carry()
    else:
        a(f"""
    v_lshl_add_u32 v20, v20, 5, v14
    v_lshl_add_u32 v21, v21, 5, v14
    ds_read_b32 v0, v20 offset:{L_HIST}
    ds_read_b32 v1, v21 offset:{L_HIST}
    s_waitcnt lgkmcnt(0)
    v_add_u32 v0, 2, v0
    v_add_u32 v1, 2, v1
    v_lshrrev_b32 v0, 2, v0
    v_lshrrev_b32 v1, 2, v1
    v_add_u32 v24, v0, v1
    v_mov_b32 v25, v24
""")
        wave_scan(a, 25)
        a(f"""
    v_readlane_b32 s24, v25, 63
    v_sub_u32 v24, v25, v24
    v_lshl_add_u32 v27, v24, 5, s{S_REGION}
    v_lshl_add_u32 v29, v0, 5, v27
    ds_write_b32 v20, v27 offset:{L_HIST}
    ds_write_b32 v21, v29 offset:{L_HIST}
    s_cmp_le_u32 s24, {CAPP}
    s_cbranch_scc1 M_noovf
    v_mov_b32 v30, 1
    ds_write_b32 v4, v30 offset:{L_FLAG}
M_noovf:
    s_waitcnt lgkmcnt(0)
""")
    pstamp(a, 4)
    a(f"""
    s_barrier
    ds_read_b64 v[20:21], v4 offset:{L_FLAG}
""")
    masked(lambda i, u, k: a(f"ds_read_b32 v{RB+4*i+3}, v{RB+4*i+3} offset:{L_TAB if CARRY else L_HIST}"), "lk")
    for r in range(D):
        a(f"v_mov_b32 v{RING+4*r+1}, v{STAGE+3}")
    for st in range(1, LS):
        a(f"v_mov_b32 v{STAGE+4*st+3}, v{STAGE+3}")
    a(f"""
    s_waitcnt lgkmcnt(0)
    v_readfirstlane_b32 s24, v20
    v_readfirstlane_b32 s{S_MORE}, v21
    s_cmp_eq_u32 s24, 0
    s_cbranch_scc1 M_go
    s_lshr_b32 s{S_TAKE}, s{S_TAKE}, 1
    s_max_u32 s{S_TAKE}, s{S_TAKE}, 1
    s_waitcnt vmcnt(0)
    s_barrier
    s_branch M_round
M_go:
""")
    pstamp(a, 5)

    def f_scatter(i, u, k):
        r = RB + 4 * i
        a(f"v_lshl_add_u32 v{r+3}, v{RK+i}, 3, v{r+3}")
        a(f"ds_write_b16 v{r+3}, v{r+2} offset:8")
        a(f"ds_write_b64 v{r+3}, v[{r}:{r+1}] offset:{32*(D-1)}")
    masked(f_scatter, "sc")
    a(f"s_waitcnt vmcnt({OPT['warm'] + (1 if OPT.get('l2pf') else 0)}) lgkmcnt(0)")
    a("s_barrier")
    stamp(a, 3)
    cstamp(a, 1)
    for r in range(D):
        a(f"ds_read_b32 v{RING+4*r}, v{V_PTR} offset:{32*r+8}")
    a(f"ds_read_b64 v[{RING+2}:{RING+3}], v{V_PTR} offset:{32*(D-1)}")
    for st in range(LS):
        a(f"ds_read_b96 v[{STAGE+4*st}:{STAGE+4*st+2}], v{V_PTR} offset:{32*(D+st)}")
    for j in range(5, NSLOT):
        a(f"v_mfma_f32_32x32x16_bf16 v[{ACC+16*j}:{ACC+16*j+15}], v[4:7], v[4:7], 0")
    a(f"s_waitcnt lgkmcnt({LS})")
    for j in range(2 if SMF else 4):
        a(f"v_perm_b32 v{4+j}, v{RING+3}, v{RING+2}, v{8+j}")
    for r in range(D):
        a(f"buffer_load_dwordx4 v[{RING+4*r}:{RING+4*r+3}], v[{RING+4*r}:{RING+4*r+1}], s[{S_X}:{S_X+3}], 0 idxen offen")
    a(f"s_mov_b32 s{S_PH}, 0")
    xf = ["", " nt", " sc1", " sc0"][OPT.get("xf", 0)]
    PB = 2 if OPT.get("eprio") else 0
    if OPT.get("eprio"):
        a("s_setprio 2")
    if OPT.get("offen") == 2:
        a(f"v_mov_b32 v{L}, v{STAGE+3}")
    if OPT.get("offen"):
        a(f"s_mov_b32 s{S_MASK}, s{S_X}")
        a(f"s_and_b32 s{S_MASK+1}, s{S_X+1}, 0xffff")
        a(f"s_mov_b32 s{S_MASK+2}, {N*512}")
        a(f"s_mov_b32 s{S_MASK+3}, 0x20000")
    if OPT.get("prio") == 2:
        a(f"s_cmp_lt_u32 s{S_WAVE}, 4")
        a("s_cbranch_scc1 M_PE0")
        a("s_setprio 1")
    a("s_branch M_epi" if OPT.get("nomain") else "s_branch M_PE0")
    assert D % LS == 0
    for j in range(NSLOT):
        ac = ACC + 16 * j
        for r in range(D):
            nxt = f"M_B{j+1}_{r}" if j + 1 < NSLOT else f"M_PE{r}"
            rg = RING + 4 * r
            st = STAGE + 4 * (r % LS)
            a(f"""
M_B{j}_{r}:
    s_sub_u32 s{S_CNT+j}, s{S_CNT+j}, 1
    s_cbranch_scc1 {nxt}
    s_waitcnt vmcnt({D-1}) lgkmcnt({LS-1})
""")
            if OPT.get("offen"):
                a(f"v_lshl_add_u32 v{st+2}, v{st+2}, 9, v{L if OPT['offen'] == 2 else st+3}")
            if SMF:
                a(f"v_smfmac_f32_32x32x16_bf16 v[{ac}:{ac+15}], v[4:5], v[{rg}:{rg+3}], v10")
            else:
                a(f"v_mfma_f32_32x32x16_bf16 v[{ac}:{ac+15}], v[4:7], v[{rg}:{rg+3}], v[{ac}:{ac+15}]")
            if OPT.get("offen"):
                a(f"buffer_load_dwordx4 v[{rg}:{rg+3}], v{st+2}, s[{S_MASK}:{S_MASK+3}], 0 offen")
            else:
                a(f"buffer_load_dwordx4 v[{rg}:{rg+3}], v[{st+2}:{st+3}], s[{S_X}:{S_X+3}], 0 idxen offen{xf}")
            a(f"""
    v_perm_b32 v4, v{st+1}, v{st}, v8
    v_perm_b32 v5, v{st+1}, v{st}, v9
""")
            if not SMF:
                a(f"v_perm_b32 v6, v{st+1}, v{st}, v10")
                a(f"v_perm_b32 v7, v{st+1}, v{st}, v11")
            if OPT.get("offen") == 2:
                a(f"ds_read_b128 v[{st}:{st+3}], v{V_PTR} offset:{32*(r+D+LS)}")
            else:
                a(f"ds_read_b96 v[{st}:{st+2}], v{V_PTR} offset:{32*(r+D+LS)}")
            if r == D - 1:
                a(f"v_add_u32 v{V_PTR}, {32*D}, v{V_PTR}")
                a(f"s_branch M_B{j}_0")
    for r in range(D):
        a(f"""
M_PE{r}:
    s_cmp_ge_u32 s{S_PH}, {8*OPT.get("nph", 8)}
    s_cbranch_scc1 M_epi
""")
        for j in range(NSLOT):
            if j % 2 == 0:
                a(f"s_add_u32 s24, s{S_PH}, {j//2}")
            a(f"v_readlane_b32 s{S_CNT+j}, v{j % 2}, s24")
        a(f"s_add_u32 s{S_PH}, s{S_PH}, 8")
        if OPT.get("phbar"):
            a("s_barrier")
        if OPT.get("prio") == 1:
            a(f"s_lshr_b32 s24, s{S_PH}, 1")
            a(f"s_xor_b32 s24, s24, s{S_WAVE}")
            a(f"s_bitcmp1_b32 s24, 2")
            a(f"s_setprio {PB}")
            a(f"s_cbranch_scc0 M_B0_{r}")
            a(f"s_setprio {PB+1}")
        a(f"s_branch M_B0_{r}")
    a("M_epi:")
    if OPT.get("noepi") == 1:
        a("s_endpgm")
    if OPT.get("eprio"):
        a("s_setprio 0")
    if STAMP:
        a("s_waitcnt vmcnt(0) lgkmcnt(0)")
    stamp(a, 4)
    cstamp(a, 2)
    if OPT.get("noepi") == 2:
        a("s_branch M_end")
    if OPT.get("ebar"):
        a("s_barrier")
    if OPT.get("offen") == 2:
        a(f"v_mbcnt_lo_u32_b32 v{L}, -1, 0")
        a(f"v_mbcnt_hi_u32_b32 v{L}, -1, v{L}")
    a(f"""
    ; v0 = staging write addr, v1 = staging read addr, v2 = W image addr, v4 = local node, v5 = q
    v_lshl_add_u32 v0, v{L}, 3, s{S_REGION}
    v_and_b32 v4, 15, v{L}
    v_lshrrev_b32 v5, 4, v{L}
    v_mul_u32_u24 v1, {STG}, v4
    v_lshl_add_u32 v1, v5, 4, v1
    v_add_u32 v1, s{S_REGION}, v1
    v_lshlrev_b32 v2, 4, v{L}
    v_add_u32 v2, {L_W}, v2
    s_lshl_b32 s24, s{S_WAVE}, 6
    v_lshl_add_u32 v4, v4, 2, s24
    ds_read_b32 v4, v4 offset:{L_MAP}
    s_mov_b32 s26, 0x80008000
""")

    of = ["", " nt", " sc1", " sc0 sc1"][OPT.get("ost", 1)]
    Q = [[ACC + 16 * j + 4 * kc for j in range(NSLOT)] for kc in range(4)]
    BFS = [[8, 12, 16, 20, 24, 28, 32, 36], Q[0][0:8], Q[2][3:11], Q[3][0:8]]
    BF = {(kc, c, ks): BFS[kc][c * 2 + ks] for kc in range(4) for c in range(4) for ks in range(2)}
    outq = Q[1][0:13] + Q[2][0:3]
    order = [(0, 0), (0, 1), (0, 2), (0, 3)] + [(o, t) for t in range(4) for o in (1, 2, 3)]
    OUT = {ot: outq[i] for i, ot in enumerate(order)}
    AF = Q[0][8:13] + [40, 44]
    GATE = Q[3][8:12]
    NA = len(AF)
    S = Sched(a)

    def f_cvt(kc):
        ops = []
        for j in range(NSLOT):
            q = Q[kc][j]
            ops.append(("valu", f"v_cvt_pk_bf16_f32 v{q}, v{q}, v{q+1}", [q, q + 1], [q]))
            ops.append(("valu", f"v_cvt_pk_bf16_f32 v{q+1}, v{q+2}, v{q+3}", [q + 2, q + 3], [q + 1]))
        return ops

    def f_w(kc):
        return [("dsw", f"ds_write_b64 v0, v[{Q[kc][j]}:{Q[kc][j]+1}] offset:{STG*j}", [Q[kc][j], Q[kc][j] + 1], [])
                for j in range(NSLOT)]

    def f_rb(kc):
        return [("dsr", f"ds_read_b128 v[{BF[kc,c,ks]}:{BF[kc,c,ks]+3}], v1 offset:{c*64+ks*256}", [], R(BF[kc, c, ks]))
                for c in range(4) for ks in range(2)]

    use = {m: [] for m in range(5)}
    negs = []
    for kc in range(4):
        for c in range(4):
            if kc == 0:
                m, o = (0, 0) if c == 0 else (3, c)
            else:
                jj = kc - 1
                if c == 0:
                    m, o = 2, kc
                elif c - 1 == jj:
                    m, o = 1, 0
                else:
                    m, o = 4, 1 + (3 - jj - (c - 1))
                    if c - 1 != (jj + 1) % 3:
                        negs.append((kc, c))
            use[m].append((kc, c, o))
    frs = [(0, ks, t) for t in range(4) for ks in range(2)] + [(3, ks, t) for t in range(4) for ks in range(2)] \
        + [(1, ks, t) for t in range(4) for ks in range(2)] \
        + [(m, ks, t) for t in range(4) for m in (2, 4) for ks in range(2)]

    def f_af(n):
        m, ks, t = frs[n]
        q = AF[n % NA]
        return ("dsr", f"ds_read_b128 v[{q}:{q+3}], v2 offset:{((m*2+ks)*4+t)*1024}", [], R(q))

    def emit(o):
        if OPT.get("nostore") and o[0] == "store":
            return
        if OPT.get("nodsw") and o[0] == "dsw":
            return
        if OPT.get("nodsr") and o[0] == "dsr":
            return
        if OPT.get("novalu") and o[0] in ("valu", "trans") and "v4" not in o[1]:
            return
        S.op(o[0], o[1], o[2], o[3])

    for o in f_cvt(0):
        emit(o)
    a("s_waitcnt vmcnt(0) lgkmcnt(0)")
    for o in f_w(0) + f_rb(0):
        emit(o)
    for n in range(NA):
        emit(f_af(n))
    for o in f_cvt(1) + f_w(1):
        emit(o)
    neg_ops = [("valu", f"v_xor_b32 v{BF[kc,c,kk]+i}, s26, v{BF[kc,c,kk]+i}", [BF[kc, c, kk] + i], [BF[kc, c, kk] + i])
               for (kc, c) in negs for kk in range(2) for i in range(4)]
    addr_ops = [
        ("valu", f"v_cmp_gt_u32 vcc, {NPB}, v4", [4], []),
        ("other", f"s_mul_i32 s24, s2, {NPB}", [], []),
        ("valu", "v_add_u32 v4, s24, v4", [4], [4]),
        ("valu", "v_lshlrev_b32 v4, 9, v4", [4], [4]),
        ("valu", "v_lshl_add_u32 v4, v5, 4, v4", [4, 5], [4]),
        ("valu", f"v_mov_b32 v5, {OOB:#x}", [], [5]),
        ("valu", "v_cndmask_b32 v4, v5, v4, vcc", [4, 5], [4]),
        ("other", "s_mov_b32 s24, 0xbfb8aa3b", [], []),
    ]
    fill = f_rb(1) + f_cvt(2) + f_w(2) + f_rb(2) + f_cvt(3) + f_w(3) + f_rb(3) + addr_ops + neg_ops
    gate_ops = []
    for t in range(4):
        for i in range(4):
            gate_ops.append(("valu", f"v_mul_f32 v{GATE[t]+i}, s24, v{OUT[0,t]+i}", [OUT[0, t] + i], [GATE[t] + i]))
    G = [GATE[t] + i for t in range(4) for i in range(4)]
    gate_ops += [("trans", f"v_exp_f32 v{g}, v{g}", [g], [g]) for g in G]
    gate_ops += [("valu", f"v_add_f32 v{g}, 1.0, v{g}", [g], [g]) for g in G]
    gate_ops += [("trans", f"v_rcp_f32 v{g}, v{g}", [g], [g]) for g in G]
    PK = [8, 12, 16, 20, 24, 28, 32, 36]

    def f_store(o, k):
        ops = []
        p = PK[o * 2 + k]
        d0, d1 = OUT[o, 2 * k], OUT[o, 2 * k + 1]
        if o:
            for t in (2 * k, 2 * k + 1):
                d = OUT[o, t]
                g = GATE[t]
                ops.append(("valu", f"v_pk_mul_f32 v[{d}:{d+1}], v[{d}:{d+1}], v[{g}:{g+1}]", [d, d + 1, g, g + 1], [d, d + 1]))
                ops.append(("valu", f"v_pk_mul_f32 v[{d+2}:{d+3}], v[{d+2}:{d+3}], v[{g+2}:{g+3}]", [d + 2, d + 3, g + 2, g + 3], [d + 2, d + 3]))
        for i, dd in enumerate((d0, d0 + 2, d1, d1 + 2)):
            ops.append(("valu", f"v_cvt_pk_bf16_f32 v{p+i}, v{dd}, v{dd+1}", [dd, dd + 1], [p + i]))
        ops.append(("store", f"buffer_store_dwordx4 v[{p}:{p+3}], v4, s[{S_OUT}:{S_OUT+3}], 0 offen offset:{o*128+k*64}{of}",
                    R(p) + [4], []))
        return ops

    def gemm(S, fill, late):
        fill = list(fill)
        touched = set()
        for n, (m, ks, t) in enumerate(frs):
            if n in (14, 16, 24):
                lim = {14: len(f_rb(1) + f_cvt(2) + f_w(2)), 16: 3 * 8 + 2 * 39, 24: 10 ** 6}[n]
                while fill and done[0] < lim:
                    emit(fill.pop(0))
                    done[0] += 1
            fill += late.get(n, [])
            q = AF[n % NA]
            for (kc, c, o) in use[m]:
                b = BF[kc, c, ks]
                d = OUT[o, t]
                first = (o, t) not in touched
                touched.add((o, t))
                cin = "0" if first else f"v[{d}:{d+3}]"
                if not OPT.get("noem"):
                  S.op("mfma", f"v_mfma_f32_16x16x32_bf16 v[{d}:{d+3}], v[{q}:{q+3}], v[{b}:{b+3}], {cin}",
                     R(q) + R(b), R(d), [] if first else R(d))
                for _ in range(FPM):
                    if fill:
                        emit(fill.pop(0))
                        done[0] += 1
            if n + NA < len(frs):
                emit(f_af(n + NA))
        return fill

    FPM = OPT.get("fpm", 3)
    done = [0]
    a(f"s_or_b32 s27, s{S_C0}, s{S_MORE}")
    a("s_cmp_eq_u32 s27, 0")
    a("s_cbranch_scc0 M_multi")
    import copy
    S2 = copy.deepcopy(S)
    S2.a = a
    if OPT.get("adj"):
        late = {25: gate_ops + f_store(0, 0)[:-1] + f_store(0, 1) + f_store(0, 0)[-1:],
                33: f_store(1, 0)[:-1] + f_store(2, 0)[:-1] + f_store(3, 0)[:-1]}
        rest = gemm(S, fill, late)
        for o in rest + f_store(1, 1) + f_store(1, 0)[-1:] + f_store(2, 1) + f_store(2, 0)[-1:] + f_store(3, 1) + f_store(3, 0)[-1:]:
            emit(o)
    else:
        late = {25: gate_ops + f_store(0, 0) + f_store(0, 1),
                33: f_store(1, 0) + f_store(2, 0) + f_store(3, 0)}
        rest = gemm(S, fill, late)
        for o in rest + f_store(1, 1) + f_store(2, 1) + f_store(3, 1):
            emit(o)
    a("s_branch M_end")
    a("M_multi:")
    S = S2
    done = [0]
    rest = gemm(S, fill, {})
    for o in rest:
        emit(o)
    a(f"""
    s_nop 7
    v_lshlrev_b32 v0, 1, v4
    v_cndmask_b32 v0, v5, v0, vcc
    s_cmp_eq_u32 s{S_C0}, 0
    s_cbranch_scc1 M_noload
""")

    def poff(o, t):
        return o * 256 + (t >> 1) * 128 + (t & 1) * 16
    for o in range(4):
        for t in range(4):
            a(f"buffer_load_dwordx4 v[{8+4*t}:{11+4*t}], v0, s[{S_PART}:{S_PART+3}], 0 offen offset:{poff(o,t)} sc1")
        a("s_waitcnt vmcnt(0)")
        for t in range(4):
            for i in range(4):
                a(f"v_add_f32 v{OUT[o,t]+i}, v{OUT[o,t]+i}, v{8+4*t+i}")
    a(f"""
M_noload:
    s_cmp_eq_u32 s{S_MORE}, 0
    s_cbranch_scc1 M_final
""")
    for o in range(4):
        for t in range(4):
            q = OUT[o, t]
            a(f"buffer_store_dwordx4 v[{q}:{q+3}], v0, s[{S_PART}:{S_PART+3}], 0 offen offset:{poff(o,t)} sc1")
    a(f"""
    s_add_u32 s{S_C0}, s{S_C0}, s{S_TAKE}
    s_waitcnt vmcnt(0) lgkmcnt(0)
    s_barrier
    s_branch M_round
M_final:
""")
    S = Sched(a)
    for o in gate_ops:
        emit(o)
    for o in range(4):
        for k in range(2):
            for op in f_store(o, k):
                emit(op)
    a("M_end:")
    if OPT.get("es"):
        stamp(a, 3)
    if STAMP:
        a("s_waitcnt vmcnt(0)")
    stamp(a, 5)
    stamp_flush(a, 16, 1, 0, S_WAVE)
    a("""
M_done:
    s_endpgm
""")


def descriptor(name, vgpr, sgpr):
    acc = (vgpr + 3) // 4 * 4
    return f"""
.p2align 6
.amdhsa_kernel {name}
  .amdhsa_next_free_vgpr {vgpr}
  .amdhsa_next_free_sgpr {sgpr}
  .amdhsa_accum_offset {acc}
  .amdhsa_group_segment_fixed_size 0
  .amdhsa_kernarg_size 96
  .amdhsa_user_sgpr_count 2
  .amdhsa_user_sgpr_kernarg_segment_ptr 1
  .amdhsa_system_sgpr_workgroup_id_x 1
  .amdhsa_float_denorm_mode_32 3
.end_amdhsa_kernel
"""


def main():
    global STAMP
    for arg in list(sys.argv):
        if "=" in arg:
            k, v = arg.split("=")
            OPT[k] = int(v)
            sys.argv.remove(arg)
    if "--stamp" in sys.argv:
        STAMP = True
        sys.argv.remove("--stamp")
    ref = open(f"cdna_kernels/{NAME}.s.ref").read().split("\n")
    head = [l for l in ref if l.startswith(";") and "@launch" not in l and "Override launch" not in l
            and "grid=ceil" not in l]
    a = Asm()
    gen_part(a)
    gen_main(a)
    out = "\n".join(head) + "\n"
    out += f"; @launch kernel=part_kernel grid=({NC+6},1,1) block=(832,1,1) lds={K1_LDS}\n"
    out += f"; @launch kernel=main_kernel grid=({NB},1,1) block=(512,1,1) lds={L_TOTAL}\n"
    out += '.amdgcn_target "amdgcn-amd-amdhsa--gfx950"\n.text\n'
    out += a.text()
    out += '.section .rodata,"a"\n'
    out += descriptor("part_kernel", 88, 102 if STAMP else 32)
    out += descriptor("main_kernel", 256, 102)
    path = sys.argv[1] if len(sys.argv) > 1 else f"cdna_kernels/{NAME}.s"
    open(path, "w").write(out)
    print("wrote", path, len(out), "bytes; LDS", L_TOTAL, "CAPP", CAPP)


if __name__ == "__main__":
    main()
```

```python
import sys

NAME = "standalone__tensor_product_equiv_equiformer__graph"
N = 25000
E = 800000
NPB = 98
NB = 256
NC = 250
CH = 3200
P = 8
PH = (N + P - 1) // P
NSLOT = 13
import os
D = int(os.environ.get("DD", "6"))
LS = int(os.environ.get("LSS", "3"))
RECB = 12

OPT = {"st": 1, "warm": 1, "stage": 1, "ld": 0, "bal": 0, "prio": 0, "cpf": 0, "rot": 1, "dcm": 1, "dsc": 1, "smf": 1, "eprio": 1}

REC_OFF = 0
REC_BYTES = NC * CH * RECB
COEF_OFF = 0x400000
DESC_OFF = 0x1000000
WIMG_OFF = 0x1100000
WIMG_BYTES = 5 * 8192
PART_OFF = 0x2000000
PART_BYTES = NB * NPB * 1024

L_FLAG = 0
L_DUMMY = 256
L_HIST = 512
L_TAB = L_HIST + 4096
L_RANK = L_TAB + 8192
L_MAP = L_RANK + 512
L_W = L_MAP + 512
L_REG = L_W + WIMG_BYTES
REGB = 10240
L_TOTAL = L_REG + 8 * REGB
CAPP = REGB // 32 - (D + LS + 2)
STG = 528
OOB = 0x7FFFF000
PADIDX = 0x7FFF

STAMP = False
STAMP_OFF = 0x8000000


def magic(div, maxv):
    for k in range(31, 15, -1):
        m = -(-(1 << k) // div)
        if m < (1 << 24) and m * maxv < (1 << 32):
            e = m * div - (1 << k)
            if e * maxv < (1 << k):
                assert all((v * m) >> k == v // div for v in range(maxv + 1))
                return m, k
    raise ValueError


class Asm:
    def __init__(self):
        self.lines = []

    def __call__(self, s):
        for ln in s.strip("\n").split("\n"):
            ln = ln.strip()
            if ln:
                self.lines.append(("" if ln.endswith(":") else "    ") + ln)

    def text(self):
        return "\n".join(self.lines) + "\n"


def srd(a, d, base, nrec, add=0, stride=0):
    if add:
        a(f"s_add_u32 s{d}, s{base}, {add}")
        a(f"s_addc_u32 s{d+1}, s{base+1}, 0")
        a(f"s_and_b32 s{d+1}, s{d+1}, 0xffff")
    else:
        a(f"s_mov_b32 s{d}, s{base}")
        a(f"s_and_b32 s{d+1}, s{base+1}, 0xffff")
    if stride:
        a(f"s_or_b32 s{d+1}, s{d+1}, {stride << 16:#x}")
    a(f"s_mov_b32 s{d+2}, {nrec}")
    a(f"s_mov_b32 s{d+3}, 0x20000")


def pstamp(a, k):
    if STAMP and OPT.get("ps"):
        a("s_memrealtime s[42:43]")
        a("s_waitcnt lgkmcnt(0)")
        a(f"s_mov_b32 s{96+k}, s42")


MAINK = [False]


def stamp(a, k):
    if OPT.get("ps") and MAINK[0] and k not in (0, 3):
        return
    if STAMP:
        a("s_memrealtime s[42:43]")
        a("s_waitcnt lgkmcnt(0)")
        a(f"s_mov_b32 s{96+k}, s42")


def cstamp(a, k):
    if STAMP and OPT.get("clk"):
        a("s_memtime s[42:43]")
        a("s_waitcnt lgkmcnt(0)")
        a(f"s_mov_b32 s{96+k}, s42")


def stamp_flush(a, wsreg, kern, vt, swave):
    if STAMP:
        a("s_mov_b64 exec, 1")
        a(f"s_lshl_b32 s42, s2, 4")
        a(f"s_add_u32 s42, s42, s{swave}")
        a(f"s_lshl_b32 s42, s42, 5")
        a(f"s_add_u32 s42, s42, {STAMP_OFF + kern * 0x100000}")
        a(f"v_mov_b32 v{vt}, s42")
        for k in range(6):
            a(f"v_mov_b32 v{vt+1}, s{96+k}")
            a(f"global_store_dword v{vt}, v{vt+1}, s[{wsreg}:{wsreg+1}] offset:{4*k}")
            a("s_nop 1")


def wave_scan(a, v):
    for sh in (1, 2, 4, 8):
        a("s_nop 1")
        a(f"v_add_u32_dpp v{v}, v{v}, v{v} row_shr:{sh} row_mask:0xf bank_mask:0xf bound_ctrl:0")
    a("s_nop 1")
    a(f"v_add_u32_dpp v{v}, v{v}, v{v} row_bcast:15 row_mask:0xa bank_mask:0xf")
    a("s_nop 1")
    a(f"v_add_u32_dpp v{v}, v{v}, v{v} row_bcast:31 row_mask:0xc bank_mask:0xf")
    a("s_nop 1")


class Sched:
    def __init__(self, a):
        self.a = a
        self.lds = []
        self.slot = 0
        self.vw = {}
        self.tw = {}
        self.mw = {}
        self.mc = {}
        self.sw = {}

    def _emit(self, t):
        self.a(t)
        self.slot += 1

    def _nop(self, need):
        while need > 0:
            k = min(need, 8)
            self.a(f"s_nop {k-1}")
            self.slot += k
            need -= k

    def op(self, kind, text, reads=(), writes=(), srcc=()):
        reads, writes, srcc = set(reads), set(writes), set(srcc)
        touched = reads | writes | srcc
        last = -1
        for i, d in enumerate(self.lds):
            if d & touched:
                last = i
        if last >= 0:
            n = len(self.lds) - 1 - last
            self._emit(f"s_waitcnt lgkmcnt({min(n, 15)})")
            self.lds = self.lds[len(self.lds) - min(n, 15):] if n else []
        need = 0
        if kind == "mfma":
            for r in reads | srcc:
                if r in self.vw:
                    need = max(need, 2 - (self.slot - self.vw[r] - 1))
            for r in reads:
                if r in self.mw:
                    need = max(need, 8 - (self.slot - self.mw[r] - 1))
        else:
            for r in reads | writes:
                if r in self.mw:
                    need = max(need, 8 - (self.slot - self.mw[r] - 1))
            for r in writes:
                if r in self.mc:
                    need = max(need, 3 - (self.slot - self.mc[r] - 1))
                if r in self.sw:
                    need = max(need, 2 - (self.slot - self.sw[r] - 1))
            if kind in ("valu", "store", "dsw"):
                for r in reads:
                    if r in self.tw:
                        need = max(need, 1 - (self.slot - self.tw[r] - 1))
        self._nop(need)
        me = self.slot
        self._emit(text)
        if kind in ("valu", "trans"):
            for r in writes:
                self.vw[r] = me
                if kind == "trans":
                    self.tw[r] = me
        elif kind == "mfma":
            for r in writes:
                self.mw[r] = me
            for r in srcc:
                self.mc[r] = me
        elif kind == "dsr":
            self.lds.append(writes)
        elif kind == "dsw":
            self.lds.append(set())
        elif kind == "store":
            for r in reads:
                self.sw[r] = me


def R(b, n=4):
    return list(range(b, b + n))


def stflags():
    return ["", " sc1", " sc0 sc1", " nt"][OPT["st"]]


K1_STG = 1024
K1_LDS = K1_STG + 832 * 48


def gen_part(a):
    mB, kB = magic(NPB, 32767)
    G = OPT.get("stag", 1)
    NPH = OPT.get("nph", 8)
    PHS = -(-N * G // (NPH * G - (G - 1)))
    PHS = -(-PHS // G) * G
    assert (N - 1 + (G - 1) * (PHS // G)) // PHS <= 7
    mP, kP = magic(PHS, 32767)
    sf = stflags()
    df = ["", " sc1"][OPT.get("dsc", 0)]
    lf = ["", " nt", " sc1", " sc0 sc1 nt"][OPT.get("ld", 0)]
    a(f"""
.p2align 8
.globl part_kernel
.type part_kernel,@function
part_kernel:
    s_cmp_ge_u32 s2, {NC + 6}
    s_cbranch_scc1 P_done
    s_load_dwordx4 s[4:7], s[0:1], 8
    s_load_dwordx4 s[8:11], s[0:1], 24
    s_load_dwordx4 s[12:15], s[0:1], 40
    s_load_dwordx2 s[16:17], s[0:1], 56
    s_load_dwordx2 s[18:19], s[0:1], 88
    s_load_dwordx2 s[28:29], s[0:1], 0
    s_load_dwordx2 s[30:31], s[0:1], 72
    s_cmp_ge_u32 s2, {NC}
    s_cbranch_scc1 P_prep
""")
    if STAMP:
        a("v_lshrrev_b32 v1, 6, v0")
        a("s_nop 0")
        a("v_readfirstlane_b32 s41, v1")
    stamp(a, 0)
    a(f"""
    v_lshlrev_b32 v1, 2, v0
    v_mov_b32 v2, 0
    v_cmp_gt_u32 vcc, 256, v0
    s_and_saveexec_b64 s[20:21], vcc
    ds_write_b32 v1, v2
    s_mov_b64 exec, s[20:21]
    s_mul_i32 s3, s2, {CH}
    v_lshl_add_u32 v3, v0, 2, s3
    v_lshlrev_b32 v4, 2, v3
    v_lshlrev_b32 v5, 1, v3
    v_mul_u32_u24 v6, 6, v3
    v_cmp_gt_u32 vcc, {CH // 4}, v0
    s_and_saveexec_b64 s[20:21], vcc
    s_waitcnt lgkmcnt(0)
    global_load_dwordx4 v[8:11], v4, s[10:11]{lf}
    global_load_dwordx4 v[12:15], v4, s[8:9]{lf}
    s_barrier
    global_load_dwordx2 v[16:17], v5, s[6:7]{lf}
    global_load_dwordx4 v[20:23], v6, s[4:5]{lf}
    global_load_dwordx2 v[24:25], v6, s[4:5] offset:16{lf}
""")
    a(f"""
    v_mov_b32 v2, 1
    s_waitcnt vmcnt(4)
""")
    stamp(a, 1)
    for i in range(4):
        a(f"""
    v_mul_u32_u24 v{28+i}, {mB}, v{8+i}
    v_lshrrev_b32 v{28+i}, {kB}, v{28+i}
    v_min_u32 v{28+i}, 255, v{28+i}
    v_lshlrev_b32 v{36+i}, 2, v{28+i}
    ds_add_rtn_u32 v{32+i}, v{36+i}, v2
""")
    if OPT.get("cpf", 1):
        a(f"""
    s_getpc_b64 s[24:25]
P_pc:
    s_add_u32 s24, s24, main_kernel-P_pc
    s_addc_u32 s25, s25, 0
    s_lshr_b32 s3, s2, 3
    s_lshl_b32 s3, s3, 10
    v_subrev_u32 v26, {CH//4 - 16}, v0
    v_lshl_add_u32 v26, v26, 6, s3
    v_min_u32 v26, M_multi-main_kernel, v26
    s_movk_i32 s3, {CH//4 - 16}
    v_cmp_le_u32 s[26:27], s3, v0
    s_and_b64 exec, exec, s[26:27]
    s_cbranch_execz P_nopf
    global_load_dword v27, v26, s[24:25]
P_nopf:
    """)
    if OPT.get("tlb"):
        pg = OPT["tlb"]
        a(f"""
    s_mov_b64 exec, -1
    s_lshr_b32 s3, s2, 3
    s_lshl_b32 s3, s3, 7
    v_lshlrev_b32 v26, {pg}, v0
    v_add_u32 v26, s3, v26
    v_cmp_gt_u32 vcc, {N*512}, v26
    s_and_saveexec_b64 s[26:27], vcc
    s_cbranch_execz P_notlb
    global_load_dword v84, v26, s[28:29]
    global_load_dword v85, v26, s[30:31]
P_notlb:
""")
    a(f"""
    s_mov_b64 exec, -1
    s_waitcnt lgkmcnt(0)
    s_barrier
    v_cmp_gt_u32 vcc, 64, v0
    s_cbranch_vccz P_skipscan
    v_lshlrev_b32 v1, 4, v0
    ds_read_b128 v[72:75], v1
    s_waitcnt lgkmcnt(0)
    v_add_u32 v76, v72, v73
    v_add_u32 v77, v76, v74
    v_add_u32 v78, v77, v75
    v_mov_b32 v79, v78
""")
    wave_scan(a, 79)
    a(f"""
    v_sub_u32 v80, v79, v78
    v_add_u32 v81, v80, v72
    v_add_u32 v82, v80, v76
    v_add_u32 v83, v80, v77
    ds_write_b128 v1, v[80:83]
    v_lshl_or_b32 v72, v72, 16, v80
    v_lshl_or_b32 v73, v73, 16, v81
    v_lshl_or_b32 v74, v74, 16, v82
    v_lshl_or_b32 v75, v75, 16, v83
    v_mov_b32 v84, v72
    v_mov_b32 v85, v73
    v_mov_b32 v86, v74
    v_mov_b32 v87, v75
    s_waitcnt lgkmcnt(0)
P_skipscan:
    v_cmp_gt_u32 vcc, {CH // 4}, v0
    s_and_saveexec_b64 s[20:21], vcc
    s_movk_i32 s22, {NPB}
    s_mov_b32 s23, 0xffff0000
""")
    for i in range(4):
        a(f"""
    v_mul_u32_u24 v1, s22, v{28+i}
    v_sub_u32 v1, v{8+i}, v1
    v_and_b32 v1, 127, v1
    v_lshlrev_b32 v{8+i}, 21, v1
""")
        if OPT.get("rot"):
            a(f"v_lshrrev_b32 v{72+i}, 5, v{28+i}")
        if G > 1:
            a(f"v_and_b32 v{72+i}, {G-1}, v{28+i}")
            a(f"v_mul_u32_u24 v{72+i}, {PHS//G}, v{72+i}")
    a("s_barrier")
    stamp(a, 2)
    for i in range(4):
        a(f"ds_read_b32 v{28+i}, v{36+i}")
    def emit_meta():
        for i in range(4):
            r = 40 + 4 * i
            if G > 1:
                a(f"v_add_u32 v4, v{72+i}, v{12+i}")
            a(f"""
    v_mul_u32_u24 v4, {mP}, v{4 if G > 1 else 12+i}
    v_lshrrev_b32 v4, {kP}, v4
    v_min_u32 v4, {NPH-1}, v4
""")
            if OPT.get("rot"):
                a(f"v_sub_u32 v4, v4, v{72+i}")
                a(f"v_and_b32 v4, 7, v4")
            a(f"""
    v_lshl_or_b32 v4, v4, 18, v{8+i}
    v_and_b32 v3, 0x7fff, v{12+i}
    v_or_b32 v{r+2}, v3, v4
""")


    EARLY = OPT.get("early", 1) and OPT["stage"] and not OPT.get("cpf") and not OPT.get("tlb")
    assert EARLY
    a("s_waitcnt vmcnt(3)")
    emit_meta()
    a("s_waitcnt lgkmcnt(0)")
    for i in range(4):
        a(f"v_add_lshl_u32 v{28+i}, v{28+i}, v{32+i}, 2")
        a(f"ds_write_b32 v{28+i}, v{42+4*i} offset:{K1_STG}")
    a(f"""
    v_lshlrev_b32 v1, 4, v0
    s_mul_i32 s3, s2, {CH*4}
    v_add_u32 v2, s3, v1
    s_waitcnt lgkmcnt(0)
    s_barrier
    ds_read_b128 v[8:11], v1 offset:{K1_STG}
""")
    for i in range(4):
        a(f"v_lshlrev_b32 v{28+i}, 1, v{28+i}")
    a("s_waitcnt lgkmcnt(0)")
    a(f"global_store_dwordx4 v2, v[8:11], s[18:19]{sf}")
    a("s_waitcnt vmcnt(3)")
    for i in range(4):
        src = 16 + i // 2
        if i % 2 == 0:
            a(f"v_lshlrev_b32 v{56+i}, 16, v{src}")
        else:
            a(f"v_and_b32 v{56+i}, s23, v{src}")
    a("s_waitcnt vmcnt(1)")
    stamp(a, 3)
    a(f"""
    v_cmp_gt_u32 vcc, 64, v0
    s_cbranch_vccz P_nodesc
""")
    if OPT.get("dcm"):
        a(f"""
    s_lshl_b32 s3, s2, 10
    s_add_u32 s3, s3, {DESC_OFF}
    v_lshl_add_u32 v3, v0, 4, s3
    global_store_dwordx4 v3, v[84:87], s[18:19]{df}
""")
    else:
        a(f"""
    s_lshl_b32 s3, s2, 2
    s_add_u32 s3, s3, {DESC_OFF}
    v_lshlrev_b32 v1, 12, v0
    v_add_u32 v1, s3, v1
    global_store_dword v1, v84, s[18:19]{df}
    global_store_dword v1, v85, s[18:19] offset:1024{df}
    global_store_dword v1, v86, s[18:19] offset:2048{df}
    global_store_dword v1, v87, s[18:19] offset:3072{df}
""")
    a("P_nodesc:")
    if OPT.get("k1warm"):
        a(f"""
    s_mul_i32 s3, s2, {100*512}
    v_lshl_add_u32 v76, v0, 7, s3
    v_cmp_gt_u32 vcc, 400, v0
    s_and_saveexec_b64 s[26:27], vcc
    s_cbranch_execz P_now
    global_load_dword v77, v76, s[28:29]
P_now:
    s_mov_b64 exec, s[26:27]
""")
    if not EARLY:
        emit_meta()
    for i in range(0 if not EARLY else 4, 4):
        src = 16 + i // 2
        if i % 2 == 0:
            a(f"v_lshlrev_b32 v{56+i}, 16, v{src}")
        else:
            a(f"v_and_b32 v{56+i}, s23, v{src}")
    for k in range(12):
        src = 20 + k // 2
        if k % 2 == 0:
            a(f"v_lshlrev_b32 v{60+k}, 16, v{src}")
        else:
            a(f"v_and_b32 v{60+k}, s23, v{src}")
    for i in range(4):
        r = 40 + 4 * i
        for j in range(3):
            a(f"v_mul_f32 v{60+3*i+j}, v{56+i}, v{60+3*i+j}")
        a(f"v_cvt_pk_bf16_f32 v{r}, v{56+i}, v{60+3*i}")
        a(f"v_cvt_pk_bf16_f32 v{r+1}, v{61+3*i}, v{62+3*i}")
        if EARLY:
            a(f"ds_write_b64 v{28+i}, v[{r}:{r+1}] offset:{K1_STG + CH*4}")
    if not EARLY:
        a("s_waitcnt lgkmcnt(0)")
    a(f"""
    s_mul_i32 s3, s2, {CH * 8}
    s_add_u32 s3, s3, {COEF_OFF}
    v_add_u32 v2, s3, v1
    v_add_u32 v3, {CH*4}, v2
    s_waitcnt lgkmcnt(0)
    s_barrier
    ds_read_b128 v[12:15], v1 offset:{K1_STG + CH*4}
    ds_read_b128 v[16:19], v1 offset:{K1_STG + CH*8}
    s_waitcnt lgkmcnt(1)
    global_store_dwordx4 v2, v[12:15], s[18:19]{sf}
    s_waitcnt lgkmcnt(0)
    global_store_dwordx4 v3, v[16:19], s[18:19]{sf}
""")
    stamp(a, 4)
    if STAMP:
        a("s_waitcnt vmcnt(0)")
    stamp(a, 5)
    stamp_flush(a, 18, 0, 1, 41)
    a("s_branch P_done")
    a(f"""
P_prep:
    s_waitcnt lgkmcnt(0)
    s_lshl_b32 s3, s2, {10 if OPT.get("dcm") else 2}
    s_add_u32 s3, s3, {DESC_OFF}
    v_lshlrev_b32 v1, {2 if OPT.get("dcm") else 10}, v0
    v_add_u32 v1, s3, v1
    v_mov_b32 v2, 0
    v_cmp_gt_u32 vcc, 256, v0
    s_and_saveexec_b64 s[20:21], vcc
    s_cbranch_execz P_prep1
    global_store_dword v1, v2, s[18:19]{df}
P_prep1:
    s_mov_b64 exec, s[20:21]
    s_sub_u32 s3, s2, {NC}
    s_cmp_eq_u32 s3, 5
    s_cbranch_scc1 P_done
    v_cmp_gt_u32 vcc, 512, v0
    s_and_saveexec_b64 s[20:21], vcc
    s_cbranch_execz P_done
    s_cmp_lt_u32 s3, 2
    s_cselect_b32 s24, s14, s16
    s_cselect_b32 s25, s15, s17
    s_sub_u32 s22, s3, 2
    s_cselect_b32 s22, s3, s22
    s_lshl_b32 s22, s22, 13
    v_lshrrev_b32 v1, 8, v0
    v_bfe_u32 v2, v0, 4, 2
    v_lshl_add_u32 v1, v2, 2, v1
    s_lshl_b32 s23, s3, 7
    v_lshl_add_u32 v4, v1, 3, s23
    global_load_dwordx2 v[16:17], v4, s[12:13]
    global_load_dwordx2 v[18:19], v4, s[12:13] offset:16
    v_lshlrev_b32 v1, 9, v1
    v_bfe_u32 v2, v0, 7, 1
    v_bfe_u32 v3, v0, 2, 2
    v_lshl_add_u32 v2, v2, 2, v3
    v_bfe_u32 v3, v0, 6, 1
    v_lshl_add_u32 v2, v2, 1, v3
    v_and_b32 v3, 3, v0
    v_lshl_add_u32 v2, v2, 2, v3
    v_lshl_add_u32 v1, v2, 1, v1
    v_add_u32 v1, s22, v1
""")
    for e in range(8):
        a(f"global_load_ushort v{8+e}, v1, s[24:25] offset:{128*(8*(e>>2)+(e&3))}")
    a(f"""
    s_lshl_b32 s3, s3, 13
    s_add_u32 s3, s3, {WIMG_OFF}
    v_lshl_add_u32 v1, v0, 4, s3
    s_mov_b32 s23, 0xffff0000
    s_waitcnt vmcnt(0)
""")
    for e in range(8):
        a(f"v_lshlrev_b32 v{8+e}, 16, v{8+e}")
        if e % 2 == 0:
            a(f"v_lshlrev_b32 v2, 16, v{16+e//2}")
        else:
            a(f"v_and_b32 v2, s23, v{16+e//2}")
        a(f"v_mul_f32 v{8+e}, v{8+e}, v2")
    for e in range(4):
        a(f"v_cvt_pk_bf16_f32 v{4+e}, v{8+2*e}, v{9+2*e}")
    a(f"""
    global_store_dwordx4 v1, v[4:7], s[18:19]{df}
P_done:
    s_endpgm
""")


ACC = 48
RING = 12 + 4 * max(LS, 3)
STAGE = 12
V_PTR = 2
V_LANE = 3
S_X = 4
S_REC = 8
S_OUT = 12
S_WS = 16
S_WAVE = 18
S_C0 = 19
S_TAKE = 20
S_MORE = 21
S_REGION = 22
S_PH = 23
S_T = 24
S_CNT = 28
S_LEV = 41
S_MASK = 44
S_PART = 92
NSUB = 3


def gen_main(a):
    MAINK[0] = True
    L = V_LANE
    NU = 6
    RB = 160
    RK = 132
    DS = 128
    BAL = OPT.get("bal", 1)
    a(f"""
.p2align 8
.globl main_kernel
.type main_kernel,@function
main_kernel:
    s_cmp_ge_u32 s2, {NB}
    s_cbranch_scc1 M_done
    s_load_dwordx2 s[16:17], s[0:1], 88
    s_load_dwordx2 s[24:25], s[0:1], 0
    s_load_dwordx2 s[26:27], s[0:1], 72
    v_lshrrev_b32 v1, 6, v0
    v_and_b32 v{L}, 63, v0
    v_readfirstlane_b32 s{S_WAVE}, v1
    s_mov_b32 s{S_C0}, 0
    s_movk_i32 s{S_TAKE}, 48
    s_mul_i32 s{S_REGION}, s{S_WAVE}, {REGB}
    s_add_u32 s{S_REGION}, s{S_REGION}, {L_REG}
""")
    if OPT.get("bperm", 1):
        a("""
    s_and_b32 s3, s2, 7
    s_lshl_b32 s3, s3, 5
    s_lshr_b32 s2, s2, 3
    s_or_b32 s2, s2, s3
""")
    a("s_waitcnt lgkmcnt(0)")
    stamp(a, 0)
    srd(a, S_X, 24, N, stride=512)
    srd(a, S_OUT, 26, N * 512)
    srd(a, S_REC, 16, WIMG_OFF + WIMG_BYTES)
    srd(a, S_PART, 16, PART_BYTES, PART_OFF)

    def any_level(u):
        m = S_MASK + 2 * (u * 4)
        a(f"s_or_b64 s[26:27], s[{m}:{m+1}], s[{m+2}:{m+3}]")
        a(f"s_or_b64 s[26:27], s[26:27], s[{m+4}:{m+5}]")
        a(f"s_or_b64 s[26:27], s[26:27], s[{m+6}:{m+7}]")

    def masked(fn, tag, pre=None):
        for u in range(3, NU):
            a(f"s_cmp_eq_u32 s{S_LEV}, {u}")
            a(f"s_cbranch_scc1 M_{tag}_{u-1}")
        for u in range(NU - 1, -1, -1):
            a(f"M_{tag}_{u}:")
            for k in range(4):
                i = u * 4 + k
                m = S_MASK + 2 * i
                if pre:
                    pre(i, u, k)
                a(f"s_mov_b64 exec, s[{m}:{m+1}]")
                fn(i, u, k)
        a("s_mov_b64 exec, -1")

    a(f"""
M_round:
    v_lshrrev_b32 v1, 3, v{L}
    s_lshl_b32 s24, s{S_WAVE}, 3
    v_add_u32 v1, s24, v1
""")
    if OPT.get("dcm"):
        a(f"""
    s_lshl_b32 s24, s2, 2
    s_add_u32 s24, s24, {DESC_OFF}
    v_lshl_add_u32 v4, v1, 12, s24
    global_load_dword v{DS}, v4, s[16:17]
    global_load_dword v{DS+1}, v4, s[16:17] offset:1024
    global_load_dword v{DS+2}, v4, s[16:17] offset:2048
    global_load_dword v{DS+3}, v4, s[16:17] offset:3072
""")
        if OPT.get("spec"):
            a(f"""
    s_mul_i32 s24, s2, {round(CH * NPB * RECB / N * 64)}
    s_lshr_b32 s24, s24, 6
    s_mul_i32 s26, s{S_WAVE}, {32*CH*RECB}
    s_add_u32 s24, s24, s26
    s_and_b32 s24, s24, -4
    s_mov_b32 m0, {L_DUMMY}
    v_lshrrev_b32 v5, 1, v{L}
    v_mul_u32_u24 v5, {CH*RECB}, v5
    v_and_b32 v6, 1, v{L}
    v_mul_u32_u24 v6, 76, v6
    v_add3_u32 v5, v5, v6, s24
    buffer_load_dword v5, s[{S_REC}:{S_REC+3}], 0 offen lds
""")
    else:
        a(f"""
    s_lshl_b32 s24, s2, 10
    s_add_u32 s24, s24, {DESC_OFF}
    v_lshl_add_u32 v4, v1, 4, s24
    global_load_dwordx4 v[{DS}:{DS+3}], v4, s[16:17]
""")
    a(f"""
    s_lshl_b32 s24, s{S_WAVE}, 9
    v_lshl_add_u32 v0, v{L}, 3, s24
    v_mov_b32 v4, 0
    v_mov_b32 v5, 0
    v_mov_b32 v6, {PADIDX:#x}
    v_mov_b32 v7, 0
    ds_write_b64 v0, v[4:5] offset:{L_HIST}
    ds_write_b64 v4, v[4:5] offset:{L_FLAG}
    v_lshlrev_b32 v2, 3, v{L}
    ds_write_b64 v2, v[4:5] offset:{L_RANK}
    v_lshl_add_u32 v2, v{L}, 4, s{S_REGION}
""")
    for i in range(REGB // 1024):
        a(f"ds_write_b128 v2, v[4:7] offset:{1024*i}")
    a(f"""
    v_and_b32 v0, 7, v{L}
    v_add_u32 v0, s{S_C0}, v0
    s_movk_i32 s24, {4*CH}
    v_mad_u32_u24 v1, v1, s24, v0
    s_add_u32 s25, s{S_C0}, s{S_TAKE}
    v_mov_b32 v24, 0
    v_mov_b32 v25, {OOB:#x}
    s_mov_b32 s24, {COEF_OFF}
    s_waitcnt vmcnt(0)
""")
    stamp(a, 1)
    for k in range(4):
        d = DS + k
        a(f"""
    v_lshrrev_b32 v26, 16, v{d}
    v_max_u32 v24, v24, v26
    v_min_u32 v26, s25, v26
    v_sub_u32 v26, v26, v0
    v_and_b32 v{d}, 0xffff, v{d}
    v_add_lshl_u32 v{d}, v{d}, v1, 2
    v_lshl_add_u32 v{28+k}, v{d}, 1, s24
""")
        for u in range(NU):
            m = S_MASK + 2 * (u * 4 + k)
            a(f"v_cmp_lt_i32 s[{m}:{m+1}], {8*u}, v26")
        if k < 3:
            a(f"v_add_u32 v1, {CH}, v1")
    a(f"s_mov_b32 s{S_LEV}, 3")
    for u in range(3, NU):
        any_level(u)
        a(f"s_cselect_b32 s{S_LEV}, {u+1}, s{S_LEV}")

    def ld_meta(u, k):
        i = u * 4 + k
        m = S_MASK + 2 * i
        r = RB + 4 * i
        a(f"v_cndmask_b32 v{r+3}, v25, v{DS+k}, s[{m}:{m+1}]")
        a(f"buffer_load_dword v{r+2}, v{r+3}, s[{S_REC}:{S_REC+3}], 0 offen offset:{32*u}")

    def ld_coef(u, k):
        i = u * 4 + k
        m = S_MASK + 2 * i
        r = RB + 4 * i
        a(f"v_cndmask_b32 v{r}, v25, v{28+k}, s[{m}:{m+1}]")
        a(f"buffer_load_dwordx2 v[{r}:{r+1}], v{r}, s[{S_REC}:{S_REC+3}], 0 offen offset:{64*u}")

    for u in range(3, NU):
        a(f"s_cmp_eq_u32 s{S_LEV}, {u}")
        a(f"s_cbranch_scc1 M_ld_{u-1}")
    for u in range(NU - 1, 2, -1):
        a(f"M_ld_{u}:")
        for k in range(4):
            ld_meta(u, k)
            ld_coef(u, k)
    a("M_ld_2:")
    for u in (2, 1, 0):
        for k in range(4):
            ld_meta(u, k)
    CB = OPT.get("cbar", 1)
    if not CB:
        for u in (2, 1, 0):
            for k in range(4):
                ld_coef(u, k)
    a(f"""
    s_waitcnt lgkmcnt(0)
    s_barrier
""")
    if CB:
        for u in (2, 1, 0):
            for k in range(4):
                ld_coef(u, k)
    a(f"""
    v_cmp_lt_u32 vcc, s25, v24
    s_and_saveexec_b64 s[26:27], vcc
    v_mov_b32 v1, 1
    ds_write_b32 v4, v1 offset:{L_FLAG+4}
    s_mov_b64 exec, -1
    v_mov_b32 v6, 0
    v_and_b32 v12, 31, v{L}
    v_lshrrev_b32 v24, 5, v{L}
    v_lshl_add_u32 v{V_PTR}, v24, 4, s{S_REGION}
""")
    for j in range(5):
        a(f"v_mfma_f32_32x32x16_bf16 v[{ACC+16*j}:{ACC+16*j+15}], v[4:7], v[4:7], 0")
    SMF = OPT.get("smf", 0)
    if SMF:
        a(f"""
    v_lshrrev_b32 v24, 3, v12
    v_mul_u32_u24 v24, 0x202, v24
    v_add_u32 v24, 0x0c0c0100, v24
    v_mov_b32 v27, 0x0c0c0c0c
    v_and_b32 v25, 4, v12
    v_cmp_eq_u32 vcc, 0, v25
    v_and_b32 v10, 3, v12
    v_mul_u32_u24 v10, 0x5555, v10
    v_cndmask_b32 v8, v27, v24, vcc
    v_cndmask_b32 v9, v24, v27, vcc
""")
    else:
        a(f"""
    v_lshrrev_b32 v24, 3, v12
    v_lshlrev_b32 v24, 1, v24
    v_add_u32 v25, 1, v24
    v_lshl_or_b32 v24, v25, 8, v24
    v_and_b32 v25, 1, v12
    v_lshlrev_b32 v25, 4, v25
    v_mov_b32 v26, 0xffff
    v_lshlrev_b32 v26, v25, v26
    v_lshlrev_b32 v24, v25, v24
    v_mov_b32 v27, 0x0c0c0c0c
    v_bfi_b32 v24, v26, v24, v27
    v_bfe_u32 v25, v12, 1, 2
""")
        for j in range(4):
            a(f"v_cmp_eq_u32 vcc, {j}, v25")
            a("s_nop 1")
            a(f"v_cndmask_b32 v{8+j}, v27, v24, vcc")
    a(f"v_lshlrev_b32 v{STAGE+3}, 4, v12")
    if OPT["warm"]:
        a(f"""
""")
        if OPT.get("wint"):
            a(f"""
    s_and_b32 s24, s2, 31
    s_lshl_b32 s24, s24, 3
    s_lshr_b32 s26, s2, 5
    s_or_b32 s24, s24, s26
""")
        else:
            a(f"""s_and_b32 s24, s2, {31 if (OPT.get("k1warm") or OPT.get("rot")) else 255}""")
        a(f"""
    s_lshl_b32 s24, s24, 3
    s_add_u32 s24, s24, s{S_WAVE}
    s_mul_i32 s24, s24, 13
""")
        if OPT.get("rot"):
            a(f"s_lshr_b32 s26, s2, 5")
            a(f"s_mul_i32 s26, s26, {PH}")
            a(f"s_add_u32 s24, s24, s26")
        a(f"""
    v_lshrrev_b32 v156, 2, v{L}
    v_add_u32 v156, s24, v156
    v_and_b32 v157, 3, v{L}
    v_lshlrev_b32 v157, 7, v157
    v_cmp_gt_u32 vcc, 52, v{L}
    v_mov_b32 v24, {PADIDX:#x}
    s_mov_b32 m0, {L_DUMMY}
    v_cndmask_b32 v156, v24, v156, vcc
""")
    a(f"""
    v_and_b32 v12, 7, v{L}
    s_lshl_b32 s24, s{S_WAVE}, 6
    v_lshl_add_u32 v13, v12, 3, s24
    v_lshrrev_b32 v14, 3, v{L}
    v_lshlrev_b32 v14, 2, v14
    v_lshlrev_b32 v16, 5, v{L}
    v_mov_b32 v1, 2
""")
    if not BAL:
        a(f"""
    v_lshlrev_b32 v20, 4, v12
    v_add_u32 v20, s{S_WAVE}, v20
    v_add_u32 v21, 8, v20
    ds_write_b64 v13, v[20:21] offset:{L_MAP}
""")
    a("v_lshlrev_b32 v12, 2, v12")
    a("s_waitcnt vmcnt(24)")
    stamp(a, 2)

    def pre_atomic(i, u, k):
        if u < 3:
            a(f"s_waitcnt vmcnt({12 + u * 4 + 3 - k})")

    def f_atomic(i, u, k):
        r = RB + 4 * i
        a(f"v_lshrrev_b32 v{r+3}, 16, v{r+2}")
        a(f"ds_add_rtn_u32 v{RK+i}, v{r+3}, v1 offset:{L_HIST}")
    masked(f_atomic, "at", pre_atomic)
    a(f"""
    s_mul_i32 s24, s{S_WAVE}, 5120
    s_add_u32 s26, s24, {L_W}
    s_mov_b32 m0, s26
    s_add_u32 s24, s24, {WIMG_OFF}
    v_lshl_add_u32 v158, v{L}, 4, s24
""")
    for i in range(4):
        a(f"buffer_load_dwordx4 v158, s[{S_REC}:{S_REC+3}], 0 offen offset:{1024*i} lds")
    a(f"""
    s_add_u32 s26, s26, 4096
    s_mov_b32 m0, s26
    v_add_u32 v158, 4096, v158
    buffer_load_dwordx4 v158, s[{S_REC}:{S_REC+3}], 0 offen lds
""")
    a(f"s_mov_b32 m0, {L_DUMMY}")
    a("s_nop 0")
    a("s_waitcnt lgkmcnt(0)")
    pstamp(a, 1)
    a("s_barrier")
    pstamp(a, 2)
    if OPT.get("l2pf"):
        a(f"s_lshr_b32 s24, s2, 5")
        a(f"s_mul_i32 s24, s24, {32*8*13}")
        a(f"v_subrev_u32 v158, s24, v156")
        a(f"v_cmp_gt_u32 vcc, 52, v{L}")
        a(f"v_mov_b32 v159, v157")
        a(f"s_nop 0")
        a(f"v_cndmask_b32 v158, v156, v158, vcc")
        if OPT["l2pf"] == 1:
            a(f"buffer_load_dword v[158:159], s[{S_X}:{S_X+3}], 0 idxen offen lds")
    if OPT["warm"]:
        a(f"buffer_load_dword v[156:157], s[{S_X}:{S_X+3}], 0 idxen offen lds")
    if OPT.get("l2pf") == 2:
        a(f"buffer_load_dword v[158:159], s[{S_X}:{S_X+3}], 0 idxen offen lds")
    if OPT["warm"]:
        for _ in range(OPT["warm"] - 1):
            a(f"v_add_u32 v156, 3328, v156")
            a(f"buffer_load_dword v[156:157], s[{S_X}:{S_X+3}], 0 idxen offen lds")

    def f_taddr(i, u, k):
        r = RB + 4 * i
        a(f"v_min_u32 v0, 2, v{RK+i}")
        a(f"v_add_lshl_u32 v{r+3}, v{r+3}, v0, 1")

    if BAL:
        a(f"""
    ds_read_b128 v[24:27], v16 offset:{L_HIST}
    ds_read_b128 v[28:31], v16 offset:{L_HIST+16}
    ds_read_b128 v[32:35], v16 offset:{L_HIST+2048}
    ds_read_b128 v[36:39], v16 offset:{L_HIST+2064}
    v_sub_u32 v40, {2*128 + 127}, v{L}
    v_sub_u32 v41, {2*128 + 63}, v{L}
    v_mov_b32 v42, 0
    v_mov_b32 v43, 0
    s_lshl_b32 s24, s{S_WAVE}, 3
    s_waitcnt lgkmcnt(2)
    v_add3_u32 v24, v24, v25, v26
    v_add3_u32 v28, v28, v29, v30
    v_add3_u32 v24, v24, v27, v31
    s_waitcnt lgkmcnt(0)
    v_add3_u32 v32, v32, v33, v34
    v_add3_u32 v36, v36, v37, v38
    v_add3_u32 v32, v32, v35, v39
    v_add_u32 v24, v24, v28
    v_add_u32 v32, v32, v36
    v_lshl_add_u32 v40, v24, 7, v40
    v_lshl_add_u32 v41, v32, 7, v41
    v_and_b32 v40, 0xfffffe7f, v40
    v_and_b32 v41, 0xfffffe7f, v41
""")
        sel = [(40, i) for i in range(8)] + [(41, None)] * 5
        for n in range(13):
            if n < 8:
                a(f"s_add_u32 s25, s24, {n}")
                a(f"v_readlane_b32 s{28+n}, v40, s25")
            else:
                a(f"s_add_u32 s25, s{S_WAVE}, {8*(n-8)}")
                a(f"v_readlane_b32 s{28+n}, v41, s25")
        for n in range(13):
            p0, p1 = ("vcc", "s[26:27]") if n % 2 == 0 else ("s[24:25]", "s[42:43]")
            a(f"v_cmp_gt_u32 {p0}, s{28+n}, v40")
            a(f"v_cmp_gt_u32 {p1}, s{28+n}, v41")
            if n:
                q0, q1 = ("vcc", "s[26:27]") if n % 2 == 1 else ("s[24:25]", "s[42:43]")
                a(f"v_addc_co_u32 v42, {q0}, 0, v42, {q0}")
                a(f"v_addc_co_u32 v43, {q1}, 0, v43, {q1}")
        a(f"""
    v_lshlrev_b32 v44, 2, v{L}
    v_mov_b32 v20, 127
    v_addc_co_u32 v42, vcc, 0, v42, vcc
    v_addc_co_u32 v43, s[26:27], 0, v43, s[26:27]
    v_mov_b32 v21, 127
    ds_add_u32 v44, v42 offset:{L_RANK}
    ds_add_u32 v44, v43 offset:{L_RANK+256}
    ds_write_b64 v13, v[20:21] offset:{L_MAP}
""")
        if OPT.get("carry", 1):
            masked(f_taddr, "ta")
        a(f"""
    s_waitcnt lgkmcnt(0)
    s_barrier
    ds_read_b32 v42, v44 offset:{L_RANK}
    ds_read_b32 v43, v44 offset:{L_RANK+256}
    v_add_u32 v41, 64, v{L}
    s_lshl_b32 s24, s{S_WAVE}, 6
    s_waitcnt lgkmcnt(0)
    v_bfe_i32 v45, v42, 3, 1
    v_bfe_i32 v46, v43, 3, 1
    v_xor_b32 v45, v45, v42
    v_xor_b32 v46, v46, v43
    v_and_b32 v45, 7, v45
    v_and_b32 v46, 7, v46
    v_cmp_eq_u32 vcc, s{S_WAVE}, v45
    v_cmp_eq_u32 s[26:27], s{S_WAVE}, v46
    v_lshrrev_b32 v42, 3, v42
    v_lshrrev_b32 v43, 3, v43
    v_lshl_add_u32 v42, v42, 2, s24
    v_lshl_add_u32 v43, v43, 2, s24
    s_mov_b64 exec, vcc
    ds_write_b32 v42, v{L} offset:{L_MAP}
    s_mov_b64 exec, s[26:27]
    ds_write_b32 v43, v41 offset:{L_MAP}
    s_mov_b64 exec, -1
    ds_read_b64 v[20:21], v13 offset:{L_MAP}
    s_waitcnt lgkmcnt(0)
""")
    def prefix_carry():
        a(f"""
    v_lshlrev_b32 v20, 5, v20
    v_lshlrev_b32 v21, 5, v21
    ds_read_b128 v[24:27], v20 offset:{L_HIST}
    ds_read_b128 v[28:31], v20 offset:{L_HIST+16}
    ds_read_b128 v[32:35], v21 offset:{L_HIST}
    ds_read_b128 v[36:39], v21 offset:{L_HIST+16}
    v_add_u32 v20, v14, v20
    v_add_u32 v21, v14, v21
    ds_read_b32 v40, v20 offset:{L_HIST}
    ds_read_b32 v41, v21 offset:{L_HIST}
""")
        if not BAL:
            masked(f_taddr, "ta")
        a(f"""
    v_mov_b32 v42, 0
    v_mov_b32 v43, 0
    v_mov_b32 v44, v12
    v_mov_b32 v45, v12
    v_lshlrev_b32 v20, 1, v20
    v_lshlrev_b32 v21, 1, v21
    s_waitcnt lgkmcnt(0)
""")
        for q in range(1, 8):
            lo = (0xFFFFFFFFFFFFFFFF << (8 * q)) & 0xFFFFFFFF
            hi = ((0xFFFFFFFFFFFFFFFF << (8 * q)) >> 32) & 0xFFFFFFFF
            if q <= 4:
                a(f"s_mov_b32 exec_lo, {lo:#x}")
            else:
                a(f"s_mov_b32 exec_hi, {hi:#x}")
            a(f"v_cmp_ne_u32 vcc, 0, v{24+q-1}")
            a(f"v_cmp_ne_u32 s[26:27], 0, v{32+q-1}")
            a(f"v_add_u32 v42, v42, v{24+q-1}")
            a(f"v_add_u32 v43, v43, v{32+q-1}")
            a(f"v_cndmask_b32 v44, v44, v12, vcc")
            a(f"v_cndmask_b32 v45, v45, v12, s[26:27]")
            a(f"v_add_u32 v12, 32, v12")
        a(f"""
    s_mov_b64 exec, -1
    v_add_u32 v46, 2, v42
    v_add_u32 v47, 2, v43
    v_add_u32 v0, v46, v40
    v_add_u32 v1, v47, v41
    v_lshrrev_b32 v46, 2, v46
    v_lshrrev_b32 v47, 2, v47
    v_lshrrev_b32 v0, 2, v0
    v_lshrrev_b32 v1, 2, v1
    v_sub_u32 v0, v0, v46
    v_sub_u32 v1, v1, v47
    v_add_u32 v24, v0, v1
    v_mov_b32 v25, v24
""")
        wave_scan(a, 25)
        a(f"""
    v_readlane_b32 s24, v25, 63
    v_sub_u32 v24, v25, v24
    v_lshl_add_u32 v27, v24, 5, s{S_REGION}
    v_lshl_add_u32 v29, v0, 5, v27
    v_and_b32 v42, 2, v42
    v_and_b32 v43, 2, v43
    v_lshlrev_b32 v46, 3, v42
    v_lshlrev_b32 v47, 3, v43
    v_sub_u32 v27, v27, v46
    v_sub_u32 v29, v29, v47
    v_lshl_add_u32 v46, v40, 3, v27
    v_lshl_add_u32 v47, v41, 3, v29
    ds_bpermute_b32 v26, v44, v46
    ds_bpermute_b32 v28, v45, v47
    v_cmp_eq_u32 vcc, 0, v42
    v_cmp_eq_u32 s[26:27], 0, v43
    s_cmp_le_u32 s24, {CAPP}
    s_cbranch_scc1 M_noovf
    v_mov_b32 v30, 1
    ds_write_b32 v4, v30 offset:{L_FLAG}
M_noovf:
    s_waitcnt lgkmcnt(0)
    v_cndmask_b32 v26, v26, v27, vcc
    v_cndmask_b32 v28, v28, v29, s[26:27]
    ds_write_b64 v20, v[26:27] offset:{L_TAB}
    ds_write_b64 v21, v[28:29] offset:{L_TAB}
    s_waitcnt lgkmcnt(0)
""")

    CARRY = OPT.get("carry", 1)
    if CARRY:
        prefix_carry()
    else:
        a(f"""
    v_lshl_add_u32 v20, v20, 5, v14
    v_lshl_add_u32 v21, v21, 5, v14
    ds_read_b32 v0, v20 offset:{L_HIST}
    ds_read_b32 v1, v21 offset:{L_HIST}
    s_waitcnt lgkmcnt(0)
    v_add_u32 v0, 2, v0
    v_add_u32 v1, 2, v1
    v_lshrrev_b32 v0, 2, v0
    v_lshrrev_b32 v1, 2, v1
    v_add_u32 v24, v0, v1
    v_mov_b32 v25, v24
""")
        wave_scan(a, 25)
        a(f"""
    v_readlane_b32 s24, v25, 63
    v_sub_u32 v24, v25, v24
    v_lshl_add_u32 v27, v24, 5, s{S_REGION}
    v_lshl_add_u32 v29, v0, 5, v27
    ds_write_b32 v20, v27 offset:{L_HIST}
    ds_write_b32 v21, v29 offset:{L_HIST}
    s_cmp_le_u32 s24, {CAPP}
    s_cbranch_scc1 M_noovf
    v_mov_b32 v30, 1
    ds_write_b32 v4, v30 offset:{L_FLAG}
M_noovf:
    s_waitcnt lgkmcnt(0)
""")
    pstamp(a, 4)
    a(f"""
    s_barrier
    ds_read_b64 v[20:21], v4 offset:{L_FLAG}
""")
    masked(lambda i, u, k: a(f"ds_read_b32 v{RB+4*i+3}, v{RB+4*i+3} offset:{L_TAB if CARRY else L_HIST}"), "lk")
    for r in range(D):
        a(f"v_mov_b32 v{RING+4*r+1}, v{STAGE+3}")
    for st in range(1, LS):
        a(f"v_mov_b32 v{STAGE+4*st+3}, v{STAGE+3}")
    a(f"""
    s_waitcnt lgkmcnt(0)
    v_readfirstlane_b32 s24, v20
    v_readfirstlane_b32 s{S_MORE}, v21
    s_cmp_eq_u32 s24, 0
    s_cbranch_scc1 M_go
    s_lshr_b32 s{S_TAKE}, s{S_TAKE}, 1
    s_max_u32 s{S_TAKE}, s{S_TAKE}, 1
    s_waitcnt vmcnt(0)
    s_barrier
    s_branch M_round
M_go:
""")
    pstamp(a, 5)

    def f_scatter(i, u, k):
        r = RB + 4 * i
        a(f"v_lshl_add_u32 v{r+3}, v{RK+i}, 3, v{r+3}")
        a(f"ds_write_b16 v{r+3}, v{r+2} offset:8")
        a(f"ds_write_b64 v{r+3}, v[{r}:{r+1}] offset:{32*(D-1)}")
    a(f"s_waitcnt vmcnt({5 + OPT['warm']})")
    masked(f_scatter, "sc")
    a(f"s_waitcnt vmcnt({OPT['warm'] + (1 if OPT.get('l2pf') else 0)}) lgkmcnt(0)")
    a("s_barrier")
    stamp(a, 3)
    cstamp(a, 1)
    for r in range(D):
        a(f"ds_read_b32 v{RING+4*r}, v{V_PTR} offset:{32*r+8}")
    a(f"ds_read_b64 v[{RING+2}:{RING+3}], v{V_PTR} offset:{32*(D-1)}")
    for st in range(LS):
        a(f"ds_read_b96 v[{STAGE+4*st}:{STAGE+4*st+2}], v{V_PTR} offset:{32*(D+st)}")
    for j in range(5, NSLOT):
        a(f"v_mfma_f32_32x32x16_bf16 v[{ACC+16*j}:{ACC+16*j+15}], v[4:7], v[4:7], 0")
    a(f"s_waitcnt lgkmcnt({LS})")
    for j in range(2 if SMF else 4):
        a(f"v_perm_b32 v{4+j}, v{RING+3}, v{RING+2}, v{8+j}")
    for r in range(D):
        a(f"buffer_load_dwordx4 v[{RING+4*r}:{RING+4*r+3}], v[{RING+4*r}:{RING+4*r+1}], s[{S_X}:{S_X+3}], 0 idxen offen")
    a(f"s_mov_b32 s{S_PH}, 0")
    xf = ["", " nt", " sc1", " sc0"][OPT.get("xf", 0)]
    PB = 2 if OPT.get("eprio") else 0
    if OPT.get("eprio"):
        a("s_setprio 2")
    if OPT.get("offen") == 2:
        a(f"v_mov_b32 v{L}, v{STAGE+3}")
    if OPT.get("offen"):
        a(f"s_mov_b32 s{S_MASK}, s{S_X}")
        a(f"s_and_b32 s{S_MASK+1}, s{S_X+1}, 0xffff")
        a(f"s_mov_b32 s{S_MASK+2}, {N*512}")
        a(f"s_mov_b32 s{S_MASK+3}, 0x20000")
    if OPT.get("prio") == 2:
        a(f"s_cmp_lt_u32 s{S_WAVE}, 4")
        a("s_cbranch_scc1 M_PE0")
        a("s_setprio 1")
    a("s_branch M_epi" if OPT.get("nomain") else "s_branch M_PE0")
    assert D % LS == 0
    if OPT.get("dbl"):
        def nxt_label(j, r):
            return f"M_B{j+1}_{r}" if j + 1 < NSLOT else f"M_PE{r}"

        def single(j, r):
            ac = ACC + 16 * j
            rg = RING + 4 * r
            st = STAGE + 4 * (r % LS)
            a(f"""
    s_waitcnt vmcnt({D-1}) lgkmcnt({LS-1})
    v_smfmac_f32_32x32x16_bf16 v[{ac}:{ac+15}], v[4:5], v[{rg}:{rg+3}], v10
    buffer_load_dwordx4 v[{rg}:{rg+3}], v[{st+2}:{st+3}], s[{S_X}:{S_X+3}], 0 idxen offen
    v_perm_b32 v4, v{st+1}, v{st}, v8
    v_perm_b32 v5, v{st+1}, v{st}, v9
    ds_read_b96 v[{st}:{st+2}], v{V_PTR} offset:{32*(r+D+LS)}
""")
            if r == D - 1:
                a(f"v_add_u32 v{V_PTR}, {32*D}, v{V_PTR}")

        for j in range(NSLOT):
            ac = ACC + 16 * j
            order = list(range(0, D, 2)) + list(range(1, D, 2))
            for r in order:
                rg = RING + 4 * r
                sa = STAGE + 4 * (r % LS)
                sb = STAGE + 4 * ((r + 1) % LS)
                a(f"M_B{j}_{r}:")
                if r == D - 1:
                    a(f"s_sub_u32 s{S_CNT+j}, s{S_CNT+j}, 1")
                    a(f"s_cbranch_scc1 {nxt_label(j, r)}")
                    single(j, r)
                    a(f"s_branch M_B{j}_0")
                    continue
                a(f"""
    s_sub_u32 s{S_CNT+j}, s{S_CNT+j}, 2
    s_cbranch_scc1 M_T{j}_{r}
    s_waitcnt lgkmcnt({LS-1})
    v_perm_b32 v6, v{sa+1}, v{sa}, v8
    v_perm_b32 v7, v{sa+1}, v{sa}, v9
    s_waitcnt vmcnt({D-2}) lgkmcnt({LS-2})
    v_permlane32_swap_b32 v4, v6
    v_permlane32_swap_b32 v5, v7
    s_nop 1
    v_smfmac_f32_32x32x32_bf16 v[{ac}:{ac+15}], v[4:7], v[{rg}:{rg+7}], v10
    buffer_load_dwordx4 v[{rg}:{rg+3}], v[{sa+2}:{sa+3}], s[{S_X}:{S_X+3}], 0 idxen offen
    buffer_load_dwordx4 v[{rg+4}:{rg+7}], v[{sb+2}:{sb+3}], s[{S_X}:{S_X+3}], 0 idxen offen
    v_perm_b32 v4, v{sb+1}, v{sb}, v8
    v_perm_b32 v5, v{sb+1}, v{sb}, v9
    ds_read_b96 v[{sa}:{sa+2}], v{V_PTR} offset:{32*(r+D+LS)}
    ds_read_b96 v[{sb}:{sb+2}], v{V_PTR} offset:{32*(r+1+D+LS)}
""")
                if r == D - 2:
                    a(f"v_add_u32 v{V_PTR}, {32*D}, v{V_PTR}")
                    a(f"s_branch M_B{j}_0")
            for r in range(D - 1):
                a(f"""
M_T{j}_{r}:
    s_bitcmp1_b32 s{S_CNT+j}, 0
    s_cbranch_scc0 {nxt_label(j, r)}
""")
                single(j, r)
                a(f"s_branch {nxt_label(j, r+1)}")
    for j in range(0 if not OPT.get("dbl") else NSLOT, NSLOT):
        ac = ACC + 16 * j
        for r in range(D):
            nxt = f"M_B{j+1}_{r}" if j + 1 < NSLOT else f"M_PE{r}"
            rg = RING + 4 * r
            st = STAGE + 4 * (r % LS)
            a(f"""
M_B{j}_{r}:
    s_sub_u32 s{S_CNT+j}, s{S_CNT+j}, 1
    s_cbranch_scc1 {nxt}
    s_waitcnt vmcnt({D-1}) lgkmcnt({LS-1})
""")
            if OPT.get("offen"):
                a(f"v_lshl_add_u32 v{st+2}, v{st+2}, 9, v{L if OPT['offen'] == 2 else st+3}")
            if OPT.get("half") == 1 and r % 2 == 0:
                pass
            elif OPT.get("half") == 1:
                a(f"v_smfmac_f32_32x32x32_bf16 v[{ac}:{ac+15}], v[4:7], v[{rg-4}:{rg+3}], v10")
            elif OPT.get("half") == 2:
                pass
            elif SMF:
                a(f"v_smfmac_f32_32x32x16_bf16 v[{ac}:{ac+15}], v[4:5], v[{rg}:{rg+3}], v10")
            else:
                a(f"v_mfma_f32_32x32x16_bf16 v[{ac}:{ac+15}], v[4:7], v[{rg}:{rg+3}], v[{ac}:{ac+15}]")
            if OPT.get("offen"):
                a(f"buffer_load_dwordx4 v[{rg}:{rg+3}], v{st+2}, s[{S_MASK}:{S_MASK+3}], 0 offen")
            else:
                a(f"buffer_load_dwordx4 v[{rg}:{rg+3}], v[{st+2}:{st+3}], s[{S_X}:{S_X+3}], 0 idxen offen{xf}")
            a(f"""
    v_perm_b32 v4, v{st+1}, v{st}, v8
    v_perm_b32 v5, v{st+1}, v{st}, v9
""")
            if not SMF:
                a(f"v_perm_b32 v6, v{st+1}, v{st}, v10")
                a(f"v_perm_b32 v7, v{st+1}, v{st}, v11")
            if OPT.get("offen") == 2:
                a(f"ds_read_b128 v[{st}:{st+3}], v{V_PTR} offset:{32*(r+D+LS)}")
            else:
                a(f"ds_read_b96 v[{st}:{st+2}], v{V_PTR} offset:{32*(r+D+LS)}")
            if r == D - 1:
                a(f"v_add_u32 v{V_PTR}, {32*D}, v{V_PTR}")
                a(f"s_branch M_B{j}_0")
    for r in range(D):
        a(f"""
M_PE{r}:
    s_cmp_ge_u32 s{S_PH}, {8*OPT.get("nph", 8)}
    s_cbranch_scc1 M_epi
""")
        for j in range(NSLOT):
            if j % 2 == 0:
                a(f"s_add_u32 s24, s{S_PH}, {j//2}")
            a(f"v_readlane_b32 s{S_CNT+j}, v{j % 2}, s24")
        a(f"s_add_u32 s{S_PH}, s{S_PH}, 8")
        if OPT.get("phbar"):
            a("s_barrier")
        if OPT.get("prio") == 1:
            a(f"s_lshr_b32 s24, s{S_PH}, 1")
            a(f"s_xor_b32 s24, s24, s{S_WAVE}")
            a(f"s_bitcmp1_b32 s24, 2")
            a(f"s_setprio {PB}")
            a(f"s_cbranch_scc0 M_B0_{r}")
            a(f"s_setprio {PB+1}")
        a(f"s_branch M_B0_{r}")
    a("M_epi:")
    if OPT.get("noepi") == 1:
        a("s_endpgm")
    if OPT.get("eprio"):
        a("s_setprio 0")
    if STAMP:
        a("s_waitcnt vmcnt(0) lgkmcnt(0)")
    stamp(a, 4)
    cstamp(a, 2)
    if OPT.get("noepi") == 2:
        a("s_branch M_end")
    if OPT.get("ebar"):
        a("s_barrier")
    if OPT.get("offen") == 2:
        a(f"v_mbcnt_lo_u32_b32 v{L}, -1, 0")
        a(f"v_mbcnt_hi_u32_b32 v{L}, -1, v{L}")
    a(f"""
    ; v0 = staging write addr, v1 = staging read addr, v2 = W image addr, v4 = local node, v5 = q
    v_lshl_add_u32 v0, v{L}, 3, s{S_REGION}
    v_and_b32 v4, 15, v{L}
    v_lshrrev_b32 v5, 4, v{L}
    v_mul_u32_u24 v1, {STG}, v4
    v_lshl_add_u32 v1, v5, 4, v1
    v_add_u32 v1, s{S_REGION}, v1
    v_lshlrev_b32 v2, 4, v{L}
    v_add_u32 v2, {L_W}, v2
    s_lshl_b32 s24, s{S_WAVE}, 6
    v_lshl_add_u32 v4, v4, 2, s24
    ds_read_b32 v4, v4 offset:{L_MAP}
    s_mov_b32 s26, 0x80008000
""")

    of = ["", " nt", " sc1", " sc0 sc1"][OPT.get("ost", 1)]
    Q = [[ACC + 16 * j + 4 * kc for j in range(NSLOT)] for kc in range(4)]
    BFS = [[8, 12, 16, 20, 24, 28, 32, 36], Q[0][0:8], Q[2][3:11], Q[3][0:8]]
    BF = {(kc, c, ks): BFS[kc][c * 2 + ks] for kc in range(4) for c in range(4) for ks in range(2)}
    outq = Q[1][0:13] + Q[2][0:3]
    order = [(0, 0), (0, 1), (0, 2), (0, 3)] + [(o, t) for t in range(4) for o in (1, 2, 3)]
    OUT = {ot: outq[i] for i, ot in enumerate(order)}
    AF = Q[0][8:13] + [40, 44]
    GATE = Q[3][8:12]
    NA = len(AF)
    S = Sched(a)

    def f_cvt(kc):
        ops = []
        for j in range(NSLOT):
            q = Q[kc][j]
            ops.append(("valu", f"v_cvt_pk_bf16_f32 v{q}, v{q}, v{q+1}", [q, q + 1], [q]))
            ops.append(("valu", f"v_cvt_pk_bf16_f32 v{q+1}, v{q+2}, v{q+3}", [q + 2, q + 3], [q + 1]))
        return ops

    def f_w(kc):
        return [("dsw", f"ds_write_b64 v0, v[{Q[kc][j]}:{Q[kc][j]+1}] offset:{STG*j}", [Q[kc][j], Q[kc][j] + 1], [])
                for j in range(NSLOT)]

    def f_rb(kc):
        return [("dsr", f"ds_read_b128 v[{BF[kc,c,ks]}:{BF[kc,c,ks]+3}], v1 offset:{c*64+ks*256}", [], R(BF[kc, c, ks]))
                for c in range(4) for ks in range(2)]

    use = {m: [] for m in range(5)}
    negs = []
    for kc in range(4):
        for c in range(4):
            if kc == 0:
                m, o = (0, 0) if c == 0 else (3, c)
            else:
                jj = kc - 1
                if c == 0:
                    m, o = 2, kc
                elif c - 1 == jj:
                    m, o = 1, 0
                else:
                    m, o = 4, 1 + (3 - jj - (c - 1))
                    if c - 1 != (jj + 1) % 3:
                        negs.append((kc, c))
            use[m].append((kc, c, o))
    frs = [(0, ks, t) for t in range(4) for ks in range(2)] + [(3, ks, t) for t in range(4) for ks in range(2)] \
        + [(1, ks, t) for t in range(4) for ks in range(2)] \
        + [(m, ks, t) for t in range(4) for m in (2, 4) for ks in range(2)]

    def f_af(n):
        m, ks, t = frs[n]
        q = AF[n % NA]
        return ("dsr", f"ds_read_b128 v[{q}:{q+3}], v2 offset:{((m*2+ks)*4+t)*1024}", [], R(q))

    def emit(o):
        if OPT.get("nostore") and o[0] == "store":
            return
        if OPT.get("nodsw") and o[0] == "dsw":
            return
        if OPT.get("nodsr") and o[0] == "dsr":
            return
        if OPT.get("novalu") and o[0] in ("valu", "trans") and "v4" not in o[1]:
            return
        S.op(o[0], o[1], o[2], o[3])

    for o in f_cvt(0):
        emit(o)
    a("s_waitcnt vmcnt(0) lgkmcnt(0)")
    for o in f_w(0) + f_rb(0):
        emit(o)
    for n in range(NA):
        emit(f_af(n))
    for o in f_cvt(1) + f_w(1):
        emit(o)
    neg_ops = [("valu", f"v_xor_b32 v{BF[kc,c,kk]+i}, s26, v{BF[kc,c,kk]+i}", [BF[kc, c, kk] + i], [BF[kc, c, kk] + i])
               for (kc, c) in negs for kk in range(2) for i in range(4)]
    addr_ops = [
        ("valu", f"v_cmp_gt_u32 vcc, {NPB}, v4", [4], []),
        ("other", f"s_mul_i32 s24, s2, {NPB}", [], []),
        ("valu", "v_add_u32 v4, s24, v4", [4], [4]),
        ("valu", "v_lshlrev_b32 v4, 9, v4", [4], [4]),
        ("valu", "v_lshl_add_u32 v4, v5, 4, v4", [4, 5], [4]),
        ("valu", f"v_mov_b32 v5, {OOB:#x}", [], [5]),
        ("valu", "v_cndmask_b32 v4, v5, v4, vcc", [4, 5], [4]),
        ("other", "s_mov_b32 s24, 0xbfb8aa3b", [], []),
    ]
    fill = f_rb(1) + f_cvt(2) + f_w(2) + f_rb(2) + f_cvt(3) + f_w(3) + f_rb(3) + addr_ops + neg_ops
    gate_ops = []
    for t in range(4):
        for i in range(4):
            gate_ops.append(("valu", f"v_mul_f32 v{GATE[t]+i}, s24, v{OUT[0,t]+i}", [OUT[0, t] + i], [GATE[t] + i]))
    G = [GATE[t] + i for t in range(4) for i in range(4)]
    gate_ops += [("trans", f"v_exp_f32 v{g}, v{g}", [g], [g]) for g in G]
    gate_ops += [("valu", f"v_add_f32 v{g}, 1.0, v{g}", [g], [g]) for g in G]
    gate_ops += [("trans", f"v_rcp_f32 v{g}, v{g}", [g], [g]) for g in G]
    PK = [8, 12, 16, 20, 24, 28, 32, 36]

    def f_store(o, k):
        ops = []
        p = PK[o * 2 + k]
        d0, d1 = OUT[o, 2 * k], OUT[o, 2 * k + 1]
        if o:
            for t in (2 * k, 2 * k + 1):
                d = OUT[o, t]
                g = GATE[t]
                ops.append(("valu", f"v_pk_mul_f32 v[{d}:{d+1}], v[{d}:{d+1}], v[{g}:{g+1}]", [d, d + 1, g, g + 1], [d, d + 1]))
                ops.append(("valu", f"v_pk_mul_f32 v[{d+2}:{d+3}], v[{d+2}:{d+3}], v[{g+2}:{g+3}]", [d + 2, d + 3, g + 2, g + 3], [d + 2, d + 3]))
        for i, dd in enumerate((d0, d0 + 2, d1, d1 + 2)):
            ops.append(("valu", f"v_cvt_pk_bf16_f32 v{p+i}, v{dd}, v{dd+1}", [dd, dd + 1], [p + i]))
        ops.append(("store", f"buffer_store_dwordx4 v[{p}:{p+3}], v4, s[{S_OUT}:{S_OUT+3}], 0 offen offset:{o*128+k*64}{of}",
                    R(p) + [4], []))
        return ops

    def gemm(S, fill, late):
        fill = list(fill)
        touched = set()
        for n, (m, ks, t) in enumerate(frs):
            if n in (14, 16, 24):
                lim = {14: len(f_rb(1) + f_cvt(2) + f_w(2)), 16: 3 * 8 + 2 * 39, 24: 10 ** 6}[n]
                while fill and done[0] < lim:
                    emit(fill.pop(0))
                    done[0] += 1
            fill += late.get(n, [])
            q = AF[n % NA]
            for (kc, c, o) in use[m]:
                b = BF[kc, c, ks]
                d = OUT[o, t]
                first = (o, t) not in touched
                touched.add((o, t))
                cin = "0" if first else f"v[{d}:{d+3}]"
                if not OPT.get("noem"):
                  S.op("mfma", f"v_mfma_f32_16x16x32_bf16 v[{d}:{d+3}], v[{q}:{q+3}], v[{b}:{b+3}], {cin}",
                     R(q) + R(b), R(d), [] if first else R(d))
                for _ in range(FPM):
                    if fill:
                        emit(fill.pop(0))
                        done[0] += 1
            if n + NA < len(frs):
                emit(f_af(n + NA))
        return fill

    FPM = OPT.get("fpm", 3)
    done = [0]
    a(f"s_or_b32 s27, s{S_C0}, s{S_MORE}")
    a("s_cmp_eq_u32 s27, 0")
    a("s_cbranch_scc0 M_multi")
    import copy
    S2 = copy.deepcopy(S)
    S2.a = a
    if OPT.get("adj"):
        late = {25: gate_ops + f_store(0, 0)[:-1] + f_store(0, 1) + f_store(0, 0)[-1:],
                33: f_store(1, 0)[:-1] + f_store(2, 0)[:-1] + f_store(3, 0)[:-1]}
        rest = gemm(S, fill, late)
        for o in rest + f_store(1, 1) + f_store(1, 0)[-1:] + f_store(2, 1) + f_store(2, 0)[-1:] + f_store(3, 1) + f_store(3, 0)[-1:]:
            emit(o)
    else:
        late = {25: gate_ops + f_store(0, 0) + f_store(0, 1),
                33: f_store(1, 0) + f_store(2, 0) + f_store(3, 0)}
        rest = gemm(S, fill, late)
        for o in rest + f_store(1, 1) + f_store(2, 1) + f_store(3, 1):
            emit(o)
    a("s_branch M_end")
    a("M_multi:")
    S = S2
    done = [0]
    rest = gemm(S, fill, {})
    for o in rest:
        emit(o)
    a(f"""
    s_nop 7
    v_lshlrev_b32 v0, 1, v4
    v_cndmask_b32 v0, v5, v0, vcc
    s_cmp_eq_u32 s{S_C0}, 0
    s_cbranch_scc1 M_noload
""")

    def poff(o, t):
        return o * 256 + (t >> 1) * 128 + (t & 1) * 16
    for o in range(4):
        for t in range(4):
            a(f"buffer_load_dwordx4 v[{8+4*t}:{11+4*t}], v0, s[{S_PART}:{S_PART+3}], 0 offen offset:{poff(o,t)} sc1")
        a("s_waitcnt vmcnt(0)")
        for t in range(4):
            for i in range(4):
                a(f"v_add_f32 v{OUT[o,t]+i}, v{OUT[o,t]+i}, v{8+4*t+i}")
    a(f"""
M_noload:
    s_cmp_eq_u32 s{S_MORE}, 0
    s_cbranch_scc1 M_final
""")
    for o in range(4):
        for t in range(4):
            q = OUT[o, t]
            a(f"buffer_store_dwordx4 v[{q}:{q+3}], v0, s[{S_PART}:{S_PART+3}], 0 offen offset:{poff(o,t)} sc1")
    a(f"""
    s_add_u32 s{S_C0}, s{S_C0}, s{S_TAKE}
    s_waitcnt vmcnt(0) lgkmcnt(0)
    s_barrier
    s_branch M_round
M_final:
""")
    S = Sched(a)
    for o in gate_ops:
        emit(o)
    for o in range(4):
        for k in range(2):
            for op in f_store(o, k):
                emit(op)
    a("M_end:")
    if OPT.get("es"):
        stamp(a, 3)
    if STAMP:
        a("s_waitcnt vmcnt(0)")
    stamp(a, 5)
    stamp_flush(a, 16, 1, 0, S_WAVE)
    a("""
M_done:
    s_endpgm
""")


def descriptor(name, vgpr, sgpr):
    acc = (vgpr + 3) // 4 * 4
    return f"""
.p2align 6
.amdhsa_kernel {name}
  .amdhsa_next_free_vgpr {vgpr}
  .amdhsa_next_free_sgpr {sgpr}
  .amdhsa_accum_offset {acc}
  .amdhsa_group_segment_fixed_size 0
  .amdhsa_kernarg_size 96
  .amdhsa_user_sgpr_count 2
  .amdhsa_user_sgpr_kernarg_segment_ptr 1
  .amdhsa_system_sgpr_workgroup_id_x 1
  .amdhsa_float_denorm_mode_32 3
.end_amdhsa_kernel
"""


def main():
    global STAMP
    for arg in list(sys.argv):
        if "=" in arg:
            k, v = arg.split("=")
            OPT[k] = int(v)
            sys.argv.remove(arg)
    if "--stamp" in sys.argv:
        STAMP = True
        sys.argv.remove("--stamp")
    ref = open(f"cdna_kernels/{NAME}.s.ref").read().split("\n")
    head = [l for l in ref if l.startswith(";") and "@launch" not in l and "Override launch" not in l
            and "grid=ceil" not in l]
    a = Asm()
    gen_part(a)
    gen_main(a)
    out = "\n".join(head) + "\n"
    out += f"; @launch kernel=part_kernel grid=({NC+6},1,1) block=(832,1,1) lds={K1_LDS}\n"
    out += f"; @launch kernel=main_kernel grid=({NB},1,1) block=(512,1,1) lds={L_TOTAL}\n"
    out += '.amdgcn_target "amdgcn-amd-amdhsa--gfx950"\n.text\n'
    out += a.text()
    out += '.section .rodata,"a"\n'
    out += descriptor("part_kernel", 88, 102 if STAMP else 32)
    out += descriptor("main_kernel", 256, 102)
    path = sys.argv[1] if len(sys.argv) > 1 else f"cdna_kernels/{NAME}.s"
    open(path, "w").write(out)
    print("wrote", path, len(out), "bytes; LDS", L_TOTAL, "CAPP", CAPP)


if __name__ == "__main__":
    main()
```

```python
import sys

NAME = "standalone__tensor_product_equiv_equiformer__graph"
N = 25000
E = 800000
NPB = 98
NB = 256
NC = 250
CH = 3200
P = 8
PH = (N + P - 1) // P
NSLOT = 13
import os
D = int(os.environ.get("DD", "6"))
LS = int(os.environ.get("LSS", "3"))
RECB = 12

OPT = {"st": 1, "warm": 1, "stage": 1, "ld": 0, "bal": 0, "prio": 0, "cpf": 0, "rot": 1, "dcm": 1, "dsc": 1, "smf": 1, "eprio": 1}

REC_OFF = 0
REC_BYTES = NC * CH * RECB
DESC_OFF = 0x1000000
WIMG_OFF = 0x1100000
WIMG_BYTES = 5 * 8192
PART_OFF = 0x2000000
PART_BYTES = NB * NPB * 1024

L_FLAG = 0
L_DUMMY = 256
L_HIST = 512
L_TAB = L_HIST + 4096
L_RANK = L_TAB + 8192
L_MAP = L_RANK + 512
L_W = L_MAP + 512
L_REG = L_W + WIMG_BYTES
REGB = 10240
L_TOTAL = L_REG + 8 * REGB
CAPP = REGB // 32 - (D + LS + 2)
STG = 528
OOB = 0x7FFFF000
PADIDX = 0x7FFF

STAMP = False
STAMP_OFF = 0x8000000


def magic(div, maxv):
    for k in range(31, 15, -1):
        m = -(-(1 << k) // div)
        if m < (1 << 24) and m * maxv < (1 << 32):
            e = m * div - (1 << k)
            if e * maxv < (1 << k):
                assert all((v * m) >> k == v // div for v in range(maxv + 1))
                return m, k
    raise ValueError


class Asm:
    def __init__(self):
        self.lines = []

    def __call__(self, s):
        for ln in s.strip("\n").split("\n"):
            ln = ln.strip()
            if ln:
                self.lines.append(("" if ln.endswith(":") else "    ") + ln)

    def text(self):
        return "\n".join(self.lines) + "\n"


def srd(a, d, base, nrec, add=0, stride=0):
    if add:
        a(f"s_add_u32 s{d}, s{base}, {add}")
        a(f"s_addc_u32 s{d+1}, s{base+1}, 0")
        a(f"s_and_b32 s{d+1}, s{d+1}, 0xffff")
    else:
        a(f"s_mov_b32 s{d}, s{base}")
        a(f"s_and_b32 s{d+1}, s{base+1}, 0xffff")
    if stride:
        a(f"s_or_b32 s{d+1}, s{d+1}, {stride << 16:#x}")
    a(f"s_mov_b32 s{d+2}, {nrec}")
    a(f"s_mov_b32 s{d+3}, 0x20000")


def pstamp(a, k):
    if STAMP and OPT.get("ps"):
        a("s_memrealtime s[42:43]")
        a("s_waitcnt lgkmcnt(0)")
        a(f"s_mov_b32 s{96+k}, s42")


MAINK = [False]


def stamp(a, k):
    if OPT.get("ps") and MAINK[0] and k not in (0, 3):
        return
    if STAMP:
        a("s_memrealtime s[42:43]")
        a("s_waitcnt lgkmcnt(0)")
        a(f"s_mov_b32 s{96+k}, s42")


def cstamp(a, k):
    if STAMP and OPT.get("clk"):
        a("s_memtime s[42:43]")
        a("s_waitcnt lgkmcnt(0)")
        a(f"s_mov_b32 s{96+k}, s42")


def stamp_flush(a, wsreg, kern, vt, swave):
    if STAMP:
        a("s_mov_b64 exec, 1")
        a(f"s_lshl_b32 s42, s2, 4")
        a(f"s_add_u32 s42, s42, s{swave}")
        a(f"s_lshl_b32 s42, s42, 5")
        a(f"s_add_u32 s42, s42, {STAMP_OFF + kern * 0x100000}")
        a(f"v_mov_b32 v{vt}, s42")
        for k in range(6):
            a(f"v_mov_b32 v{vt+1}, s{96+k}")
            a(f"global_store_dword v{vt}, v{vt+1}, s[{wsreg}:{wsreg+1}] offset:{4*k}")
            a("s_nop 1")


def wave_scan(a, v):
    for sh in (1, 2, 4, 8):
        a("s_nop 1")
        a(f"v_add_u32_dpp v{v}, v{v}, v{v} row_shr:{sh} row_mask:0xf bank_mask:0xf bound_ctrl:0")
    a("s_nop 1")
    a(f"v_add_u32_dpp v{v}, v{v}, v{v} row_bcast:15 row_mask:0xa bank_mask:0xf")
    a("s_nop 1")
    a(f"v_add_u32_dpp v{v}, v{v}, v{v} row_bcast:31 row_mask:0xc bank_mask:0xf")
    a("s_nop 1")


class Sched:
    def __init__(self, a):
        self.a = a
        self.lds = []
        self.slot = 0
        self.vw = {}
        self.tw = {}
        self.mw = {}
        self.mc = {}
        self.sw = {}

    def _emit(self, t):
        self.a(t)
        self.slot += 1

    def _nop(self, need):
        while need > 0:
            k = min(need, 8)
            self.a(f"s_nop {k-1}")
            self.slot += k
            need -= k

    def op(self, kind, text, reads=(), writes=(), srcc=()):
        reads, writes, srcc = set(reads), set(writes), set(srcc)
        touched = reads | writes | srcc
        last = -1
        for i, d in enumerate(self.lds):
            if d & touched:
                last = i
        if last >= 0:
            n = len(self.lds) - 1 - last
            self._emit(f"s_waitcnt lgkmcnt({min(n, 15)})")
            self.lds = self.lds[len(self.lds) - min(n, 15):] if n else []
        need = 0
        if kind == "mfma":
            for r in reads | srcc:
                if r in self.vw:
                    need = max(need, 2 - (self.slot - self.vw[r] - 1))
            for r in reads:
                if r in self.mw:
                    need = max(need, 8 - (self.slot - self.mw[r] - 1))
        else:
            for r in reads | writes:
                if r in self.mw:
                    need = max(need, 8 - (self.slot - self.mw[r] - 1))
            for r in writes:
                if r in self.mc:
                    need = max(need, 3 - (self.slot - self.mc[r] - 1))
                if r in self.sw:
                    need = max(need, 2 - (self.slot - self.sw[r] - 1))
            if kind in ("valu", "store", "dsw"):
                for r in reads:
                    if r in self.tw:
                        need = max(need, 1 - (self.slot - self.tw[r] - 1))
        self._nop(need)
        me = self.slot
        self._emit(text)
        if kind in ("valu", "trans"):
            for r in writes:
                self.vw[r] = me
                if kind == "trans":
                    self.tw[r] = me
        elif kind == "mfma":
            for r in writes:
                self.mw[r] = me
            for r in srcc:
                self.mc[r] = me
        elif kind == "dsr":
            self.lds.append(writes)
        elif kind == "dsw":
            self.lds.append(set())
        elif kind == "store":
            for r in reads:
                self.sw[r] = me


def R(b, n=4):
    return list(range(b, b + n))


def stflags():
    return ["", " sc1", " sc0 sc1", " nt"][OPT["st"]]


K1_STG = 1024
K1_LDS = K1_STG + 832 * 48


def gen_part(a):
    mB, kB = magic(NPB, 32767)
    G = OPT.get("stag", 1)
    NPH = OPT.get("nph", 8)
    PHS = -(-N * G // (NPH * G - (G - 1)))
    PHS = -(-PHS // G) * G
    assert (N - 1 + (G - 1) * (PHS // G)) // PHS <= 7
    mP, kP = magic(PHS, 32767)
    sf = stflags()
    df = ["", " sc1"][OPT.get("dsc", 0)]
    lf = ["", " nt", " sc1", " sc0 sc1 nt"][OPT.get("ld", 0)]
    a(f"""
.p2align 8
.globl part_kernel
.type part_kernel,@function
part_kernel:
    s_cmp_ge_u32 s2, {NC + 6}
    s_cbranch_scc1 P_done
    s_load_dwordx4 s[4:7], s[0:1], 8
    s_load_dwordx4 s[8:11], s[0:1], 24
    s_load_dwordx4 s[12:15], s[0:1], 40
    s_load_dwordx2 s[16:17], s[0:1], 56
    s_load_dwordx2 s[18:19], s[0:1], 88
    s_load_dwordx2 s[28:29], s[0:1], 0
    s_load_dwordx2 s[30:31], s[0:1], 72
    s_cmp_ge_u32 s2, {NC}
    s_cbranch_scc1 P_prep
""")
    if STAMP:
        a("v_lshrrev_b32 v1, 6, v0")
        a("s_nop 0")
        a("v_readfirstlane_b32 s41, v1")
    stamp(a, 0)
    a(f"""
    v_lshlrev_b32 v1, 2, v0
    v_mov_b32 v2, 0
    v_cmp_gt_u32 vcc, 256, v0
    s_and_saveexec_b64 s[20:21], vcc
    ds_write_b32 v1, v2
    s_mov_b64 exec, s[20:21]
    s_mul_i32 s3, s2, {CH}
    v_lshl_add_u32 v3, v0, 2, s3
    v_lshlrev_b32 v4, 2, v3
    v_lshlrev_b32 v5, 1, v3
    v_mul_u32_u24 v6, 6, v3
    v_cmp_gt_u32 vcc, {CH // 4}, v0
    s_and_saveexec_b64 s[20:21], vcc
    s_waitcnt lgkmcnt(0)
    global_load_dwordx4 v[8:11], v4, s[10:11]{lf}
    s_barrier
    global_load_dwordx4 v[12:15], v4, s[8:9]{lf}
    global_load_dwordx2 v[16:17], v5, s[6:7]{lf}
    global_load_dwordx4 v[20:23], v6, s[4:5]{lf}
    global_load_dwordx2 v[24:25], v6, s[4:5] offset:16{lf}
""")
    a(f"""
    v_mov_b32 v2, 1
    s_waitcnt vmcnt(4)
""")
    stamp(a, 1)
    for i in range(4):
        a(f"""
    v_mul_u32_u24 v{28+i}, {mB}, v{8+i}
    v_lshrrev_b32 v{28+i}, {kB}, v{28+i}
    v_min_u32 v{28+i}, 255, v{28+i}
    v_lshlrev_b32 v{36+i}, 2, v{28+i}
    ds_add_rtn_u32 v{32+i}, v{36+i}, v2
""")
    if OPT.get("cpf", 1):
        a(f"""
    s_getpc_b64 s[24:25]
P_pc:
    s_add_u32 s24, s24, main_kernel-P_pc
    s_addc_u32 s25, s25, 0
    s_lshr_b32 s3, s2, 3
    s_lshl_b32 s3, s3, 10
    v_subrev_u32 v26, {CH//4 - 16}, v0
    v_lshl_add_u32 v26, v26, 6, s3
    v_min_u32 v26, M_multi-main_kernel, v26
    s_movk_i32 s3, {CH//4 - 16}
    v_cmp_le_u32 s[26:27], s3, v0
    s_and_b64 exec, exec, s[26:27]
    s_cbranch_execz P_nopf
    global_load_dword v27, v26, s[24:25]
P_nopf:
    """)
    if OPT.get("tlb"):
        pg = OPT["tlb"]
        a(f"""
    s_mov_b64 exec, -1
    s_lshr_b32 s3, s2, 3
    s_lshl_b32 s3, s3, 7
    v_lshlrev_b32 v26, {pg}, v0
    v_add_u32 v26, s3, v26
    v_cmp_gt_u32 vcc, {N*512}, v26
    s_and_saveexec_b64 s[26:27], vcc
    s_cbranch_execz P_notlb
    global_load_dword v84, v26, s[28:29]
    global_load_dword v85, v26, s[30:31]
P_notlb:
""")
    a(f"""
    s_mov_b64 exec, -1
    s_waitcnt lgkmcnt(0)
    s_barrier
    v_cmp_gt_u32 vcc, 64, v0
    s_cbranch_vccz P_skipscan
    v_lshlrev_b32 v1, 4, v0
    ds_read_b128 v[72:75], v1
    s_waitcnt lgkmcnt(0)
    v_add_u32 v76, v72, v73
    v_add_u32 v77, v76, v74
    v_add_u32 v78, v77, v75
    v_mov_b32 v79, v78
""")
    wave_scan(a, 79)
    a(f"""
    v_sub_u32 v80, v79, v78
    v_add_u32 v81, v80, v72
    v_add_u32 v82, v80, v76
    v_add_u32 v83, v80, v77
    ds_write_b128 v1, v[80:83]
    v_lshl_or_b32 v72, v72, 16, v80
    v_lshl_or_b32 v73, v73, 16, v81
    v_lshl_or_b32 v74, v74, 16, v82
    v_lshl_or_b32 v75, v75, 16, v83
    v_mov_b32 v84, v72
    v_mov_b32 v85, v73
    v_mov_b32 v86, v74
    v_mov_b32 v87, v75
    s_waitcnt lgkmcnt(0)
P_skipscan:
    v_cmp_gt_u32 vcc, {CH // 4}, v0
    s_and_saveexec_b64 s[20:21], vcc
    s_movk_i32 s22, {NPB}
    s_mov_b32 s23, 0xffff0000
""")
    for i in range(4):
        a(f"""
    v_mul_u32_u24 v1, s22, v{28+i}
    v_sub_u32 v1, v{8+i}, v1
    v_and_b32 v1, 127, v1
    v_lshlrev_b32 v{8+i}, 21, v1
""")
        if OPT.get("rot"):
            a(f"v_lshrrev_b32 v{72+i}, 5, v{28+i}")
        if G > 1:
            a(f"v_and_b32 v{72+i}, {G-1}, v{28+i}")
            a(f"v_mul_u32_u24 v{72+i}, {PHS//G}, v{72+i}")
    a("s_barrier")
    stamp(a, 2)
    for i in range(4):
        a(f"ds_read_b32 v{28+i}, v{36+i}")
    def emit_meta():
        for i in range(4):
            r = 40 + 4 * i
            if G > 1:
                a(f"v_add_u32 v4, v{72+i}, v{12+i}")
            a(f"""
    v_mul_u32_u24 v4, {mP}, v{4 if G > 1 else 12+i}
    v_lshrrev_b32 v4, {kP}, v4
    v_min_u32 v4, {NPH-1}, v4
""")
            if OPT.get("rot"):
                a(f"v_sub_u32 v4, v4, v{72+i}")
                a(f"v_and_b32 v4, 7, v4")
            a(f"""
    v_lshl_or_b32 v4, v4, 18, v{8+i}
    v_and_b32 v3, 0x7fff, v{12+i}
    v_or_b32 v{r+2}, v3, v4
""")


    EARLY = OPT.get("early", 1) and OPT["stage"] and not OPT.get("cpf") and not OPT.get("tlb")
    if EARLY:
        a("s_waitcnt lgkmcnt(0)")
        for i in range(4):
            a(f"v_add_u32 v{28+i}, v{28+i}, v{32+i}")
            a(f"v_mul_u32_u24 v{28+i}, {RECB}, v{28+i}")
            a(f"v_add_u32 v{28+i}, {K1_STG}, v{28+i}")
        a("s_waitcnt vmcnt(3)")
        emit_meta()
        for i in range(4):
            a(f"ds_write_b32 v{28+i}, v{42+4*i} offset:8")
        a("s_waitcnt vmcnt(2)")
        for i in range(4):
            src = 16 + i // 2
            if i % 2 == 0:
                a(f"v_lshlrev_b32 v{56+i}, 16, v{src}")
            else:
                a(f"v_and_b32 v{56+i}, s23, v{src}")
    a("s_waitcnt vmcnt(0)")
    stamp(a, 3)
    a(f"""
    v_cmp_gt_u32 vcc, 64, v0
    s_cbranch_vccz P_nodesc
""")
    if OPT.get("dcm"):
        a(f"""
    s_lshl_b32 s3, s2, 10
    s_add_u32 s3, s3, {DESC_OFF}
    v_lshl_add_u32 v1, v0, 4, s3
    global_store_dwordx4 v1, v[84:87], s[18:19]{df}
""")
    else:
        a(f"""
    s_lshl_b32 s3, s2, 2
    s_add_u32 s3, s3, {DESC_OFF}
    v_lshlrev_b32 v1, 12, v0
    v_add_u32 v1, s3, v1
    global_store_dword v1, v84, s[18:19]{df}
    global_store_dword v1, v85, s[18:19] offset:1024{df}
    global_store_dword v1, v86, s[18:19] offset:2048{df}
    global_store_dword v1, v87, s[18:19] offset:3072{df}
""")
    a("P_nodesc:")
    if OPT.get("k1warm"):
        a(f"""
    s_mul_i32 s3, s2, {100*512}
    v_lshl_add_u32 v76, v0, 7, s3
    v_cmp_gt_u32 vcc, 400, v0
    s_and_saveexec_b64 s[26:27], vcc
    s_cbranch_execz P_now
    global_load_dword v77, v76, s[28:29]
P_now:
    s_mov_b64 exec, s[26:27]
""")
    if not EARLY:
        emit_meta()
    for i in range(0 if not EARLY else 4, 4):
        src = 16 + i // 2
        if i % 2 == 0:
            a(f"v_lshlrev_b32 v{56+i}, 16, v{src}")
        else:
            a(f"v_and_b32 v{56+i}, s23, v{src}")
    for k in range(12):
        src = 20 + k // 2
        if k % 2 == 0:
            a(f"v_lshlrev_b32 v{60+k}, 16, v{src}")
        else:
            a(f"v_and_b32 v{60+k}, s23, v{src}")
    for i in range(4):
        r = 40 + 4 * i
        for j in range(3):
            a(f"v_mul_f32 v{60+3*i+j}, v{56+i}, v{60+3*i+j}")
        a(f"v_cvt_pk_bf16_f32 v{r}, v{56+i}, v{60+3*i}")
        a(f"v_cvt_pk_bf16_f32 v{r+1}, v{61+3*i}, v{62+3*i}")
        if EARLY:
            a(f"ds_write2_b32 v{28+i}, v{r}, v{r+1} offset0:0 offset1:1")
    if not EARLY:
        a("s_waitcnt lgkmcnt(0)")
    a(f"s_mul_i32 s3, s2, {CH * RECB}")
    if OPT["stage"]:
        for i in range(0 if not EARLY else 4, 4):
            r = 40 + 4 * i
            a(f"""
    v_add_u32 v{28+i}, v{28+i}, v{32+i}
    v_mul_u32_u24 v{28+i}, {RECB}, v{28+i}
    v_add_u32 v{28+i}, {K1_STG}, v{28+i}
    ds_write2_b32 v{28+i}, v{r}, v{r+1} offset0:0 offset1:1
    ds_write_b32 v{28+i}, v{r+2} offset:8
""")
        nq = CH * RECB // 16
        a(f"""
    s_mov_b64 exec, -1
    v_lshlrev_b32 v1, 4, v0
    v_add_u32 v2, s3, v1
    s_waitcnt lgkmcnt(0)
    s_barrier
""")
        for i in range(3):
            a(f"ds_read_b128 v[{8+4*i}:{11+4*i}], v1 offset:{K1_STG + 832*16*i}")
        a(f"v_add_u32 v3, {832*16}, v2")
        a(f"v_add_u32 v4, {2*832*16}, v2")
        a(f"v_cmp_gt_u32 vcc, {nq - 2*832}, v0")
        a("s_waitcnt lgkmcnt(2)")
        a(f"global_store_dwordx4 v2, v[8:11], s[18:19]{sf}")
        a("s_waitcnt lgkmcnt(1)")
        a(f"global_store_dwordx4 v3, v[12:15], s[18:19]{sf}")
        a("s_and_saveexec_b64 s[20:21], vcc")
        a("s_cbranch_execz P_fin")
        a("s_waitcnt lgkmcnt(0)")
        a(f"global_store_dwordx4 v4, v[16:19], s[18:19]{sf}")
        a("P_fin:")
    else:
        a(f"s_movk_i32 s22, {RECB}")
        for i in range(4):
            r = 40 + 4 * i
            a(f"""
    v_add_u32 v{28+i}, v{28+i}, v{32+i}
    v_mul_u32_u24 v{28+i}, {RECB}, v{28+i}
    v_add_u32 v{28+i}, s3, v{28+i}
    global_store_dwordx3 v{28+i}, v[{r}:{r+2}], s[18:19]{sf}
""")
    stamp(a, 4)
    if STAMP:
        a("s_waitcnt vmcnt(0)")
    stamp(a, 5)
    stamp_flush(a, 18, 0, 1, 41)
    a("s_branch P_done")
    a(f"""
P_prep:
    s_waitcnt lgkmcnt(0)
    s_lshl_b32 s3, s2, {10 if OPT.get("dcm") else 2}
    s_add_u32 s3, s3, {DESC_OFF}
    v_lshlrev_b32 v1, {2 if OPT.get("dcm") else 10}, v0
    v_add_u32 v1, s3, v1
    v_mov_b32 v2, 0
    v_cmp_gt_u32 vcc, 256, v0
    s_and_saveexec_b64 s[20:21], vcc
    s_cbranch_execz P_prep1
    global_store_dword v1, v2, s[18:19]{df}
P_prep1:
    s_mov_b64 exec, s[20:21]
    s_sub_u32 s3, s2, {NC}
    s_cmp_eq_u32 s3, 5
    s_cbranch_scc1 P_done
    v_cmp_gt_u32 vcc, 512, v0
    s_and_saveexec_b64 s[20:21], vcc
    s_cbranch_execz P_done
    s_cmp_lt_u32 s3, 2
    s_cselect_b32 s24, s14, s16
    s_cselect_b32 s25, s15, s17
    s_sub_u32 s22, s3, 2
    s_cselect_b32 s22, s3, s22
    s_lshl_b32 s22, s22, 13
    v_lshrrev_b32 v1, 8, v0
    v_bfe_u32 v2, v0, 4, 2
    v_lshl_add_u32 v1, v2, 2, v1
    s_lshl_b32 s23, s3, 7
    v_lshl_add_u32 v4, v1, 3, s23
    global_load_dwordx2 v[16:17], v4, s[12:13]
    global_load_dwordx2 v[18:19], v4, s[12:13] offset:16
    v_lshlrev_b32 v1, 9, v1
    v_bfe_u32 v2, v0, 7, 1
    v_bfe_u32 v3, v0, 2, 2
    v_lshl_add_u32 v2, v2, 2, v3
    v_bfe_u32 v3, v0, 6, 1
    v_lshl_add_u32 v2, v2, 1, v3
    v_and_b32 v3, 3, v0
    v_lshl_add_u32 v2, v2, 2, v3
    v_lshl_add_u32 v1, v2, 1, v1
    v_add_u32 v1, s22, v1
""")
    for e in range(8):
        a(f"global_load_ushort v{8+e}, v1, s[24:25] offset:{128*(8*(e>>2)+(e&3))}")
    a(f"""
    s_lshl_b32 s3, s3, 13
    s_add_u32 s3, s3, {WIMG_OFF}
    v_lshl_add_u32 v1, v0, 4, s3
    s_mov_b32 s23, 0xffff0000
    s_waitcnt vmcnt(0)
""")
    for e in range(8):
        a(f"v_lshlrev_b32 v{8+e}, 16, v{8+e}")
        if e % 2 == 0:
            a(f"v_lshlrev_b32 v2, 16, v{16+e//2}")
        else:
            a(f"v_and_b32 v2, s23, v{16+e//2}")
        a(f"v_mul_f32 v{8+e}, v{8+e}, v2")
    for e in range(4):
        a(f"v_cvt_pk_bf16_f32 v{4+e}, v{8+2*e}, v{9+2*e}")
    a(f"""
    global_store_dwordx4 v1, v[4:7], s[18:19]{df}
P_done:
    s_endpgm
""")


ACC = 48
RING = 12 + 4 * max(LS, 3)
STAGE = 12
V_PTR = 2
V_LANE = 3
S_X = 4
S_REC = 8
S_OUT = 12
S_WS = 16
S_WAVE = 18
S_C0 = 19
S_TAKE = 20
S_MORE = 21
S_REGION = 22
S_PH = 23
S_T = 24
S_CNT = 28
S_LEV = 41
S_MASK = 44
S_PART = 92
NSUB = 3


def gen_main(a):
    MAINK[0] = True
    L = V_LANE
    NU = 6
    RB = 160
    RK = 132
    DS = 128
    BAL = OPT.get("bal", 1)
    a(f"""
.p2align 8
.globl main_kernel
.type main_kernel,@function
main_kernel:
    s_cmp_ge_u32 s2, {NB}
    s_cbranch_scc1 M_done
    s_load_dwordx2 s[16:17], s[0:1], 88
    s_load_dwordx2 s[24:25], s[0:1], 0
    s_load_dwordx2 s[26:27], s[0:1], 72
    v_lshrrev_b32 v1, 6, v0
    v_and_b32 v{L}, 63, v0
    v_readfirstlane_b32 s{S_WAVE}, v1
    s_mov_b32 s{S_C0}, 0
    s_movk_i32 s{S_TAKE}, 48
    s_mul_i32 s{S_REGION}, s{S_WAVE}, {REGB}
    s_add_u32 s{S_REGION}, s{S_REGION}, {L_REG}
""")
    if OPT.get("bperm", 1):
        a("""
    s_and_b32 s3, s2, 7
    s_lshl_b32 s3, s3, 5
    s_lshr_b32 s2, s2, 3
    s_or_b32 s2, s2, s3
""")
    a("s_waitcnt lgkmcnt(0)")
    stamp(a, 0)
    srd(a, S_X, 24, N, stride=512)
    srd(a, S_OUT, 26, N * 512)
    srd(a, S_REC, 16, WIMG_OFF + WIMG_BYTES)
    srd(a, S_PART, 16, PART_BYTES, PART_OFF)

    def any_level(u):
        m = S_MASK + 2 * (u * 4)
        a(f"s_or_b64 s[26:27], s[{m}:{m+1}], s[{m+2}:{m+3}]")
        a(f"s_or_b64 s[26:27], s[26:27], s[{m+4}:{m+5}]")
        a(f"s_or_b64 s[26:27], s[26:27], s[{m+6}:{m+7}]")

    def masked(fn, tag, pre=None):
        for u in range(2, NU):
            a(f"s_cmp_eq_u32 s{S_LEV}, {u}")
            a(f"s_cbranch_scc1 M_{tag}_{u-1}")
        for u in range(NU - 1, -1, -1):
            a(f"M_{tag}_{u}:")
            for k in range(4):
                i = u * 4 + k
                m = S_MASK + 2 * i
                if pre:
                    pre(i, u, k)
                a(f"s_mov_b64 exec, s[{m}:{m+1}]")
                fn(i, u, k)
        a("s_mov_b64 exec, -1")

    a(f"""
M_round:
    v_lshrrev_b32 v1, 3, v{L}
    s_lshl_b32 s24, s{S_WAVE}, 3
    v_add_u32 v1, s24, v1
""")
    if OPT.get("dcm"):
        a(f"""
    s_lshl_b32 s24, s2, 2
    s_add_u32 s24, s24, {DESC_OFF}
    v_lshl_add_u32 v4, v1, 12, s24
    global_load_dword v{DS}, v4, s[16:17]
    global_load_dword v{DS+1}, v4, s[16:17] offset:1024
    global_load_dword v{DS+2}, v4, s[16:17] offset:2048
    global_load_dword v{DS+3}, v4, s[16:17] offset:3072
""")
        if OPT.get("spec"):
            a(f"""
    s_mul_i32 s24, s2, {round(CH * NPB * RECB / N * 64)}
    s_lshr_b32 s24, s24, 6
    s_mul_i32 s26, s{S_WAVE}, {32*CH*RECB}
    s_add_u32 s24, s24, s26
    s_and_b32 s24, s24, -4
    s_mov_b32 m0, {L_DUMMY}
    v_lshrrev_b32 v5, 1, v{L}
    v_mul_u32_u24 v5, {CH*RECB}, v5
    v_and_b32 v6, 1, v{L}
    v_mul_u32_u24 v6, 76, v6
    v_add3_u32 v5, v5, v6, s24
    buffer_load_dword v5, s[{S_REC}:{S_REC+3}], 0 offen lds
""")
    else:
        a(f"""
    s_lshl_b32 s24, s2, 10
    s_add_u32 s24, s24, {DESC_OFF}
    v_lshl_add_u32 v4, v1, 4, s24
    global_load_dwordx4 v[{DS}:{DS+3}], v4, s[16:17]
""")
    a(f"""
    s_lshl_b32 s24, s{S_WAVE}, 9
    v_lshl_add_u32 v0, v{L}, 3, s24
    v_mov_b32 v4, 0
    v_mov_b32 v5, 0
    v_mov_b32 v6, {PADIDX:#x}
    v_mov_b32 v7, 0
    ds_write_b64 v0, v[4:5] offset:{L_HIST}
    ds_write_b64 v4, v[4:5] offset:{L_FLAG}
    v_lshlrev_b32 v2, 3, v{L}
    ds_write_b64 v2, v[4:5] offset:{L_RANK}
    v_lshl_add_u32 v2, v{L}, 4, s{S_REGION}
""")
    for i in range(REGB // 1024):
        a(f"ds_write_b128 v2, v[4:7] offset:{1024*i}")
    a(f"""
    s_mov_b32 s24, {4*CH*RECB}
    v_mul_lo_u32 v1, v1, s24
    v_and_b32 v0, 7, v{L}
    v_add_u32 v0, s{S_C0}, v0
    s_movk_i32 s24, {RECB}
    v_mad_u32_u24 v1, v0, s24, v1
    s_add_u32 s25, s{S_C0}, s{S_TAKE}
    v_mov_b32 v24, 0
    v_mov_b32 v25, {OOB:#x}
    s_waitcnt vmcnt({1 if OPT.get("spec") else 0})
""")
    stamp(a, 1)
    for k in range(4):
        d = DS + k
        a(f"""
    v_lshrrev_b32 v26, 16, v{d}
    v_max_u32 v24, v24, v26
    v_min_u32 v26, s25, v26
    v_sub_u32 v26, v26, v0
    v_and_b32 v{d}, 0xffff, v{d}
    v_mad_u32_u24 v{d}, v{d}, s24, v1
""")
        for u in range(NU):
            m = S_MASK + 2 * (u * 4 + k)
            a(f"v_cmp_lt_i32 s[{m}:{m+1}], {8*u}, v26")
        if k < 3:
            a(f"v_add_u32 v1, {CH*RECB}, v1")
    a(f"s_mov_b32 s{S_LEV}, 2")
    for u in range(2, NU):
        any_level(u)
        a(f"s_cselect_b32 s{S_LEV}, {u+1}, s{S_LEV}")
    for u in range(2, NU):
        a(f"s_cmp_eq_u32 s{S_LEV}, {u}")
        a(f"s_cbranch_scc1 M_ld_{u-1}")
    for u in range(NU - 1, -1, -1):
        a(f"M_ld_{u}:")
        for k in range(4):
            i = u * 4 + k
            m = S_MASK + 2 * i
            r = RB + 4 * i
            a(f"v_cndmask_b32 v{r+3}, v25, v{DS+k}, s[{m}:{m+1}]")
            a(f"buffer_load_dwordx3 v[{r}:{r+2}], v{r+3}, s[{S_REC}:{S_REC+3}], 0 offen offset:{8*RECB*u}" + ['', ' nt', ' sc1'][OPT.get('rf', 0)])
    a(f"""
    s_waitcnt lgkmcnt(0)
    s_barrier
    v_cmp_lt_u32 vcc, s25, v24
    s_and_saveexec_b64 s[26:27], vcc
    v_mov_b32 v1, 1
    ds_write_b32 v4, v1 offset:{L_FLAG+4}
    s_mov_b64 exec, -1
    v_mov_b32 v6, 0
    v_and_b32 v12, 31, v{L}
    v_lshrrev_b32 v24, 5, v{L}
    v_lshl_add_u32 v{V_PTR}, v24, 4, s{S_REGION}
""")
    for j in range(5):
        a(f"v_mfma_f32_32x32x16_bf16 v[{ACC+16*j}:{ACC+16*j+15}], v[4:7], v[4:7], 0")
    SMF = OPT.get("smf", 0)
    if SMF:
        a(f"""
    v_lshrrev_b32 v24, 3, v12
    v_mul_u32_u24 v24, 0x202, v24
    v_add_u32 v24, 0x0c0c0100, v24
    v_mov_b32 v27, 0x0c0c0c0c
    v_and_b32 v25, 4, v12
    v_cmp_eq_u32 vcc, 0, v25
    v_and_b32 v10, 3, v12
    v_mul_u32_u24 v10, 0x5555, v10
    v_cndmask_b32 v8, v27, v24, vcc
    v_cndmask_b32 v9, v24, v27, vcc
""")
    else:
        a(f"""
    v_lshrrev_b32 v24, 3, v12
    v_lshlrev_b32 v24, 1, v24
    v_add_u32 v25, 1, v24
    v_lshl_or_b32 v24, v25, 8, v24
    v_and_b32 v25, 1, v12
    v_lshlrev_b32 v25, 4, v25
    v_mov_b32 v26, 0xffff
    v_lshlrev_b32 v26, v25, v26
    v_lshlrev_b32 v24, v25, v24
    v_mov_b32 v27, 0x0c0c0c0c
    v_bfi_b32 v24, v26, v24, v27
    v_bfe_u32 v25, v12, 1, 2
""")
        for j in range(4):
            a(f"v_cmp_eq_u32 vcc, {j}, v25")
            a("s_nop 1")
            a(f"v_cndmask_b32 v{8+j}, v27, v24, vcc")
    a(f"v_lshlrev_b32 v{STAGE+3}, 4, v12")
    if OPT["warm"]:
        a(f"""
""")
        if OPT.get("wint"):
            a(f"""
    s_and_b32 s24, s2, 31
    s_lshl_b32 s24, s24, 3
    s_lshr_b32 s26, s2, 5
    s_or_b32 s24, s24, s26
""")
        else:
            a(f"""s_and_b32 s24, s2, {31 if (OPT.get("k1warm") or OPT.get("rot")) else 255}""")
        a(f"""
    s_lshl_b32 s24, s24, 3
    s_add_u32 s24, s24, s{S_WAVE}
    s_mul_i32 s24, s24, 13
""")
        if OPT.get("rot"):
            a(f"s_lshr_b32 s26, s2, 5")
            a(f"s_mul_i32 s26, s26, {PH}")
            a(f"s_add_u32 s24, s24, s26")
        a(f"""
    v_lshrrev_b32 v156, 2, v{L}
    v_add_u32 v156, s24, v156
    v_and_b32 v157, 3, v{L}
    v_lshlrev_b32 v157, 7, v157
    v_cmp_gt_u32 vcc, 52, v{L}
    v_mov_b32 v24, {PADIDX:#x}
    s_mov_b32 m0, {L_DUMMY}
    v_cndmask_b32 v156, v24, v156, vcc
""")
    a(f"""
    v_and_b32 v12, 7, v{L}
    s_lshl_b32 s24, s{S_WAVE}, 6
    v_lshl_add_u32 v13, v12, 3, s24
    v_lshrrev_b32 v14, 3, v{L}
    v_lshlrev_b32 v14, 2, v14
    v_lshlrev_b32 v16, 5, v{L}
    v_mov_b32 v1, 2
""")
    if not BAL:
        a(f"""
    v_lshlrev_b32 v20, 4, v12
    v_add_u32 v20, s{S_WAVE}, v20
    v_add_u32 v21, 8, v20
    ds_write_b64 v13, v[20:21] offset:{L_MAP}
""")
    a("v_lshlrev_b32 v12, 2, v12")
    a("s_waitcnt vmcnt(8)")
    stamp(a, 2)

    def pre_atomic(i, u, k):
        if u < 2:
            a(f"s_waitcnt vmcnt({u * 4 + 3 - k})")

    def f_atomic(i, u, k):
        r = RB + 4 * i
        a(f"v_lshrrev_b32 v{r+3}, 16, v{r+2}")
        a(f"ds_add_rtn_u32 v{RK+i}, v{r+3}, v1 offset:{L_HIST}")
    masked(f_atomic, "at", pre_atomic)
    a(f"""
    s_mul_i32 s24, s{S_WAVE}, 5120
    s_add_u32 s26, s24, {L_W}
    s_mov_b32 m0, s26
    s_add_u32 s24, s24, {WIMG_OFF}
    v_lshl_add_u32 v158, v{L}, 4, s24
""")
    for i in range(4):
        a(f"buffer_load_dwordx4 v158, s[{S_REC}:{S_REC+3}], 0 offen offset:{1024*i} lds")
    a(f"""
    s_add_u32 s26, s26, 4096
    s_mov_b32 m0, s26
    v_add_u32 v158, 4096, v158
    buffer_load_dwordx4 v158, s[{S_REC}:{S_REC+3}], 0 offen lds
""")
    a(f"s_mov_b32 m0, {L_DUMMY}")
    a("s_nop 0")
    a("s_waitcnt lgkmcnt(0)")
    pstamp(a, 1)
    a("s_barrier")
    pstamp(a, 2)
    if OPT.get("l2pf"):
        a(f"s_lshr_b32 s24, s2, 5")
        a(f"s_mul_i32 s24, s24, {32*8*13}")
        a(f"v_subrev_u32 v158, s24, v156")
        a(f"v_cmp_gt_u32 vcc, 52, v{L}")
        a(f"v_mov_b32 v159, v157")
        a(f"s_nop 0")
        a(f"v_cndmask_b32 v158, v156, v158, vcc")
        if OPT["l2pf"] == 1:
            a(f"buffer_load_dword v[158:159], s[{S_X}:{S_X+3}], 0 idxen offen lds")
    if OPT["warm"]:
        a(f"buffer_load_dword v[156:157], s[{S_X}:{S_X+3}], 0 idxen offen lds")
    if OPT.get("l2pf") == 2:
        a(f"buffer_load_dword v[158:159], s[{S_X}:{S_X+3}], 0 idxen offen lds")
    if OPT["warm"]:
        for _ in range(OPT["warm"] - 1):
            a(f"v_add_u32 v156, 3328, v156")
            a(f"buffer_load_dword v[156:157], s[{S_X}:{S_X+3}], 0 idxen offen lds")

    def f_taddr(i, u, k):
        r = RB + 4 * i
        a(f"v_min_u32 v0, 2, v{RK+i}")
        a(f"v_add_lshl_u32 v{r+3}, v{r+3}, v0, 1")

    if BAL:
        a(f"""
    ds_read_b128 v[24:27], v16 offset:{L_HIST}
    ds_read_b128 v[28:31], v16 offset:{L_HIST+16}
    ds_read_b128 v[32:35], v16 offset:{L_HIST+2048}
    ds_read_b128 v[36:39], v16 offset:{L_HIST+2064}
    v_sub_u32 v40, {2*128 + 127}, v{L}
    v_sub_u32 v41, {2*128 + 63}, v{L}
    v_mov_b32 v42, 0
    v_mov_b32 v43, 0
    s_lshl_b32 s24, s{S_WAVE}, 3
    s_waitcnt lgkmcnt(2)
    v_add3_u32 v24, v24, v25, v26
    v_add3_u32 v28, v28, v29, v30
    v_add3_u32 v24, v24, v27, v31
    s_waitcnt lgkmcnt(0)
    v_add3_u32 v32, v32, v33, v34
    v_add3_u32 v36, v36, v37, v38
    v_add3_u32 v32, v32, v35, v39
    v_add_u32 v24, v24, v28
    v_add_u32 v32, v32, v36
    v_lshl_add_u32 v40, v24, 7, v40
    v_lshl_add_u32 v41, v32, 7, v41
    v_and_b32 v40, 0xfffffe7f, v40
    v_and_b32 v41, 0xfffffe7f, v41
""")
        sel = [(40, i) for i in range(8)] + [(41, None)] * 5
        for n in range(13):
            if n < 8:
                a(f"s_add_u32 s25, s24, {n}")
                a(f"v_readlane_b32 s{28+n}, v40, s25")
            else:
                a(f"s_add_u32 s25, s{S_WAVE}, {8*(n-8)}")
                a(f"v_readlane_b32 s{28+n}, v41, s25")
        for n in range(13):
            p0, p1 = ("vcc", "s[26:27]") if n % 2 == 0 else ("s[24:25]", "s[42:43]")
            a(f"v_cmp_gt_u32 {p0}, s{28+n}, v40")
            a(f"v_cmp_gt_u32 {p1}, s{28+n}, v41")
            if n:
                q0, q1 = ("vcc", "s[26:27]") if n % 2 == 1 else ("s[24:25]", "s[42:43]")
                a(f"v_addc_co_u32 v42, {q0}, 0, v42, {q0}")
                a(f"v_addc_co_u32 v43, {q1}, 0, v43, {q1}")
        a(f"""
    v_lshlrev_b32 v44, 2, v{L}
    v_mov_b32 v20, 127
    v_addc_co_u32 v42, vcc, 0, v42, vcc
    v_addc_co_u32 v43, s[26:27], 0, v43, s[26:27]
    v_mov_b32 v21, 127
    ds_add_u32 v44, v42 offset:{L_RANK}
    ds_add_u32 v44, v43 offset:{L_RANK+256}
    ds_write_b64 v13, v[20:21] offset:{L_MAP}
""")
        if OPT.get("carry", 1):
            masked(f_taddr, "ta")
        a(f"""
    s_waitcnt lgkmcnt(0)
    s_barrier
    ds_read_b32 v42, v44 offset:{L_RANK}
    ds_read_b32 v43, v44 offset:{L_RANK+256}
    v_add_u32 v41, 64, v{L}
    s_lshl_b32 s24, s{S_WAVE}, 6
    s_waitcnt lgkmcnt(0)
    v_bfe_i32 v45, v42, 3, 1
    v_bfe_i32 v46, v43, 3, 1
    v_xor_b32 v45, v45, v42
    v_xor_b32 v46, v46, v43
    v_and_b32 v45, 7, v45
    v_and_b32 v46, 7, v46
    v_cmp_eq_u32 vcc, s{S_WAVE}, v45
    v_cmp_eq_u32 s[26:27], s{S_WAVE}, v46
    v_lshrrev_b32 v42, 3, v42
    v_lshrrev_b32 v43, 3, v43
    v_lshl_add_u32 v42, v42, 2, s24
    v_lshl_add_u32 v43, v43, 2, s24
    s_mov_b64 exec, vcc
    ds_write_b32 v42, v{L} offset:{L_MAP}
    s_mov_b64 exec, s[26:27]
    ds_write_b32 v43, v41 offset:{L_MAP}
    s_mov_b64 exec, -1
    ds_read_b64 v[20:21], v13 offset:{L_MAP}
    s_waitcnt lgkmcnt(0)
""")
    def prefix_carry():
        a(f"""
    v_lshlrev_b32 v20, 5, v20
    v_lshlrev_b32 v21, 5, v21
    ds_read_b128 v[24:27], v20 offset:{L_HIST}
    ds_read_b128 v[28:31], v20 offset:{L_HIST+16}
    ds_read_b128 v[32:35], v21 offset:{L_HIST}
    ds_read_b128 v[36:39], v21 offset:{L_HIST+16}
    v_add_u32 v20, v14, v20
    v_add_u32 v21, v14, v21
    ds_read_b32 v40, v20 offset:{L_HIST}
    ds_read_b32 v41, v21 offset:{L_HIST}
""")
        if not BAL:
            masked(f_taddr, "ta")
        a(f"""
    v_mov_b32 v42, 0
    v_mov_b32 v43, 0
    v_mov_b32 v44, v12
    v_mov_b32 v45, v12
    v_lshlrev_b32 v20, 1, v20
    v_lshlrev_b32 v21, 1, v21
    s_waitcnt lgkmcnt(0)
""")
        for q in range(1, 8):
            lo = (0xFFFFFFFFFFFFFFFF << (8 * q)) & 0xFFFFFFFF
            hi = ((0xFFFFFFFFFFFFFFFF << (8 * q)) >> 32) & 0xFFFFFFFF
            if q <= 4:
                a(f"s_mov_b32 exec_lo, {lo:#x}")
            else:
                a(f"s_mov_b32 exec_hi, {hi:#x}")
            a(f"v_cmp_ne_u32 vcc, 0, v{24+q-1}")
            a(f"v_cmp_ne_u32 s[26:27], 0, v{32+q-1}")
            a(f"v_add_u32 v42, v42, v{24+q-1}")
            a(f"v_add_u32 v43, v43, v{32+q-1}")
            a(f"v_cndmask_b32 v44, v44, v12, vcc")
            a(f"v_cndmask_b32 v45, v45, v12, s[26:27]")
            a(f"v_add_u32 v12, 32, v12")
        a(f"""
    s_mov_b64 exec, -1
    v_add_u32 v46, 2, v42
    v_add_u32 v47, 2, v43
    v_add_u32 v0, v46, v40
    v_add_u32 v1, v47, v41
    v_lshrrev_b32 v46, 2, v46
    v_lshrrev_b32 v47, 2, v47
    v_lshrrev_b32 v0, 2, v0
    v_lshrrev_b32 v1, 2, v1
    v_sub_u32 v0, v0, v46
    v_sub_u32 v1, v1, v47
    v_add_u32 v24, v0, v1
    v_mov_b32 v25, v24
""")
        wave_scan(a, 25)
        a(f"""
    v_readlane_b32 s24, v25, 63
    v_sub_u32 v24, v25, v24
    v_lshl_add_u32 v27, v24, 5, s{S_REGION}
    v_lshl_add_u32 v29, v0, 5, v27
    v_and_b32 v42, 2, v42
    v_and_b32 v43, 2, v43
    v_lshlrev_b32 v46, 3, v42
    v_lshlrev_b32 v47, 3, v43
    v_sub_u32 v27, v27, v46
    v_sub_u32 v29, v29, v47
    v_lshl_add_u32 v46, v40, 3, v27
    v_lshl_add_u32 v47, v41, 3, v29
    ds_bpermute_b32 v26, v44, v46
    ds_bpermute_b32 v28, v45, v47
    v_cmp_eq_u32 vcc, 0, v42
    v_cmp_eq_u32 s[26:27], 0, v43
    s_cmp_le_u32 s24, {CAPP}
    s_cbranch_scc1 M_noovf
    v_mov_b32 v30, 1
    ds_write_b32 v4, v30 offset:{L_FLAG}
M_noovf:
    s_waitcnt lgkmcnt(0)
    v_cndmask_b32 v26, v26, v27, vcc
    v_cndmask_b32 v28, v28, v29, s[26:27]
    ds_write_b64 v20, v[26:27] offset:{L_TAB}
    ds_write_b64 v21, v[28:29] offset:{L_TAB}
    s_waitcnt lgkmcnt(0)
""")

    CARRY = OPT.get("carry", 1)
    if CARRY:
        prefix_carry()
    else:
        a(f"""
    v_lshl_add_u32 v20, v20, 5, v14
    v_lshl_add_u32 v21, v21, 5, v14
    ds_read_b32 v0, v20 offset:{L_HIST}
    ds_read_b32 v1, v21 offset:{L_HIST}
    s_waitcnt lgkmcnt(0)
    v_add_u32 v0, 2, v0
    v_add_u32 v1, 2, v1
    v_lshrrev_b32 v0, 2, v0
    v_lshrrev_b32 v1, 2, v1
    v_add_u32 v24, v0, v1
    v_mov_b32 v25, v24
""")
        wave_scan(a, 25)
        a(f"""
    v_readlane_b32 s24, v25, 63
    v_sub_u32 v24, v25, v24
    v_lshl_add_u32 v27, v24, 5, s{S_REGION}
    v_lshl_add_u32 v29, v0, 5, v27
    ds_write_b32 v20, v27 offset:{L_HIST}
    ds_write_b32 v21, v29 offset:{L_HIST}
    s_cmp_le_u32 s24, {CAPP}
    s_cbranch_scc1 M_noovf
    v_mov_b32 v30, 1
    ds_write_b32 v4, v30 offset:{L_FLAG}
M_noovf:
    s_waitcnt lgkmcnt(0)
""")
    pstamp(a, 4)
    a(f"""
    s_barrier
    ds_read_b64 v[20:21], v4 offset:{L_FLAG}
""")
    masked(lambda i, u, k: a(f"ds_read_b32 v{RB+4*i+3}, v{RB+4*i+3} offset:{L_TAB if CARRY else L_HIST}"), "lk")
    for r in range(D):
        a(f"v_mov_b32 v{RING+4*r+1}, v{STAGE+3}")
    for st in range(1, LS):
        a(f"v_mov_b32 v{STAGE+4*st+3}, v{STAGE+3}")
    a(f"""
    s_waitcnt lgkmcnt(0)
    v_readfirstlane_b32 s24, v20
    v_readfirstlane_b32 s{S_MORE}, v21
    s_cmp_eq_u32 s24, 0
    s_cbranch_scc1 M_go
    s_lshr_b32 s{S_TAKE}, s{S_TAKE}, 1
    s_max_u32 s{S_TAKE}, s{S_TAKE}, 1
    s_waitcnt vmcnt(0)
    s_barrier
    s_branch M_round
M_go:
""")
    pstamp(a, 5)

    def f_scatter(i, u, k):
        r = RB + 4 * i
        a(f"v_lshl_add_u32 v{r+3}, v{RK+i}, 3, v{r+3}")
        a(f"ds_write_b16 v{r+3}, v{r+2} offset:8")
        a(f"ds_write_b64 v{r+3}, v[{r}:{r+1}] offset:{32*(D-1)}")
    masked(f_scatter, "sc")
    a(f"s_waitcnt vmcnt({OPT['warm'] + (1 if OPT.get('l2pf') else 0)}) lgkmcnt(0)")
    a("s_barrier")
    stamp(a, 3)
    cstamp(a, 1)
    for r in range(D):
        a(f"ds_read_b32 v{RING+4*r}, v{V_PTR} offset:{32*r+8}")
    a(f"ds_read_b64 v[{RING+2}:{RING+3}], v{V_PTR} offset:{32*(D-1)}")
    for st in range(LS):
        a(f"ds_read_b96 v[{STAGE+4*st}:{STAGE+4*st+2}], v{V_PTR} offset:{32*(D+st)}")
    for j in range(5, NSLOT):
        a(f"v_mfma_f32_32x32x16_bf16 v[{ACC+16*j}:{ACC+16*j+15}], v[4:7], v[4:7], 0")
    a(f"s_waitcnt lgkmcnt({LS})")
    for j in range(2 if SMF else 4):
        a(f"v_perm_b32 v{4+j}, v{RING+3}, v{RING+2}, v{8+j}")
    for r in range(D):
        a(f"buffer_load_dwordx4 v[{RING+4*r}:{RING+4*r+3}], v[{RING+4*r}:{RING+4*r+1}], s[{S_X}:{S_X+3}], 0 idxen offen")
    a(f"s_mov_b32 s{S_PH}, 0")
    xf = ["", " nt", " sc1", " sc0"][OPT.get("xf", 0)]
    PB = 2 if OPT.get("eprio") else 0
    if OPT.get("eprio"):
        a("s_setprio 2")
    if OPT.get("offen") == 2:
        a(f"v_mov_b32 v{L}, v{STAGE+3}")
    if OPT.get("offen"):
        a(f"s_mov_b32 s{S_MASK}, s{S_X}")
        a(f"s_and_b32 s{S_MASK+1}, s{S_X+1}, 0xffff")
        a(f"s_mov_b32 s{S_MASK+2}, {N*512}")
        a(f"s_mov_b32 s{S_MASK+3}, 0x20000")
    if OPT.get("prio") == 2:
        a(f"s_cmp_lt_u32 s{S_WAVE}, 4")
        a("s_cbranch_scc1 M_PE0")
        a("s_setprio 1")
    a("s_branch M_epi" if OPT.get("nomain") else "s_branch M_PE0")
    assert D % LS == 0
    if OPT.get("dbl"):
        def nxt_label(j, r):
            return f"M_B{j+1}_{r}" if j + 1 < NSLOT else f"M_PE{r}"

        def single(j, r):
            ac = ACC + 16 * j
            rg = RING + 4 * r
            st = STAGE + 4 * (r % LS)
            a(f"""
    s_waitcnt vmcnt({D-1}) lgkmcnt({LS-1})
    v_smfmac_f32_32x32x16_bf16 v[{ac}:{ac+15}], v[4:5], v[{rg}:{rg+3}], v10
    buffer_load_dwordx4 v[{rg}:{rg+3}], v[{st+2}:{st+3}], s[{S_X}:{S_X+3}], 0 idxen offen
    v_perm_b32 v4, v{st+1}, v{st}, v8
    v_perm_b32 v5, v{st+1}, v{st}, v9
    ds_read_b96 v[{st}:{st+2}], v{V_PTR} offset:{32*(r+D+LS)}
""")
            if r == D - 1:
                a(f"v_add_u32 v{V_PTR}, {32*D}, v{V_PTR}")

        for j in range(NSLOT):
            ac = ACC + 16 * j
            order = list(range(0, D, 2)) + list(range(1, D, 2))
            for r in order:
                rg = RING + 4 * r
                sa = STAGE + 4 * (r % LS)
                sb = STAGE + 4 * ((r + 1) % LS)
                a(f"M_B{j}_{r}:")
                if r == D - 1:
                    a(f"s_sub_u32 s{S_CNT+j}, s{S_CNT+j}, 1")
                    a(f"s_cbranch_scc1 {nxt_label(j, r)}")
                    single(j, r)
                    a(f"s_branch M_B{j}_0")
                    continue
                a(f"""
    s_sub_u32 s{S_CNT+j}, s{S_CNT+j}, 2
    s_cbranch_scc1 M_T{j}_{r}
    s_waitcnt lgkmcnt({LS-1})
    v_perm_b32 v6, v{sa+1}, v{sa}, v8
    v_perm_b32 v7, v{sa+1}, v{sa}, v9
    s_waitcnt vmcnt({D-2}) lgkmcnt({LS-2})
    v_permlane32_swap_b32 v4, v6
    v_permlane32_swap_b32 v5, v7
    s_nop 1
    v_smfmac_f32_32x32x32_bf16 v[{ac}:{ac+15}], v[4:7], v[{rg}:{rg+7}], v10
    buffer_load_dwordx4 v[{rg}:{rg+3}], v[{sa+2}:{sa+3}], s[{S_X}:{S_X+3}], 0 idxen offen
    buffer_load_dwordx4 v[{rg+4}:{rg+7}], v[{sb+2}:{sb+3}], s[{S_X}:{S_X+3}], 0 idxen offen
    v_perm_b32 v4, v{sb+1}, v{sb}, v8
    v_perm_b32 v5, v{sb+1}, v{sb}, v9
    ds_read_b96 v[{sa}:{sa+2}], v{V_PTR} offset:{32*(r+D+LS)}
    ds_read_b96 v[{sb}:{sb+2}], v{V_PTR} offset:{32*(r+1+D+LS)}
""")
                if r == D - 2:
                    a(f"v_add_u32 v{V_PTR}, {32*D}, v{V_PTR}")
                    a(f"s_branch M_B{j}_0")
            for r in range(D - 1):
                a(f"""
M_T{j}_{r}:
    s_bitcmp1_b32 s{S_CNT+j}, 0
    s_cbranch_scc0 {nxt_label(j, r)}
""")
                single(j, r)
                a(f"s_branch {nxt_label(j, r+1)}")
    for j in range(0 if not OPT.get("dbl") else NSLOT, NSLOT):
        ac = ACC + 16 * j
        for r in range(D):
            nxt = f"M_B{j+1}_{r}" if j + 1 < NSLOT else f"M_PE{r}"
            rg = RING + 4 * r
            st = STAGE + 4 * (r % LS)
            a(f"""
M_B{j}_{r}:
    s_sub_u32 s{S_CNT+j}, s{S_CNT+j}, 1
    s_cbranch_scc1 {nxt}
    s_waitcnt vmcnt({D-1}) lgkmcnt({LS-1})
""")
            if OPT.get("offen"):
                a(f"v_lshl_add_u32 v{st+2}, v{st+2}, 9, v{L if OPT['offen'] == 2 else st+3}")
            if OPT.get("half") == 1 and r % 2 == 0:
                pass
            elif OPT.get("half") == 1:
                a(f"v_smfmac_f32_32x32x32_bf16 v[{ac}:{ac+15}], v[4:7], v[{rg-4}:{rg+3}], v10")
            elif OPT.get("half") == 2:
                pass
            elif SMF:
                a(f"v_smfmac_f32_32x32x16_bf16 v[{ac}:{ac+15}], v[4:5], v[{rg}:{rg+3}], v10")
            else:
                a(f"v_mfma_f32_32x32x16_bf16 v[{ac}:{ac+15}], v[4:7], v[{rg}:{rg+3}], v[{ac}:{ac+15}]")
            if OPT.get("offen"):
                a(f"buffer_load_dwordx4 v[{rg}:{rg+3}], v{st+2}, s[{S_MASK}:{S_MASK+3}], 0 offen")
            else:
                a(f"buffer_load_dwordx4 v[{rg}:{rg+3}], v[{st+2}:{st+3}], s[{S_X}:{S_X+3}], 0 idxen offen{xf}")
            a(f"""
    v_perm_b32 v4, v{st+1}, v{st}, v8
    v_perm_b32 v5, v{st+1}, v{st}, v9
""")
            if not SMF:
                a(f"v_perm_b32 v6, v{st+1}, v{st}, v10")
                a(f"v_perm_b32 v7, v{st+1}, v{st}, v11")
            if OPT.get("offen") == 2:
                a(f"ds_read_b128 v[{st}:{st+3}], v{V_PTR} offset:{32*(r+D+LS)}")
            else:
                a(f"ds_read_b96 v[{st}:{st+2}], v{V_PTR} offset:{32*(r+D+LS)}")
            if r == D - 1:
                a(f"v_add_u32 v{V_PTR}, {32*D}, v{V_PTR}")
                a(f"s_branch M_B{j}_0")
    for r in range(D):
        a(f"""
M_PE{r}:
    s_cmp_ge_u32 s{S_PH}, {8*OPT.get("nph", 8)}
    s_cbranch_scc1 M_epi
""")
        for j in range(NSLOT):
            if j % 2 == 0:
                a(f"s_add_u32 s24, s{S_PH}, {j//2}")
            a(f"v_readlane_b32 s{S_CNT+j}, v{j % 2}, s24")
        a(f"s_add_u32 s{S_PH}, s{S_PH}, 8")
        if OPT.get("phbar"):
            a("s_barrier")
        if OPT.get("prio") == 1:
            a(f"s_lshr_b32 s24, s{S_PH}, 1")
            a(f"s_xor_b32 s24, s24, s{S_WAVE}")
            a(f"s_bitcmp1_b32 s24, 2")
            a(f"s_setprio {PB}")
            a(f"s_cbranch_scc0 M_B0_{r}")
            a(f"s_setprio {PB+1}")
        a(f"s_branch M_B0_{r}")
    a("M_epi:")
    if OPT.get("noepi") == 1:
        a("s_endpgm")
    if OPT.get("eprio"):
        a("s_setprio 0")
    if STAMP:
        a("s_waitcnt vmcnt(0) lgkmcnt(0)")
    stamp(a, 4)
    cstamp(a, 2)
    if OPT.get("noepi") == 2:
        a("s_branch M_end")
    if OPT.get("ebar"):
        a("s_barrier")
    if OPT.get("offen") == 2:
        a(f"v_mbcnt_lo_u32_b32 v{L}, -1, 0")
        a(f"v_mbcnt_hi_u32_b32 v{L}, -1, v{L}")
    a(f"""
    ; v0 = staging write addr, v1 = staging read addr, v2 = W image addr, v4 = local node, v5 = q
    v_lshl_add_u32 v0, v{L}, 3, s{S_REGION}
    v_and_b32 v4, 15, v{L}
    v_lshrrev_b32 v5, 4, v{L}
    v_mul_u32_u24 v1, {STG}, v4
    v_lshl_add_u32 v1, v5, 4, v1
    v_add_u32 v1, s{S_REGION}, v1
    v_lshlrev_b32 v2, 4, v{L}
    v_add_u32 v2, {L_W}, v2
    s_lshl_b32 s24, s{S_WAVE}, 6
    v_lshl_add_u32 v4, v4, 2, s24
    ds_read_b32 v4, v4 offset:{L_MAP}
    s_mov_b32 s26, 0x80008000
""")

    of = ["", " nt", " sc1", " sc0 sc1"][OPT.get("ost", 1)]
    Q = [[ACC + 16 * j + 4 * kc for j in range(NSLOT)] for kc in range(4)]
    BFS = [[8, 12, 16, 20, 24, 28, 32, 36], Q[0][0:8], Q[2][3:11], Q[3][0:8]]
    BF = {(kc, c, ks): BFS[kc][c * 2 + ks] for kc in range(4) for c in range(4) for ks in range(2)}
    outq = Q[1][0:13] + Q[2][0:3]
    order = [(0, 0), (0, 1), (0, 2), (0, 3)] + [(o, t) for t in range(4) for o in (1, 2, 3)]
    OUT = {ot: outq[i] for i, ot in enumerate(order)}
    AF = Q[0][8:13] + [40, 44]
    GATE = Q[3][8:12]
    NA = len(AF)
    S = Sched(a)

    def f_cvt(kc):
        ops = []
        for j in range(NSLOT):
            q = Q[kc][j]
            ops.append(("valu", f"v_cvt_pk_bf16_f32 v{q}, v{q}, v{q+1}", [q, q + 1], [q]))
            ops.append(("valu", f"v_cvt_pk_bf16_f32 v{q+1}, v{q+2}, v{q+3}", [q + 2, q + 3], [q + 1]))
        return ops

    def f_w(kc):
        return [("dsw", f"ds_write_b64 v0, v[{Q[kc][j]}:{Q[kc][j]+1}] offset:{STG*j}", [Q[kc][j], Q[kc][j] + 1], [])
                for j in range(NSLOT)]

    def f_rb(kc):
        return [("dsr", f"ds_read_b128 v[{BF[kc,c,ks]}:{BF[kc,c,ks]+3}], v1 offset:{c*64+ks*256}", [], R(BF[kc, c, ks]))
                for c in range(4) for ks in range(2)]

    use = {m: [] for m in range(5)}
    negs = []
    for kc in range(4):
        for c in range(4):
            if kc == 0:
                m, o = (0, 0) if c == 0 else (3, c)
            else:
                jj = kc - 1
                if c == 0:
                    m, o = 2, kc
                elif c - 1 == jj:
                    m, o = 1, 0
                else:
                    m, o = 4, 1 + (3 - jj - (c - 1))
                    if c - 1 != (jj + 1) % 3:
                        negs.append((kc, c))
            use[m].append((kc, c, o))
    frs = [(0, ks, t) for t in range(4) for ks in range(2)] + [(3, ks, t) for t in range(4) for ks in range(2)] \
        + [(1, ks, t) for t in range(4) for ks in range(2)] \
        + [(m, ks, t) for t in range(4) for m in (2, 4) for ks in range(2)]

    def f_af(n):
        m, ks, t = frs[n]
        q = AF[n % NA]
        return ("dsr", f"ds_read_b128 v[{q}:{q+3}], v2 offset:{((m*2+ks)*4+t)*1024}", [], R(q))

    def emit(o):
        if OPT.get("nostore") and o[0] == "store":
            return
        if OPT.get("nodsw") and o[0] == "dsw":
            return
        if OPT.get("nodsr") and o[0] == "dsr":
            return
        if OPT.get("novalu") and o[0] in ("valu", "trans") and "v4" not in o[1]:
            return
        S.op(o[0], o[1], o[2], o[3])

    for o in f_cvt(0):
        emit(o)
    a("s_waitcnt vmcnt(0) lgkmcnt(0)")
    for o in f_w(0) + f_rb(0):
        emit(o)
    for n in range(NA):
        emit(f_af(n))
    for o in f_cvt(1) + f_w(1):
        emit(o)
    neg_ops = [("valu", f"v_xor_b32 v{BF[kc,c,kk]+i}, s26, v{BF[kc,c,kk]+i}", [BF[kc, c, kk] + i], [BF[kc, c, kk] + i])
               for (kc, c) in negs for kk in range(2) for i in range(4)]
    addr_ops = [
        ("valu", f"v_cmp_gt_u32 vcc, {NPB}, v4", [4], []),
        ("other", f"s_mul_i32 s24, s2, {NPB}", [], []),
        ("valu", "v_add_u32 v4, s24, v4", [4], [4]),
        ("valu", "v_lshlrev_b32 v4, 9, v4", [4], [4]),
        ("valu", "v_lshl_add_u32 v4, v5, 4, v4", [4, 5], [4]),
        ("valu", f"v_mov_b32 v5, {OOB:#x}", [], [5]),
        ("valu", "v_cndmask_b32 v4, v5, v4, vcc", [4, 5], [4]),
        ("other", "s_mov_b32 s24, 0xbfb8aa3b", [], []),
    ]
    fill = f_rb(1) + f_cvt(2) + f_w(2) + f_rb(2) + f_cvt(3) + f_w(3) + f_rb(3) + addr_ops + neg_ops
    gate_ops = []
    for t in range(4):
        for i in range(4):
            gate_ops.append(("valu", f"v_mul_f32 v{GATE[t]+i}, s24, v{OUT[0,t]+i}", [OUT[0, t] + i], [GATE[t] + i]))
    G = [GATE[t] + i for t in range(4) for i in range(4)]
    gate_ops += [("trans", f"v_exp_f32 v{g}, v{g}", [g], [g]) for g in G]
    gate_ops += [("valu", f"v_add_f32 v{g}, 1.0, v{g}", [g], [g]) for g in G]
    gate_ops += [("trans", f"v_rcp_f32 v{g}, v{g}", [g], [g]) for g in G]
    PK = [8, 12, 16, 20, 24, 28, 32, 36]

    def f_store(o, k):
        ops = []
        p = PK[o * 2 + k]
        d0, d1 = OUT[o, 2 * k], OUT[o, 2 * k + 1]
        if o:
            for t in (2 * k, 2 * k + 1):
                d = OUT[o, t]
                g = GATE[t]
                ops.append(("valu", f"v_pk_mul_f32 v[{d}:{d+1}], v[{d}:{d+1}], v[{g}:{g+1}]", [d, d + 1, g, g + 1], [d, d + 1]))
                ops.append(("valu", f"v_pk_mul_f32 v[{d+2}:{d+3}], v[{d+2}:{d+3}], v[{g+2}:{g+3}]", [d + 2, d + 3, g + 2, g + 3], [d + 2, d + 3]))
        for i, dd in enumerate((d0, d0 + 2, d1, d1 + 2)):
            ops.append(("valu", f"v_cvt_pk_bf16_f32 v{p+i}, v{dd}, v{dd+1}", [dd, dd + 1], [p + i]))
        ops.append(("store", f"buffer_store_dwordx4 v[{p}:{p+3}], v4, s[{S_OUT}:{S_OUT+3}], 0 offen offset:{o*128+k*64}{of}",
                    R(p) + [4], []))
        return ops

    def gemm(S, fill, late):
        fill = list(fill)
        touched = set()
        for n, (m, ks, t) in enumerate(frs):
            if n in (14, 16, 24):
                lim = {14: len(f_rb(1) + f_cvt(2) + f_w(2)), 16: 3 * 8 + 2 * 39, 24: 10 ** 6}[n]
                while fill and done[0] < lim:
                    emit(fill.pop(0))
                    done[0] += 1
            fill += late.get(n, [])
            q = AF[n % NA]
            for (kc, c, o) in use[m]:
                b = BF[kc, c, ks]
                d = OUT[o, t]
                first = (o, t) not in touched
                touched.add((o, t))
                cin = "0" if first else f"v[{d}:{d+3}]"
                if not OPT.get("noem"):
                  S.op("mfma", f"v_mfma_f32_16x16x32_bf16 v[{d}:{d+3}], v[{q}:{q+3}], v[{b}:{b+3}], {cin}",
                     R(q) + R(b), R(d), [] if first else R(d))
                for _ in range(FPM):
                    if fill:
                        emit(fill.pop(0))
                        done[0] += 1
            if n + NA < len(frs):
                emit(f_af(n + NA))
        return fill

    FPM = OPT.get("fpm", 3)
    done = [0]
    a(f"s_or_b32 s27, s{S_C0}, s{S_MORE}")
    a("s_cmp_eq_u32 s27, 0")
    a("s_cbranch_scc0 M_multi")
    import copy
    S2 = copy.deepcopy(S)
    S2.a = a
    if OPT.get("adj"):
        late = {25: gate_ops + f_store(0, 0)[:-1] + f_store(0, 1) + f_store(0, 0)[-1:],
                33: f_store(1, 0)[:-1] + f_store(2, 0)[:-1] + f_store(3, 0)[:-1]}
        rest = gemm(S, fill, late)
        for o in rest + f_store(1, 1) + f_store(1, 0)[-1:] + f_store(2, 1) + f_store(2, 0)[-1:] + f_store(3, 1) + f_store(3, 0)[-1:]:
            emit(o)
    else:
        late = {25: gate_ops + f_store(0, 0) + f_store(0, 1),
                33: f_store(1, 0) + f_store(2, 0) + f_store(3, 0)}
        rest = gemm(S, fill, late)
        for o in rest + f_store(1, 1) + f_store(2, 1) + f_store(3, 1):
            emit(o)
    a("s_branch M_end")
    a("M_multi:")
    S = S2
    done = [0]
    rest = gemm(S, fill, {})
    for o in rest:
        emit(o)
    a(f"""
    s_nop 7
    v_lshlrev_b32 v0, 1, v4
    v_cndmask_b32 v0, v5, v0, vcc
    s_cmp_eq_u32 s{S_C0}, 0
    s_cbranch_scc1 M_noload
""")

    def poff(o, t):
        return o * 256 + (t >> 1) * 128 + (t & 1) * 16
    for o in range(4):
        for t in range(4):
            a(f"buffer_load_dwordx4 v[{8+4*t}:{11+4*t}], v0, s[{S_PART}:{S_PART+3}], 0 offen offset:{poff(o,t)} sc1")
        a("s_waitcnt vmcnt(0)")
        for t in range(4):
            for i in range(4):
                a(f"v_add_f32 v{OUT[o,t]+i}, v{OUT[o,t]+i}, v{8+4*t+i}")
    a(f"""
M_noload:
    s_cmp_eq_u32 s{S_MORE}, 0
    s_cbranch_scc1 M_final
""")
    for o in range(4):
        for t in range(4):
            q = OUT[o, t]
            a(f"buffer_store_dwordx4 v[{q}:{q+3}], v0, s[{S_PART}:{S_PART+3}], 0 offen offset:{poff(o,t)} sc1")
    a(f"""
    s_add_u32 s{S_C0}, s{S_C0}, s{S_TAKE}
    s_waitcnt vmcnt(0) lgkmcnt(0)
    s_barrier
    s_branch M_round
M_final:
""")
    S = Sched(a)
    for o in gate_ops:
        emit(o)
    for o in range(4):
        for k in range(2):
            for op in f_store(o, k):
                emit(op)
    a("M_end:")
    if OPT.get("es"):
        stamp(a, 3)
    if STAMP:
        a("s_waitcnt vmcnt(0)")
    stamp(a, 5)
    stamp_flush(a, 16, 1, 0, S_WAVE)
    a("""
M_done:
    s_endpgm
""")


def descriptor(name, vgpr, sgpr):
    acc = (vgpr + 3) // 4 * 4
    return f"""
.p2align 6
.amdhsa_kernel {name}
  .amdhsa_next_free_vgpr {vgpr}
  .amdhsa_next_free_sgpr {sgpr}
  .amdhsa_accum_offset {acc}
  .amdhsa_group_segment_fixed_size 0
  .amdhsa_kernarg_size 96
  .amdhsa_user_sgpr_count 2
  .amdhsa_user_sgpr_kernarg_segment_ptr 1
  .amdhsa_system_sgpr_workgroup_id_x 1
  .amdhsa_float_denorm_mode_32 3
.end_amdhsa_kernel
"""


def main():
    global STAMP
    for arg in list(sys.argv):
        if "=" in arg:
            k, v = arg.split("=")
            OPT[k] = int(v)
            sys.argv.remove(arg)
    if "--stamp" in sys.argv:
        STAMP = True
        sys.argv.remove("--stamp")
    ref = open(f"cdna_kernels/{NAME}.s.ref").read().split("\n")
    head = [l for l in ref if l.startswith(";") and "@launch" not in l and "Override launch" not in l
            and "grid=ceil" not in l]
    a = Asm()
    gen_part(a)
    gen_main(a)
    out = "\n".join(head) + "\n"
    out += f"; @launch kernel=part_kernel grid=({NC+6},1,1) block=(832,1,1) lds={K1_LDS}\n"
    out += f"; @launch kernel=main_kernel grid=({NB},1,1) block=(512,1,1) lds={L_TOTAL}\n"
    out += '.amdgcn_target "amdgcn-amd-amdhsa--gfx950"\n.text\n'
    out += a.text()
    out += '.section .rodata,"a"\n'
    out += descriptor("part_kernel", 88, 102 if STAMP else 32)
    out += descriptor("main_kernel", 256, 102)
    path = sys.argv[1] if len(sys.argv) > 1 else f"cdna_kernels/{NAME}.s"
    open(path, "w").write(out)
    print("wrote", path, len(out), "bytes; LDS", L_TOTAL, "CAPP", CAPP)


if __name__ == "__main__":
    main()
```
